```python
import torch

def _softmax(x, axis=-1):
    return torch.softmax(x, dim=axis)

def _gelu(x):
    return torch.nn.functional.gelu(x, approximate='tanh')

def _silu(x):
    return torch.nn.functional.silu(x)

def _sigmoid(x):
    return torch.sigmoid(x)

def _layernorm(x, axis=-1, eps=1e-05):
    m = x.mean(dim=axis, keepdim=True)
    v = x.var(dim=axis, keepdim=True, unbiased=False)
    return (x - m) / torch.sqrt(v + eps)

def _scatter_add(tgt, idx, src, axis=0):
    return tgt.clone().index_add_(axis, idx, src)

def _segment_sum(src, seg, n):
    out = torch.zeros((n,) + src.shape[1:], dtype=src.dtype)
    return out.index_add_(0, seg, src)

def _pad(x, pw):
    flat = tuple((v for pair in reversed(pw) for v in pair))
    return torch.nn.functional.pad(x, flat)
kernel_name = 'parallel_sum__memory_aug_recurrent_mem_tr__glu_gated_glu__prompt'

def setup_inputs():

    _w = lambda a: (lambda t: t.to(torch.bfloat16) if t.is_floating_point() else t)(torch.as_tensor(a))

    def _A_setup():
        B, S, Dm = (1, 2048, 640)
        H, Dh = (32, 128)
        M, seg = (8, 32)
        seg = min(seg, S)
        S = S // seg * seg
        return {'x': _w((lambda *s: torch.randn(*s, dtype=torch.bfloat16) * 0.05)(B, S, Dm)), 'mem0': _w((lambda *s: torch.randn(*s, dtype=torch.bfloat16) * 1.6)(B, M, Dm)), 'Wq': _w((lambda *s: torch.randn(*s, dtype=torch.bfloat16) * 0.8)(Dm, H, Dh) * Dm ** (-0.5)), 'Wk': _w((lambda *s: torch.randn(*s, dtype=torch.bfloat16) * 0.8)(Dm, H, Dh) * Dm ** (-0.5)), 'Wv': _w((lambda *s: torch.randn(*s, dtype=torch.bfloat16) * 1.6)(Dm, H, Dh) * Dm ** (-0.5)), 'Wo': _w((lambda *s: torch.randn(*s, dtype=torch.bfloat16) * 1.6)(H, Dh, Dm) * (H * Dh) ** (-0.5)), 'seg_len': seg}
    _A_in = _A_setup()

    def _B_setup():
        B, S, D, F = (1, 2048, 640, 1728)
        return {'x': _w((lambda *s: torch.randn(*s, dtype=torch.bfloat16) * 0.05)(B, S, D)), 'w_gate': _w((lambda *s: torch.randn(*s, dtype=torch.bfloat16) * 0.05)(D, F)), 'w_up': _w((lambda *s: torch.randn(*s, dtype=torch.bfloat16) * 0.05)(D, F)), 'w_down': _w((lambda *s: torch.randn(*s, dtype=torch.bfloat16) * 0.05)(F, D))}
    _B_in = _B_setup()
    return {'A_x': _A_in['x'], 'A_mem0': _A_in['mem0'], 'A_Wq': _A_in['Wq'], 'A_Wk': _A_in['Wk'], 'A_Wv': _A_in['Wv'], 'A_Wo': _A_in['Wo'], 'A_seg_len': _A_in['seg_len'], 'B_x': _B_in['x'], 'B_w_gate': _B_in['w_gate'], 'B_w_up': _B_in['w_up'], 'B_w_down': _B_in['w_down']}

def reference(A_x, A_mem0, A_Wq, A_Wk, A_Wv, A_Wo, A_seg_len, B_x, B_w_gate, B_w_up, B_w_down):

    def _A_ref(x, mem0, Wq, Wk, Wv, Wo, seg_len):
        B, S, Dm = x.shape
        H, Dh = (Wq.shape[1], Wq.shape[2])
        M = mem0.shape[1]
        scale = Dh ** (-0.5)
        n_seg = S // seg_len
        L = M + seg_len
        idx = torch.arange(L)
        mask = (idx[:, None] < M) | (idx[:, None] >= idx[None, :])
        mem = mem0
        outs = []
        for s in range(n_seg):
            xs = x[:, s * seg_len:(s + 1) * seg_len, :].clone()
            h = torch.concatenate([mem, xs], axis=1)
            q = torch.einsum('btd,dhe->bhte', h, Wq)
            k = torch.einsum('btd,dhe->bhte', h, Wk)
            v = torch.einsum('btd,dhe->bhte', h, Wv)
            scores = torch.einsum('bhqe,bhke->bhqk', q, k) * scale
            scores = torch.where(mask[None, None], scores, -1000000000.0)
            p = _softmax(scores, axis=-1)
            o = torch.einsum('bhqk,bhke->bhqe', p, v)
            o = torch.einsum('bhte,hed->btd', o, Wo)
            mem = o[:, :M, :].clone()
            outs.append(o[:, M:, :])
        return torch.concatenate(outs, axis=1)

    def _B_ref(x, w_gate, w_up, w_down):
        g = torch.einsum('bsd,df->bsf', x, w_gate)
        u = torch.einsum('bsd,df->bsf', x, w_up)
        h = _sigmoid(g) * u
        return torch.einsum('bsf,fd->bsd', h, w_down)
    x = A_x
    xn = _layernorm(x, axis=-1)
    return x + _A_ref(xn, A_mem0, A_Wq, A_Wk, A_Wv, A_Wo, A_seg_len) + _B_ref(xn, B_w_gate, B_w_up, B_w_down)
```

```python
import re

REG_RE = re.compile(r'^(-|abs\(|\|)?([vas])(\d+|\[(\d+):(\d+)\])\)?\|?$')


def parse_reg(tok):
    tok = tok.strip()
    if tok in ('vcc', 'exec', 'm0', 'scc', 'vcc_lo', 'vcc_hi', 'exec_lo', 'exec_hi'):
        base = tok.split('_')[0]
        return {(base, 0)}
    m = REG_RE.match(tok)
    if not m:
        return set()
    kind = m.group(2)
    if m.group(4) is not None:
        lo, hi = int(m.group(4)), int(m.group(5))
    else:
        lo = hi = int(m.group(3))
    return {(kind, i) for i in range(lo, hi + 1)}


TRANS = ('v_exp_f32', 'v_log_f32', 'v_rcp_f32', 'v_rsq_f32', 'v_sqrt_f32', 'v_sin_f32', 'v_cos_f32',
         'v_rcp_iflag_f32')


class Ins:
    def __init__(self, text):
        self.text = text
        t = text.split(';')[0].strip()
        self.label = None
        self.op = None
        self.reads = set()
        self.writes = set()
        self.cls = None
        self.target = None
        self.srcC = set()
        self.srcAB = set()
        self.passes = 0
        self.dpp = False
        if not t:
            self.cls = 'empty'
            return
        if t.endswith(':'):
            self.label = t[:-1]
            self.cls = 'label'
            return
        if t.startswith('.'):
            self.cls = 'directive'
            return
        parts = t.split(None, 1)
        op = parts[0]
        self.op = op
        rest = parts[1] if len(parts) > 1 else ''
        ops = []
        depth = 0
        cur = ''
        for ch in rest:
            if ch in '[(':
                depth += 1
            if ch in '])':
                depth -= 1
            if ch == ',' and depth == 0:
                ops.append(cur.strip())
                cur = ''
            else:
                cur += ch
        if cur.strip():
            ops.append(cur.strip())
        mods = ''
        if ops:
            sp = ops[-1].split()
            if len(sp) > 1:
                ops[-1] = sp[0]
                mods = ' '.join(sp[1:])
        self.ops = ops
        self.mods = mods
        R = [parse_reg(o) for o in ops]
        base = re.sub(r'_(e32|e64|dpp|sdwa)$', '', op)
        self.base = base

        def allr(idx):
            s = set()
            for i in idx:
                if i < len(R):
                    s |= R[i]
            return s
        n = len(ops)
        if op.startswith('v_mfma') or op.startswith('v_smfmac'):
            self.cls = 'mfma'
            self.passes = 8 if '32x32' in op else 4
            if '4x4x4' in op:
                self.passes = 2
            self.writes = R[0]
            if op.startswith('v_smfmac'):
                self.srcC = R[0]
                self.srcAB = allr([1, 2, 3])
            else:
                self.srcC = R[3]
                self.srcAB = allr([1, 2])
            self.reads = self.srcC | self.srcAB
        elif op.startswith('v_'):
            self.cls = 'valu'
            self.dpp = ('row_' in mods or 'quad_perm' in mods or 'wave_' in mods or op.endswith('_dpp'))
            if base.startswith('v_cmp'):
                self.writes = R[0]
                self.reads = allr(range(1, n))
                if base.startswith('v_cmpx'):
                    self.writes = self.writes | {('exec', 0)}
            elif base in ('v_permlane32_swap_b32', 'v_permlane16_swap_b32', 'v_swap_b32'):
                self.writes = R[0] | R[1]
                self.reads = R[0] | R[1]
            elif base in ('v_fmac_f32', 'v_pk_fmac_f16', 'v_writelane_b32', 'v_dot2c_f32_bf16'):
                self.writes = R[0]
                self.reads = allr(range(0, n))
            elif base in ('v_add_co_u32', 'v_sub_co_u32', 'v_addc_co_u32', 'v_subb_co_u32', 'v_mad_u64_u32',
                          'v_div_scale_f32'):
                self.writes = R[0] | R[1]
                self.reads = allr(range(2, n))
            elif base == 'v_nop':
                pass
            else:
                self.writes = R[0]
                self.reads = allr(range(1, n))
                if self.dpp:
                    self.reads = self.reads | R[0]
        elif op.startswith('buffer_') or op.startswith('global_'):
            self.cls = 'vmem'
            lds = (' lds' in ' ' + mods) or '_lds_' in op
            self.lds = lds
            self.wide_store = False
            if op.startswith('buffer_wbl2') or op.startswith('buffer_inv'):
                pass
            elif 'store' in op:
                self.reads = allr(range(n))
                self.wide_store = 'x4' in op or 'x3' in op
                self.store_data = R[0] if op.startswith('buffer_') else R[1]
            elif 'atomic' in op:
                ret = 'sc0' in mods
                if op.startswith('buffer_'):
                    self.reads = allr(range(n))
                    if ret:
                        self.writes = R[0]
                else:
                    if ret:
                        self.writes = R[0]
                        self.reads = allr(range(1, n))
                    else:
                        self.reads = allr(range(n))
            elif lds:
                self.reads = allr(range(n)) | {('m0', 0)}
            else:
                self.writes = R[0]
                self.reads = allr(range(1, n))
        elif op.startswith('ds_'):
            self.cls = 'ds'
            if op.startswith('ds_write') or op.startswith('ds_add') or op.startswith('ds_max'):
                self.reads = allr(range(n))
            else:
                self.writes = R[0]
                self.reads = allr(range(1, n))
        elif op.startswith('s_'):
            self.cls = 'salu'
            if op in ('s_branch',) or op.startswith('s_cbranch'):
                self.target = ops[0]
                if 'vcc' in op:
                    self.reads = {('vcc', 0)}
                if 'exec' in op:
                    self.reads = {('exec', 0)}
            elif op in ('s_nop', 's_waitcnt', 's_barrier', 's_endpgm', 's_setprio', 's_sleep'):
                pass
            elif op.startswith('s_cmp') or op.startswith('s_bitcmp'):
                self.reads = allr(range(n))
            elif op.startswith('s_load') or op.startswith('s_memtime') or op.startswith('s_memrealtime') \
                    or op.startswith('s_buffer_load'):
                self.cls = 'smem'
                self.writes = R[0]
                self.reads = allr(range(1, n))
            else:
                self.writes = R[0]
                self.reads = allr(range(1, n))
                if 'saveexec' in op:
                    self.writes = self.writes | {('exec', 0)}
        else:
            raise ValueError('unknown instruction: ' + text)

    def states(self):
        if self.cls in ('label', 'empty', 'directive'):
            return 0
        if self.op == 's_nop':
            return int(self.ops[0], 0) + 1
        return 1


def vregs(s):
    return {r for r in s if r[0] in ('v', 'a')}


def sregs(s):
    return {r for r in s if r[0] in ('s', 'vcc')}


def need(p, c):
    n = 0
    pw = p.writes
    if p.cls == 'valu':
        pv = vregs(pw)
        ps = sregs(pw)
        if c.cls == 'mfma' and pv & c.reads:
            n = max(n, 2)
        if c.cls == 'valu':
            if c.base in ('v_permlane32_swap_b32', 'v_permlane16_swap_b32') and pv & c.reads:
                n = max(n, 2)
            if c.dpp and pv & c.reads:
                n = max(n, 2)
            if c.base in ('v_readfirstlane_b32', 'v_readlane_b32') and pv & c.reads:
                n = max(n, 1)
            if p.base in TRANS and c.base not in TRANS and pv & (c.reads | c.writes):
                n = max(n, 1)
            rd = set(c.reads)
            if c.base == 'v_cndmask_b32' and len(c.ops) == 3 and not c.dpp:
                rd.add(('vcc', 0))
            if ps & rd:
                n = max(n, 2)
                if c.base in ('v_readlane_b32', 'v_writelane_b32'):
                    n = max(n, 4)
            if ('exec', 0) in pw:
                n = max(n, 5 if c.dpp else 4)
            if ('sdwa' in p.op or 'op_sel' in p.mods) and pv & (c.reads | c.writes):
                n = max(n, 1)
        if p.base in TRANS and c.cls in ('vmem', 'ds', 'mfma') and pv & c.reads:
            n = max(n, 2 if c.cls == 'mfma' else 1)
        if c.cls == 'vmem' and ps & c.reads:
            n = max(n, 5)
        if c.cls in ('salu', 'smem') and ps & c.reads and c.target is None:
            n = max(n, 1)
        if c.cls == 'mfma' and ('exec', 0) in pw:
            n = max(n, 4)
    if p.cls == 'mfma':
        tabAB = {2: 5, 4: 8, 8: 12}[p.passes]
        tabC = {2: 4, 4: 6, 8: 10}[p.passes]
        if c.cls == 'mfma':
            if pw & c.srcAB:
                n = max(n, tabAB)
            if pw & c.srcC:
                if pw == c.srcC and p.op == c.op:
                    n = max(n, 2 if p.passes == 2 else 0)
                else:
                    n = max(n, tabC)
            elif pw & c.writes:
                n = max(n, tabC)
        elif c.cls in ('valu', 'vmem', 'ds'):
            if pw & (c.reads | c.writes):
                n = max(n, tabAB)
        if c.cls in ('valu', 'vmem', 'ds') and p.srcC & c.writes:
            n = max(n, {2: 1, 4: 3, 8: 7}[p.passes])
    if p.cls == 'vmem' and getattr(p, 'wide_store', False):
        if c.cls in ('valu', 'mfma') and p.store_data & c.writes:
            n = max(n, 2)
        elif c.cls in ('vmem', 'ds') and p.store_data & c.writes:
            n = max(n, 1)
    if p.cls == 'salu' and ('m0', 0) in pw:
        if c.cls == 'vmem' and getattr(c, 'lds', False):
            n = max(n, 1)
    return n


MAXD = 13


class Asm:
    def __init__(self):
        self.ins = []
        self.uid = 0

    def __call__(self, text):
        for line in text.split('\n'):
            line = line.strip()
            if line:
                self.ins.append(Ins(line))

    def label(self, name):
        self.ins.append(Ins(name + ':'))

    def newlabel(self, stem):
        self.uid += 1
        return 'L_%s_%d' % (stem, self.uid)

    def fix_hazards(self, verbose=False):
        total = 0
        start = 0
        while True:
            ins = self.ins
            labels = {x.label: i for i, x in enumerate(ins) if x.label}
            srcs = {}
            for i, x in enumerate(ins):
                if x.target:
                    srcs.setdefault(labels[x.target], []).append(i)

            def preds(i):
                out = []
                if i > 0:
                    p = ins[i - 1]
                    if not (p.op in ('s_branch', 's_endpgm')):
                        out.append(i - 1)
                out += srcs.get(i, [])
                return out
            fixes = []
            for i in range(start, len(ins)):
                c = ins[i]
                if c.cls in ('label', 'empty', 'directive'):
                    continue
                worst = 0
                why = None
                stack = [(p, 0) for p in preds(i)]
                seen = {}
                while stack:
                    j, d = stack.pop()
                    if d >= MAXD:
                        continue
                    if j in seen and seen[j] <= d:
                        continue
                    seen[j] = d
                    p = ins[j]
                    if p.cls not in ('label', 'empty', 'directive'):
                        nn = need(p, c)
                        if nn - d > worst:
                            worst = nn - d
                            why = p.text
                    d2 = d + p.states()
                    for q in preds(j):
                        stack.append((q, d2))
                if worst > 0:
                    fixes.append((i, worst, why))
                    break
            if not fixes:
                break
            i, w, why = fixes[0]
            start = i
            if verbose:
                print('hazard: +%d before "%s" (after "%s")' % (w, ins[i].text, why))
            self.ins.insert(i, Ins('s_nop %d' % (w - 1)))
            total += 1
        return total

    def text(self):
        out = []
        for x in self.ins:
            if x.cls == 'label':
                out.append(x.text)
            else:
                out.append('    ' + x.text)
        return '\n'.join(out) + '\n'


class Regs:
    def __init__(self, kind, lo, hi):
        self.kind = kind
        self.next = lo
        self.hi = hi
        self.names = {}

    def alloc(self, name, n=1, align=None):
        if align is None:
            align = 1 if n == 1 else 2
            if self.kind == 's' and n >= 4:
                align = 4
        a = (self.next + align - 1) // align * align
        if a + n > self.hi:
            raise ValueError('out of %s registers allocating %s' % (self.kind, name))
        self.next = a + n
        self.names[name] = (a, n)
        return R(self.kind, a, n)


class R:
    def __init__(self, kind, base, n):
        self.kind = kind
        self.base = base
        self.n = n

    def __getitem__(self, i):
        if isinstance(i, slice):
            lo = i.start or 0
            hi = self.n if i.stop is None else i.stop
            assert 0 <= lo < hi <= self.n, (lo, hi, self.n)
            return R(self.kind, self.base + lo, hi - lo)
        assert 0 <= i < self.n, (i, self.n)
        return R(self.kind, self.base + i, 1)

    def __str__(self):
        if self.n == 1:
            return '%s%d' % (self.kind, self.base)
        return '%s[%d:%d]' % (self.kind, self.base, self.base + self.n - 1)

    __repr__ = __str__

    def __format__(self, spec):
        return str(self)


class Cnt:
    def __init__(self, a, name, maxv):
        self.a = a
        self.name = name
        self.maxv = maxv
        self.ops = []

    def issue(self, text, tag=None):
        self.a(text)
        self.ops.append(tag)

    def note(self, tag=None, n=1):
        self.ops += [tag] * n

    def count_after(self, tag):
        idx = max(i for i, t in enumerate(self.ops) if t == tag)
        return len(self.ops) - 1 - idx

    def wait(self, tag):
        if tag not in self.ops:
            return
        n = self.count_after(tag)
        self.a('s_waitcnt %s(%d)' % (self.name, min(n, self.maxv)))
        self.ops = self.ops[len(self.ops) - n:] if n else []

    def drain(self):
        self.a('s_waitcnt %s(0)' % self.name)
        self.ops = []
```

```python
KB = 1024
MB = 1024 * 1024
HR = 0
HR_KX = 0
HR_VX = 512 * KB
HR_KM = 1024 * KB
HR_X = 1536 * KB
RSB = 64 * MB
AGB = 65 * MB
AGR = 65 * MB + 256 * KB
PROBE = 65 * MB + 512 * KB
RING_FB = 2 * MB
FLG = 68 * MB
F_XN, F_K, F_V, F_EX, F_O, F_H, F_P4, F_P3, F_END = 0, 16, 48, 80, 144, 176, 208, 248, 264
TIM = 70 * MB
XN = 72 * MB
HH = 76 * MB
OO = 84 * MB
P4 = 104 * MB
P3 = 128 * MB
POISON = 0x80000000
OOB = 0x40000000
D_RBAR, D_QBAR, D_PAR, D_BAIL = 8, 10, 12, 15
NF = 14
```

```python
import math
import struct
from dsl import R, Regs, Cnt
from layout import *

L_KV = 0
L_AG = 32768
L_QX = 37888
L_RM = 41984
L_KX = 41984
L_OX = 47104
L_RING = 49152
NSLOT = 7
SAFE_T = 30.0

SCALE_LOG2E = (128 ** -0.5) * math.log2(math.e)


def f32hex(x):
    return '0x%08x' % struct.unpack('<I', struct.pack('<f', x))[0]


def lane_addr(a, dst, lane, tmp, fields, sterms=(), const=0, stmp=None):
    first = True
    for lo, nb, mul in fields:
        a(f'v_bfe_u32 {tmp}, {lane}, {lo}, {nb}')
        if first:
            a(f'v_mul_u32_u24 {dst}, {mul}, {tmp}')
            first = False
        else:
            a(f'v_mul_u32_u24 {tmp}, {mul}, {tmp}')
            a(f'v_add_u32 {dst}, {dst}, {tmp}')
    if first:
        a(f'v_mov_b32 {dst}, 0')
    for sreg, mul in sterms:
        a(f's_mul_i32 {stmp}, {sreg}, {mul}')
        a(f'v_add_u32 {dst}, {stmp}, {dst}')
    if const:
        a(f'v_add_u32 {dst}, {const}, {dst}')


def gen_R(a, S, cfg, census=None):
    fb = 0 if cfg.get('fast', True) else 1
    LS, LD = 'L_step%d' % fb, 'L_rdone%d' % fb
    rb = fb * RING_FB
    sWS, sH, sJ, sW, sBud = S['ws'], S['h'], S['j'], S['w'], S['budget']
    sr = S['alloc']
    sWt = sr.alloc('wt', 4)
    (sStep, sTag, sXo, sXi, sXp, sRS, sRS1, sRS2, sRSl, sRSl2, sAG, sAGn, sAGp, sRw, sRn, sRi, sMa, sHB, sEx,
     sImp, sImpV, sM0, sFl, sIsRed, sMb, sXb, sRb, sHi, sLo, sExK, sExV) = [sr.alloc('r%d' % i) for i in range(31)]
    sC = sr.alloc('c', 2)
    sChk = sr.alloc('chk', 2)
    sJm = sr.alloc('jm', 2)
    sLow = R('s', 0, 2)
    sEnd = R('s', sRS1.base, 2)
    assert sRS1.base % 2 == 0 and sRS2.base == sRS1.base + 1
    sT0, sT1, sT2, sT3 = S['t0'], S['t1'], S['t2'], S['t3']
    sTm = sr.alloc('tm', 2)
    sTm2 = sr.alloc('tm2', 2)

    stf = '' if cfg.get('fast', True) else ' sc1'
    ntf = ' nt' if cfg.get('nt', True) else ''

    v = Regs('v', 0, 144)
    (vQr1, vIdx, vL16, vX, vD, vXs, vAGst, vRSst, vRSst1, vQw, vQr, vOw, vKV, vKrd, vVrd, vFlo,
     vWl, vWh, vDum, vRSld, vFa, vFl) = [v.alloc('c%d' % i) for i in range(22)]
    vPo = v.alloc('po', 2)
    vCan = vPo[1]
    vT = v.alloc('t', 4)
    rvB = v.alloc('rvB', 2)
    vSp = v.alloc('spare', 2)
    vVm = v.alloc('vm', 4)
    vOne = v.alloc('one', 4)
    vPm = v.alloc('pm', 4)
    assert vOne.base == vVm.base + 4
    vZ = vPm[1]
    vVm1 = R('v', vVm.base + 2, 4)
    mfL = v.alloc('mfL', 20)
    Bt = v.alloc('Bt', 24)
    mfR = v.alloc('mfR', 20)
    aq = v.alloc('aq', 8)
    ak = v.alloc('ak', 8)
    av = v.alloc('av', 8)
    vx = v.alloc('vx', 8)
    rv = v.alloc('rv', 2)
    kp = v.alloc('kp', 2)
    assert Bt.base == mfL.base + 20 and mfR.base == Bt.base + 24
    vSel = vx[4:8]
    kx = R('v', mfL.base, 32)
    rs = kx
    WoT = kx
    qb = R('v', Bt.base + 12, 16)
    ka = R('v', Bt.base + 28, 16)
    wacc = R('v', qb.base, 20)
    Sx = aq
    Sm = ak[4:8]
    kexp = ak[0:4]
    L = ak[0:4]
    P = av[4:8]
    rl = ak[2:4]
    O = aq
    oa = vx
    red = ak[4:8]

    chunks = [('V', b) for b in range(4)] + [('QL', b) for b in range(3)] + [('KL', b) for b in range(3)] + \
             [('QR', b) for b in range(5)] + [('KR', b) for b in range(5)] + [('WO', b) for b in (1, 2, 3)] + \
             [('V', 4), ('QL', 3), ('QL', 4), ('KL', 3), ('KL', 4), ('WO', 4), ('WO', 0)]
    NCH = len(chunks)
    place = {}
    for ci, ch in enumerate(chunks):
        for t in range(2):
            if ci < NCH - NSLOT:
                i = ci * 2 + t
                place[ch + (t,)] = R('a', i * 8, 8) if i < 32 else R('v', 144 + (i - 32) * 8, 8)
            else:
                place[ch + (t,)] = (ci % NSLOT) * 16384 + t * 2048

    def bail(code):
        lab = a.newlabel('ok')
        a(f's_sub_u32 {sBud}, {sBud}, 1')
        a(f's_cbranch_scc0 {lab}')
        a(f's_mov_b32 {sT0}, {code}')
        a('s_branch L_bail')
        a.label(lab)

    lane = aq[0]
    tmp = aq[1]
    t2, t3 = aq[2], aq[3]
    a(f'v_and_b32 {lane}, 63, v0')
    a(f'v_mov_b32 {vZ}, 0')

    def LA(dst, fields, sterms=(), const=0):
        lane_addr(a, dst, lane, tmp, fields, sterms, const, sT0)
    LA(vL16, [(0, 6, 16)])
    LA(vX, [(0, 6, 16)], [(sW, 1024)])
    LA(vD, [(0, 6, 4)], [(sW, 256)], 4096)
    LA(vXs, [(0, 6, 8)], [(sW, 512)])
    a(f'v_and_b32 {t2}, 2, {lane}')
    a(f'v_cmp_ne_u32 vcc, 0, {t2}')
    a(f'v_mov_b32 {t2}, 0x44444444')
    a(f'v_mov_b32 {t3}, 0xeeeeeeee')
    a(f'v_cndmask_b32 {vIdx}, {t2}, {t3}, vcc')
    a(f's_add_u32 {sT1}, {sH}, 16')
    a(f's_cmp_lt_u32 {sH}, 8')
    a(f's_cselect_b32 {sT1}, {sH}, {sT1}')
    a(f's_lshl_b32 {sT2}, {sH}, 1')
    a(f's_add_u32 {sT2}, {sT2}, {sW}')
    a(f's_sub_u32 {sT2}, {sT2}, 40')
    a(f's_cmp_lt_u32 {sH}, 24')
    a(f's_cselect_b32 {sEx}, {sT1}, {sT2}')
    a(f's_cselect_b32 {sT1}, 1, 2')
    a(f's_cmp_lt_u32 {sW}, {sT1}')
    a(f's_cselect_b32 {sIsRed}, 1, 0')
    a(f's_cselect_b32 {sT1}, 0, {OOB}')
    LA(vAGst, [(2, 1, 64), (1, 1, 32), (0, 1, 16), (4, 2, 4)], [(sEx, 128)])
    LA(t3, [(3, 1, 1)], [])
    a(f'v_lshl_add_u32 {t3}, {t3}, 30, {sT1}')
    a(f'v_add_u32 {vAGst}, {t3}, {vAGst}')
    a(f's_lshl_b32 {sEx}, {sEx}, 12')
    LA(vFa, [(0, 1, (F_V - F_K) * 128)])
    LA(vCan, [(0, 5, 32)], [(sW, 1024)])
    LA(t3, [(0, 3, 32)], [(sW, 256)], 4096)
    a(f'v_and_b32 {t2}, 32, {lane}')
    a(f'v_cmp_ne_u32 vcc, 0, {t2}')
    a(f'v_cndmask_b32 {vCan}, {vCan}, {t3}, vcc')
    LA(vRSld, [(1, 1, 512), (4, 2, 128), (2, 2, 32), (0, 1, 16)])
    LA(vOw, [(2, 2, 64), (5, 1, 32), (0, 1, 16), (4, 1, 8), (1, 1, 256)], [(sW, 512)], L_OX)
    LA(t2, [(1, 1, 32)])
    a(f'v_xor_b32 {vOw}, {vOw}, {t2}')
    a(f's_mov_b32 {sLow[0]}, 0x33333333')
    a(f's_mov_b32 {sLow[1]}, 0x33333333')
    for dst, th, rest in ((vRSst1, ([(5, 1, 1)], [(sW, 2)], 0), [(0, 3, 16), (4, 1, 8), (3, 1, 4)]),
                          (vRSst, ([(3, 1, 8), (5, 1, 1)], [(sW, 2)], 8), [(0, 3, 16), (4, 1, 8)])):
        LA(t2, *th)
        a(f'v_add_u32 {t3}, {sH}, {t2}')
        a(f'v_and_b32 {t3}, 31, {t3}')
        LA(dst, rest)
        a(f'v_lshl_add_u32 {dst}, {t2}, 12, {dst}')
        a(f'v_lshl_add_u32 {dst}, {t3}, 7, {dst}')
    LA(t2, [(4, 2, 1)])
    LA(t3, [(2, 2, 1)])
    a(f'v_xor_b32 {t2}, {t2}, {t3}')
    LA(vQw, [(0, 4, 32)], [(sW, 1024)], L_QX)
    a(f'v_lshl_add_u32 {vQw}, {t2}, 3, {vQw}')
    LA(t2, [(0, 2, 1)])
    LA(t3, [(4, 1, 1)])
    a(f'v_xor_b32 {t2}, {t2}, {t3}')
    LA(vQr, [(5, 1, 512), (4, 1, 128), (2, 2, 32)], [], L_QX)
    a(f'v_lshl_add_u32 {vQr}, {t2}, 3, {vQr}')
    a(f'v_xor_b32 {vQr1}, 16, {vQr}')
    LA(vKV, [(0, 6, 16)], [(sW, 2048)])
    LA(vKrd, [(0, 6, 16)])
    LA(vVrd, [(4, 2, 64), (2, 2, 16), (0, 1, 256), (1, 1, 8)], [(sW, 1024)], 8192)
    LA(vWl, [(0, 6, 16)], [(sW, 4096)], L_RING)
    a(f'v_add_u32 {vWh}, 65536, {vWl}')
    LA(t2, [(0, 6, 16)], [(sW, 1024)], L_QX)
    for i in range(4):
        a(f'v_mov_b32 {ak[i]}, 0')
    a(f'ds_write_b128 {t2}, {ak[0:4]}')
    a('s_waitcnt lgkmcnt(0)')
    LA(t2, [], [(sJ, 4096)], (F_EX - F_K) * 128)
    a(f'v_mov_b32 {vFlo}, {OOB}')
    a(f'v_cmp_eq_u32 vcc, 0, {lane}')
    a(f'v_cndmask_b32 {vFlo}, {vFlo}, {t2}, vcc')
    a(f's_cmp_eq_u32 {sW}, 2')
    a(f's_cselect_b32 {sT1}, 0, {OOB}')
    a(f'v_or_b32 {vFlo}, {sT1}, {vFlo}')
    a(f's_lshl_b32 {sMa}, {sW}, 10')
    a(f's_lshl_b32 {sMb}, {sW}, 8')
    a(f's_add_u32 {sMb}, {sMb}, 4096')
    for i in range(4):
        a(f'v_mov_b32 {vOne[i]}, 0x3f803f80')
        a(f'v_mov_b32 {vVm[i]}, 0')
        a(f'v_mov_b32 {vPm[i]}, 0')
    a(f'v_mov_b32 {vPo[0]}, {POISON}')
    a(f'v_and_b32 {t2}, 1, {lane}')
    a(f'v_lshlrev_b32 {t2}, 4, {t2}')
    a(f'v_mov_b32 {tmp}, 0x3f80')
    a(f'v_lshlrev_b32 {vSp[0]}, {t2}, {tmp}')
    a(f's_mov_b32 {sC[0]}, {f32hex(SCALE_LOG2E)}')
    a(f's_mov_b32 {sC[1]}, {f32hex(SCALE_LOG2E)}')
    a(f's_mov_b32 {sHi}, {f32hex(2.0 ** cfg.get("safe", SAFE_T))}')
    a(f's_mov_b32 {sLo}, {f32hex(2.0 ** -cfg.get("safe", SAFE_T))}')
    a(f's_lshl_b32 {sHB}, {sH}, 21')
    a(f's_add_u32 {sHB}, {sHB}, {HR}')
    a(f's_lshl_b32 {sFl}, {sH}, 7')
    a(f's_add_u32 {sFl}, {sFl}, {FLG + F_K * 128}')
    a(f's_add_u32 {sXb}, {sHB}, {HR_X + fb * 131072}')
    a(f's_mov_b32 {sRb}, {AGR + rb}')

    m1 = ak[0:4]
    for i in range(4):
        a(f'v_mov_b32 {m1[i]}, -1')
    a(f's_lshl_b32 {sT2}, {sJ}, 19')
    a(f's_add_u32 {sT2}, {sT2}, {RSB + rb}')
    for slot in range(2):
        a(f's_add_u32 {sT1}, {sT2}, {slot * 163840}')
        a(f'buffer_store_dword {m1[0]}, {vRSst1}, {sWS}, {sT1} offen{stf}')
        a(f'buffer_store_dwordx2 {m1[0:2]}, {vRSst}, {sWS}, {sT1} offen{stf}')
        a(f's_add_u32 {sT1}, {sT1}, 65536')
        a(f'buffer_store_dwordx2 {m1[0:2]}, {vRSst}, {sWS}, {sT1} offen{stf}')
    a(f's_lshl_b32 {sT2}, {sJ}, 16')
    for slot in range(4):
        a(f's_add_u32 {sT1}, {sT2}, {AGB + rb + slot * 8192}')
        a(f'buffer_store_dword {vPo[0]}, {vAGst}, {sWS}, {sT1} offen{stf}')
        for par in range(2):
            a(f's_add_u32 {sT1}, {sT2}, {AGR + rb + slot * 16384 + par * 8192}')
            a(f'buffer_store_dword {vPo[0]}, {vAGst}, {sWS}, {sT1} offen sc1')
    a(f's_lshl_b32 {sT2}, {sJ}, 12')
    a(f's_add_u32 {sT2}, {sT2}, {sXb}')
    for slot in range(8):
        a(f's_add_u32 {sT1}, {sT2}, {slot * 8192}')
        a(f'buffer_store_dwordx2 {vPo[0:2]}, {vXs}, {sWS}, {sT1} offen sc1')

    va = [mfR[i] for i in range(4)]
    vb = [mfR[4 + i] for i in range(4)]
    vra = [mfR[8], mfR[9]]
    vrb = mfR[10]
    vr = mfR[11]
    vc = [mfR[12 + i] for i in range(4)]
    stg = R('v', mfL.base, 16)
    for ip in range(4):
        LA(t2, [(4, 1, 2)], [], ip << 2)
        a(f'v_and_b32 {t3}, 15, {lane}')
        a(f'v_xor_b32 {t2}, {t2}, {t3}')
        LA(va[ip], [(4, 2, 8192)], [(sW, 16 * 8192)], 4 * ip * 8192)
        a(f'v_lshl_add_u32 {va[ip]}, {t2}, 4, {va[ip]}')
        LA(vc[ip], [(4, 2, 8192)], [(sW, 16 * 8192)], (64 * (1 + (ip >> 1)) + 4 * (ip & 1)) * 8192)
        a(f'v_lshl_add_u32 {vc[ip]}, {t2}, 4, {vc[ip]}')
        LA(t2, [(5, 1, 2)], [], 4 * (ip & 1))
        a(f'v_and_b32 {t3}, 7, {lane}')
        a(f'v_xor_b32 {t2}, {t2}, {t3}')
        LA(vb[ip], [(3, 3, 1280)], [(sW, 32 * 1280)], 8 * ip * 1280)
        a(f'v_lshl_add_u32 {vb[ip]}, {t2}, 4, {vb[ip]}')
    rowf = lambda m: [(5, 1, 16 * m), (3, 1, 8 * m), (4, 1, 4 * m), (2, 1, m)]
    LA(t2, [(3, 1, 8), (4, 1, 4), (2, 1, 2)])
    LA(t3, [(1, 1, 1)], [(sW, 4)])
    a(f'v_xor_b32 {t2}, {t2}, {t3}')
    LA(vra[0], rowf(256) + [(0, 1, 8)])
    a(f'v_lshl_add_u32 {vra[0]}, {t2}, 4, {vra[0]}')
    a(f'v_xor_b32 {vra[1]}, 32, {vra[0]}')
    LA(t2, [(3, 1, 4), (4, 1, 2)])
    LA(t3, [(1, 1, 1)], [(sW, 2)])
    a(f'v_xor_b32 {t2}, {t2}, {t3}')
    LA(vrb, rowf(128) + [(0, 1, 8)])
    a(f'v_lshl_add_u32 {vrb}, {t2}, 4, {vrb}')
    sPtr = S['ptrs']
    sAL, sAR, sB0 = sRS, sRS1, sRS2
    a(f's_lshl_b32 {sT1}, {sH}, 8')
    a(f's_mul_i32 {sAL}, {sJ}, {320 * 8192}')
    a(f's_sub_u32 {sAR}, {320 * 8192}, {sAL}')
    a(f's_add_u32 {sAL}, {sAL}, {sT1}')
    a(f's_add_u32 {sAR}, {sAR}, {sT1}')
    a(f's_mul_i32 {sB0}, {sH}, {128 * 1280}')
    a(f's_mul_i32 {sT1}, {sJ}, 640')
    a(f's_add_u32 {sB0}, {sB0}, {sT1}')
    a(f's_lshl_b32 {sM0}, {sW}, 12')
    a(f's_mov_b32 {sWt[2]}, {640 * 4096 * 2}')
    a(f's_mov_b32 {sWt[3]}, 0x20000')
    cur = [None]

    def issue(ci):
        kind, b = chunks[ci]
        mi = {'Q': 0, 'K': 1, 'V': 2, 'W': 3}[kind[0]]
        if cur[0] != mi:
            a(f's_mov_b32 {sWt[0]}, {sPtr[2 * mi]}')
            a(f's_and_b32 {sWt[1]}, {sPtr[2 * mi + 1]}, 0xffff')
            cur[0] = mi
        if mi < 3:
            a(f's_add_u32 {sT0}, {sAR if kind[-1] == "R" else sAL}, {(128 * (max(b - 1, 0) >> 1) + 8 * (max(b - 1, 0) & 1)) * 8192}')
        else:
            a(f's_add_u32 {sT0}, {sB0}, {b * 128}')
        for ip in range(4):
            a(f's_add_u32 m0, {sM0}, {L_RING + (ci % NSLOT) * 16384 + ip * 1024}')
            a(f'buffer_load_dwordx4 {(vb if mi == 3 else vc if b else va)[ip]}, {sWt}, {sT0} offen{ntf} lds')

    for ci in range(NSLOT - 1):
        issue(ci)
    for ci in range(NCH):
        a(f's_waitcnt vmcnt({4 * min(NSLOT - 2, NCH - 1 - ci)})')
        a('s_barrier')
        if ci == 0:
            lab = a.newlabel('arr')
            a(f's_cmp_lg_u32 {sW}, 0')
            a(f's_cbranch_scc1 {lab}')
            a(f'v_mov_b32 {t2}, 1')
            a('s_mov_b64 exec, 1')
            a(f'global_atomic_add {vZ}, {t2}, {S["dbg"]} offset:{4 * (D_RBAR + fb)}')
            a('s_mov_b64 exec, -1')
            a.label(lab)
        if ci + NSLOT - 1 < NCH:
            issue(ci + NSLOT - 1)
        base = L_RING + (ci % NSLOT) * 16384
        kind, b = chunks[ci]
        res = ci >= NCH - NSLOT
        for t in range(2):
            dst = stg[8 * t:8 * t + 8] if res else place[(kind, b, t)]
            if kind != 'WO':
                a(f'v_add_u32 {vr}, {base}, {vra[t]}')
            elif t == 0:
                a(f'v_add_u32 {vr}, {base}, {vrb}')
            for aa in range(4):
                row = 32 * (aa >> 1) + 2 * (aa & 1)
                off = row * 256 if kind != 'WO' else (64 * t + row) * 128
                a(f'ds_read_b64_tr_b16 {dst[2 * aa:2 * aa + 2]}, {vr} offset:{off}')
        a('s_waitcnt lgkmcnt(0)')
        if res:
            a('s_barrier')
            a(f'v_add_u32 {vr}, {(ci % NSLOT) * 16384}, {vWl}')
            for q in range(4):
                a(f'ds_write_b128 {vr}, {stg[4 * q:4 * q + 4]} offset:{q * 1024}')
            a('s_waitcnt lgkmcnt(0)')

    a(f's_mov_b32 {sWt[0]}, {S["mem0"][0]}')
    a(f's_and_b32 {sWt[1]}, {S["mem0"][1]}, 0xffff')
    a(f's_mov_b32 {sWt[2]}, {8 * 1280}')
    LA(t2, [(2, 2, 2560), (0, 1, 1280), (1, 1, 16), (4, 2, 32)])
    a(f's_mul_i32 {sT1}, {sJ}, 640')
    a(f's_sub_u32 {sT2}, 640, {sT1}')
    LA(t3, [(2, 2, 2560), (0, 1, 1280), (1, 1, 128), (4, 2, 32)], [], 128)
    for x, so in ((mfL, sT1), (mfR, sT2)):
        a(f'buffer_load_dwordx4 {x[0:4]}, {t2}, {sWt}, {so} offen')
        for b in range(1, 5):
            a(f'buffer_load_dwordx4 {x[4 * b:4 * b + 4]}, {t3}, {sWt}, {so} offen offset:{256 * ((b - 1) >> 1) + 16 * ((b - 1) & 1)}')
    a('s_waitcnt vmcnt(0)')
    for b in range(5):
        for x in (mfL, mfR):
            a(f'v_max_i32 {x[4 * b]}, {POISON + 1}, {x[4 * b]}')
        a(f'ds_write_b128 {vL16}, {mfL[4 * b:4 * b + 4]} offset:{L_AG + 1024 * b}')
        a(f'ds_write_b128 {vL16}, {mfR[4 * b:4 * b + 4]} offset:{L_RM + 1024 * b}')
        a(f's_lshl_b32 {sRi}, {sJ}, 13')
        a(f's_add_u32 {sRi}, {sRi}, {sXb}')
        a(f's_add_u32 {sRi}, {sRi}, 65536')
        a(f's_add_u32 {sT3}, {sRi}, {1024 * b}')
        a(f'buffer_store_dwordx4 {mfR[4 * b:4 * b + 4]}, {vL16}, {sWS}, {sT3} offen')
    a('s_waitcnt lgkmcnt(0)')
    if census:
        census(t2, t3)
        lab = a.newlabel('par')
        a.label(lab)
        a(f'global_load_dword {t2}, {vZ}, {S["dbg"]} offset:{4 * D_PAR} sc1')
        bail(8)
        a('s_waitcnt vmcnt(0)')
        a(f'v_readfirstlane_b32 {sT1}, {t2}')
        a(f's_cmp_eq_u32 {sT1}, 0')
        a(f's_cbranch_scc1 {lab}')
        a(f's_and_b32 {sT1}, {sT1}, 1')
    else:
        a(f's_mov_b32 {sT1}, {cfg.get("par", 0)}')
    a(f's_lshl_b32 {sT2}, {sT1}, 13')
    a(f's_add_u32 {sRb}, {sRb}, {sT2}')
    a(f's_xor_b32 {sT1}, {sT1}, {sH}')
    a(f's_and_b32 {sT1}, {sT1}, 1')
    a(f's_lshl_b32 {sT1}, {sT1}, 13')
    a(f's_add_u32 {sXb}, {sXb}, {sT1}')
    lab = a.newlabel('kv0')
    a.label(lab)
    a(f'buffer_load_dword {vFl}, {vFa}, {sWS}, {sFl} offen sc1')
    bail(1)
    a('s_waitcnt vmcnt(0)')
    a(f'v_cmp_gt_u32 vcc, 1, {vFl}')
    a(f's_cbranch_vccnz {lab}')
    a(f's_lshl_b32 {sM0}, {sW}, 11')
    a(f's_add_u32 {sImpV}, {sHB}, {HR_VX}')
    a(f's_mov_b32 m0, {sM0}')
    a(f'buffer_load_dwordx4 {vKV}, {sWS}, {sHB} offen sc1 lds')
    a(f'buffer_load_dwordx4 {vKV}, {sWS}, {sHB} offen offset:1024 sc1 lds')
    a(f's_add_u32 m0, {sM0}, 8192')
    a(f'buffer_load_dwordx4 {vKV}, {sWS}, {sImpV} offen sc1 lds')
    a(f'buffer_load_dwordx4 {vKV}, {sWS}, {sImpV} offen offset:1024 sc1 lds')
    lab = a.newlabel('rbar')
    a.label(lab)
    a(f'global_load_dword {t2}, {vZ}, {S["dbg"]} offset:{4 * (D_RBAR + fb)} sc1')
    bail(2)
    a('s_waitcnt vmcnt(0)')
    a(f'v_cmp_gt_u32 vcc, 64, {t2}')
    a(f's_cbranch_vccnz {lab}')
    a('s_barrier')
    for i in range(8):
        a(f'v_mov_b32 {aq[i]}, 0')
        a(f'v_mov_b32 {ak[i]}, 0')
        a(f'v_mov_b32 {av[i]}, 0')
    a(f's_mov_b32 {sStep}, 0')
    a(f's_mov_b32 {sExV}, -1')
    a(f's_mov_b64 {sChk}, -1')
    a(f's_lshl_b32 {sT0}, {sJ}, 18')
    a(f's_add_u32 {sExK}, {sHB}, {HR_KM}')
    a(f's_add_u32 {sExK}, {sExK}, {sT0}')
    a(f's_cmp_eq_u32 {sJ}, 0')
    a(f's_cselect_b64 {sJm}, 0, -1')

    def step_scalars():
        a(f's_bfe_u32 {sTag}, {sStep}, 0x10001')
        a(f's_and_b32 {sT1}, {sStep}, 3')
        a(f's_lshl_b32 {sT0}, {sJ}, 16')
        a(f's_lshl_b32 {sT3}, {sT1}, 13')
        a(f's_add_u32 {sAG}, {sT0}, {sT3}')
        a(f's_add_u32 {sAG}, {sAG}, {AGB + rb}')
        a(f's_xor_b32 {sAGn}, {sAG}, 16384')
        a(f's_add_u32 {sT0}, {sT0}, {sRb}')
        a(f's_lshl_b32 {sT3}, {sT1}, 14')
        a(f's_add_u32 {sRw}, {sT0}, {sT3}')
        a(f's_add_u32 {sRn}, {sT3}, 16384')
        a(f's_and_b32 {sRn}, {sRn}, 65535')
        a(f's_add_u32 {sRn}, {sRn}, {sT0}')
        a(f's_lshl_b32 {sT0}, {sJ}, 12')
        a(f's_add_u32 {sT0}, {sT0}, {sXb}')
        a(f's_add_u32 {sXo}, {sT0}, {sT3}')
        a(f's_xor_b32 {sXi}, {sXo}, 4096')
        a(f's_xor_b32 {sXp}, {sXo}, 32768')
        a(f's_and_b32 {sT0}, {sStep}, 1')
        a(f's_mul_i32 {sT1}, {sT0}, 163840')
        a(f's_lshl_b32 {sT2}, {sJ}, 19')
        a(f's_add_u32 {sT1}, {sT1}, {sT2}')
        a(f's_add_u32 {sRS}, {sT1}, {RSB + rb}')
        a(f's_add_u32 {sRSl}, {sRS}, {sEx}')
        a(f's_add_u32 {sRSl2}, {sRS}, 65536')
        a(f's_add_u32 {sT1}, {sStep}, 1')
        a(f's_min_u32 {sT1}, {sT1}, 63')
        a(f's_lshl_b32 {sT1}, {sT1}, 13')
        a(f's_add_u32 {sImp}, {sHB}, {sT1}')
        a(f's_add_u32 {sImpV}, {sImp}, {HR_VX}')
        a(f's_cmp_eq_u32 {sStep}, 63')
        a(f's_cselect_b64 {sEnd}, -1, 0')
        a(f's_xor_b32 {sT0}, {sT0}, 1')
        a(f's_lshl_b32 {sT0}, {sT0}, 14')
        a(f's_lshl_b32 {sM0}, {sW}, 11')
        a(f's_add_u32 {sM0}, {sM0}, {sT0}')

    NST = 14
    prof = cfg.get('prof')
    sStm0 = sr.alloc('stm', 2 * (NST - 6), align=2) if prof is not None else None
    stm = [sPtr[2 * i:2 * i + 2] for i in range(4)] + [sWt[0:2], sWt[2:4]] + \
          ([sStm0[2 * i:2 * i + 2] for i in range(NST - 6)] if prof is not None else [])

    S['stm'] = stm

    def stamp(i):
        if prof is not None and not cfg.get('at') and i in cfg.get('only', range(NST)):
            a(f's_memrealtime {stm[i]}' if cfg.get('rt') else f's_memtime {stm[i]}')

    def stamp_out():
        if prof is None:
            return
        lab = a.newlabel('so')
        a(f's_cmp_eq_u32 {sStep}, {prof + 1}')
        a(f's_cbranch_scc0 {lab}')
        a('s_waitcnt lgkmcnt(0)')
        a(f's_lshl_b32 {sT1}, {sJ}, 5')
        a(f's_add_u32 {sT1}, {sT1}, {sH}')
        a(f's_lshl_b32 {sT1}, {sT1}, 2')
        a(f's_add_u32 {sT1}, {sT1}, {sW}')
        a(f's_lshl_b32 {sT1}, {sT1}, 7')
        a(f's_add_u32 {sT1}, {sT1}, {TIM + 32}')
        for i in range(NST):
            a(f'v_mov_b32 {vDum}, {stm[i][0]}')
            a(f'buffer_store_dword {vDum}, {vZ}, {sWS}, {sT1} offen offset:{4 * i}')
        a('s_waitcnt vmcnt(0)')
        a.label(lab)
    sCnt = sr.alloc('cnt', 4, align=1) if cfg.get('timing') else None

    def count(i):
        if cfg.get('timing'):
            a(f's_add_u32 {sCnt[i]}, {sCnt[i]}, 1')
    step_scalars()
    a(f's_mov_b32 {sAGp}, {OOB}')
    if cfg.get('timing'):
        for i in range(4):
            a(f's_mov_b32 {sCnt[i]}, 0')
        a(f's_memtime {sTm}')
        a('s_waitcnt lgkmcnt(0)')
    late = []

    def w1ops(issue):
        labw, labo = a.newlabel('w1'), a.newlabel('w1ok')
        ops = []
        if not cfg.get('noimp'):
            ops += [lambda: (a(f's_add_u32 {sT1}, {sStep}, 2'), a(f's_min_u32 {sT1}, {sT1}, 64'),
                             a(f'v_cmp_gt_u32 vcc, {sT1}, {vFl}')),
                    lambda: (a(f's_cbranch_vccnz {labw}'), a.label(labo), a(f's_mov_b32 m0, {sM0}'),
                             issue(f'buffer_load_dwordx4 {vKV}, {sWS}, {sImp} offen sc1 lds')),
                    lambda: (a(f's_mov_b32 m0, {sM0}'),
                             issue(f'buffer_load_dwordx4 {vKV}, {sWS}, {sImp} offen offset:1024 sc1 lds')),
                    lambda: (a(f's_add_u32 m0, {sM0}, 8192'),
                             issue(f'buffer_load_dwordx4 {vKV}, {sWS}, {sImpV} offen sc1 lds')),
                    lambda: (a(f's_add_u32 m0, {sM0}, 8192'),
                             issue(f'buffer_load_dwordx4 {vKV}, {sWS}, {sImpV} offen offset:1024 sc1 lds')),
                    lambda: issue(f'buffer_load_dword {vFl}, {vFa}, {sWS}, {sFl} offen sc1')]
            late.append((labw, labo))
        st = [lambda: issue(f'buffer_store_dwordx2 {vPo}, {vXs}, {sWS}, {sXp} offen sc1'),
              lambda: issue(f'buffer_store_dword {vPo[0]}, {vAGst}, {sWS}, {sRn} offen sc1')]
        if not cfg.get('noexp'):
            st += [lambda: (a(f'v_mov_b32 {vT[1]}, {sStep}'),
                            issue(f'buffer_store_dword {vT[1]}, {vFlo}, {sWS}, {sFl} offen sc1'))]
        ops = st + ops if cfg.get('stfirst', 0) else ops + st
        return ops

    def image(src, dst, can, issue=None, half=None):
        issue = issue or a
        if half != 1:
            issue(f'buffer_load_dword {can}, {vCan}, {sWS}, {src} offen sc1')
            a(f's_add_u32 m0, {sMa}, {dst}')
            issue(f'buffer_load_dwordx4 {vX}, {sWS}, {src} offen sc1 lds')
        if half != 0:
            a(f's_add_u32 m0, {sMb}, {dst}')
            issue(f'buffer_load_dword {vD}, {sWS}, {src} offen sc1 lds')
    a('s_waitcnt vmcnt(0)')
    for b in range(5):
        a(f'ds_read_b128 {mfL[4 * b:4 * b + 4]}, {vL16} offset:{L_AG + 1024 * b}')
    image(sRi, L_RM, rv[0], None, None if cfg.get('early', 0) else 0)

    a.label(LS)
    stamp(0)
    vm = Cnt(a, 'vmcnt', 63)
    ds = Cnt(a, 'lgkmcnt', 15)
    EARLY = cfg.get('early', 0)
    vm.note('R', 3 if EARLY else 2)
    for b in range(5):
        ds.note('L%d' % b)

    def emit(x):
        if callable(x):
            x()
        else:
            a(x)

    def warm(n):
        for _ in range(n):
            a(f'v_mov_b32 {vDum}, 0')

    def wl(off):
        return (vWl, off) if off < 65536 else (vWh, off - 65536)

    def fold(x, t):
        return f'v_pk_add_f32 {x[4 * t:4 * t + 2]}, {x[4 * t:4 * t + 2]}, {x[4 * t + 2:4 * t + 4]}'

    def fold2(x, t, d=None):
        d = x[4 * t:4 * t + 2] if d is None else d
        return [f'v_add_f32 {d[i]}, {x[4 * t + i]}, {x[4 * t + 2 + i]}' for i in range(2)]

    acc = {'V': av, 'QL': aq, 'KL': ak, 'QR': aq, 'KR': ak}
    seq = []
    for kind, order in (('V', [(0, 0), (0, 1), (1, 0), (1, 1), (2, 0), (2, 1), (3, 0), (4, 0), (3, 1), (4, 1)]),
                        ('QL', [(0, 0), (0, 1), (3, 0), (1, 0), (3, 1), (1, 1), (4, 0), (2, 0), (2, 1), (4, 1)]),
                        ('KL', [(0, 0), (3, 0), (0, 1), (1, 0), (3, 1), (1, 1), (4, 0), (2, 0), (4, 1), (2, 1)])):
        seq += [(kind, b, t) for b, t in order]
    ldsops = [i for i, o in enumerate(seq) if isinstance(place[o], int)]
    buf = {i: Bt[8 * (k % 3):8 * (k % 3) + 8] for k, i in enumerate(ldsops)}

    def btload(k, half):
        i = ldsops[k]
        base, off = wl(place[seq[i]] + half * 1024)
        ds.issue(f'ds_read_b128 {buf[i][4 * half:4 * half + 4]}, {base} offset:{off}', 'B%d' % i)
    fill = {i: [] for i in range(len(seq))}
    for k in range(3):
        fill[2 * k] += [lambda k=k: btload(k, 0)]
        fill[2 * k + 1] += [lambda k=k: btload(k, 1)]
    for k in range(3, len(ldsops)):
        p = ldsops[k - 3]
        fill[p] += [lambda k=k: btload(k, 0)]
        fill[p + 1] += [lambda k=k: btload(k, 1)]

    def put(lst, start, per):
        for i, x in enumerate(lst):
            fill[start + i // per].append(x)
    fill[10].append('s_nop 0')
    fill[11].append('s_nop 1')
    put(fold2(av, 0) + fold2(av, 1, av[2:4]) + [f'v_cvt_pk_bf16_f32 {av[4]}, {av[0]}, {av[1]}',
        f'v_cvt_pk_bf16_f32 {av[5]}, {av[2]}, {av[3]}', f'v_max_i32 {av[4]}, {POISON + 1}, {av[4]}',
        lambda: vm.issue(f'buffer_store_dwordx2 {av[4:6]}, {vXs}, {sWS}, {sXo} offen sc1', 'stv')], 12, cfg.get('vper', 4))
    if not EARLY:
        fill[cfg.get('r1pos', 1)].append(lambda: image(sRi, L_RM, None, lambda x: vm.issue(x, 'R'), 1))
    for p in cfg.get('rextra', []):
        fill[p].append(lambda: image(sRi, L_RM, rv[1], lambda x: vm.issue(x, 'R3'), 0))
        fill[p + 2].append(lambda: image(sRi, L_RM, None, lambda x: vm.issue(x, 'R3'), 1))
    rpos = cfg.get('rpos', 27)
    labr, labrj = a.newlabel('rretry'), a.newlabel('rjoin')
    fill[rpos - 2].append(lambda: (vm.wait('R'), a(f'v_cmp_eq_u32 vcc, {vPo[0]}, {rv[0]}')))

    nr3 = []

    def rstage():
        nr3.append(vm.count_after('R3') if 'R3' in vm.ops else None)
        a(f's_cbranch_vccnz {labr}')
        a.label(labrj)
        a('s_barrier')
        stamp(4)
        for b in range(5):
            ds.issue(f'ds_read_b128 {mfR[4 * b:4 * b + 4]}, {vL16} offset:{L_RM + 1024 * b}', 'R%d' % b)
    fill[rpos].append(rstage)
    late_w1 = w1ops(vm.issue)
    for p in cfg.get('w1at', [2, 4, 7, 10, 14, 17, 19, 21, 23]):
        if late_w1:
            fill[p].append(late_w1.pop(0))
    for i, o in enumerate(seq):
        kind, b, t = o
        if kind == 'V':
            ds.wait('L%d' % b)
        if i in buf:
            ds.wait('B%d' % i)
        a(f'v_smfmac_f32_16x16x64_bf16 {acc[kind][4 * t:4 * t + 4]}, {mfL[4 * b:4 * b + 4]}, {buf.get(i, place[o])}, {vIdx}')
        for x in fill[i]:
            emit(x)
        if i == 9:
            stamp(1)
        if i == 19:
            stamp(2)
    stamp(3)
    kq = [('KR', b, t) for b in range(5) for t in range(2)]

    def smf(o, src=mfR):
        kind, b, t = o
        a(f'v_smfmac_f32_16x16x64_bf16 {acc[kind][4 * t:4 * t + 4]}, {src[4 * b:4 * b + 4]}, {place[o]}, {vIdx}')
    ldv = f'buffer_load_dwordx2 {rv}, {vXs}, {sWS}, {sXi} offen sc1'
    ldv2 = f'buffer_load_dwordx2 {rvB}, {vXs}, {sWS}, {sXi} offen sc1'
    kfill = [lambda i=i: ds.issue(f'ds_read_b128 {kx[4 * i:4 * i + 4]}, {vKrd} offset:{1024 * i}', 'kx') for i in range(8)] + \
            [lambda t=t: [ds.issue(f'ds_read_b64_tr_b16 {vx[4 * t + 2 * T:4 * t + 2 * T + 2]}, {vVrd} offset:{4096 * T + 512 * t}', 'vx')
                          for T in range(2)] for t in range(2)]
    for b in range(5):
        ds.wait('R%d' % b)
        smf(('QR', b, 0))
        emit(kfill.pop(0))
        smf(('QR', b, 1))
        emit(kfill.pop(0))
        if b < 4:
            for _ in range(cfg.get('kint', 0)):
                if kq[0][1] <= b:
                    smf(kq.pop(0))
        if b == cfg.get('ldvpos', 4):
            vm.issue(ldv, 'ldv')
        if b == cfg.get('ldvpos2', 5):
            vm.issue(ldv2, 'ldv2')
        if late_w1 and b in cfg.get('w1q', []):
            emit(late_w1.pop(0))
    stamp(5)
    qep = fold2(aq, 0) + fold2(aq, 1) + [f'v_cvt_pk_bf16_f32 {aq[0]}, {aq[0]}, {aq[1]}', f'v_cvt_pk_bf16_f32 {aq[1]}, {aq[4]}, {aq[5]}']
    kep = fold2(ak, 0) + fold2(ak, 1) + \
        [f'v_cvt_pk_bf16_f32 {kp[0]}, {ak[0]}, {ak[1]}', f'v_cvt_pk_bf16_f32 {kp[1]}, {ak[4]}, {ak[5]}']

    def smx(t, u):
        c = '0' if u == 0 else str(Sx[4 * t:4 * t + 4])
        a(f'v_mfma_f32_16x16x32_bf16 {Sx[4 * t:4 * t + 4]}, {kx[(t * 4 + u) * 4:(t * 4 + u) * 4 + 4]}, {qb[4 * u:4 * u + 4]}, {c}')

    def smm(u):
        c = '0' if u == 0 else str(Sm)
        a(f'v_mfma_f32_16x16x32_bf16 {Sm}, {ka[4 * u:4 * u + 4]}, {qb[4 * u:4 * u + 4]}, {c}')

    def qread(u):
        for aa in range(2):
            ds.issue(f'ds_read_b64_tr_b16 {qb[4 * u + 2 * aa:4 * u + 2 * aa + 2]}, {(vQr, vQr1)[aa]} offset:{u * 1024 + aa * 256}', 'q%d' % u)

    def kread(u):
        for aa in range(2):
            ds.issue(f'ds_read_b64_tr_b16 {ka[4 * u + 2 * aa:4 * u + 2 * aa + 2]}, {(vQr, vQr1)[aa]} offset:{4096 + u * 1024 + aa * 256}', 'k%d' % u)

    def wot1(i):
        b, bb = ((4, 0), (4, 1), (0, 0), (0, 1))[i // 2]
        base, off = wl(place[('WO', b, bb)] + (i & 1) * 1024)
        ds.issue(f'ds_read_b128 {WoT[4 * i:4 * i + 4]}, {base} offset:{off}', 'wo%d' % (i // 2))

    def knext(pad=None):
        if kq:
            smf(kq.pop(0))
        elif pad:
            warm(pad)
    knext()
    if late_w1:
        emit(late_w1.pop(0))
    knext()
    for x in qep:
        a(x)
    ds.issue(f'ds_write2_b32 {vQw}, {aq[0]}, {aq[1]} offset0:0 offset1:128', 'qw')
    knext(4)
    if cfg.get('ldvpos2', 5) == 5:
        vm.issue(ldv2, 'ldv2')
    knext(4)
    if not cfg.get('noimp'):
        a(f'v_xor_b32 {vKrd}, 16384, {vKrd}')
    knext(4)
    if late_w1:
        emit(late_w1.pop(0))
    knext(4)
    if not cfg.get('noimp'):
        a(f'v_xor_b32 {vVrd}, 16384, {vVrd}')
    while len(kq) > cfg.get('kleft', 4):
        knext()
    vm.wait('R3')
    ds.wait('qw')
    a('s_barrier')
    assert not any(o[1] == 0 for o in kq)
    for u in range(4):
        qread(u)
        knext(3)
        if u == 2 and late_w1:
            emit(late_w1.pop(0))
    assert not kq
    stamp(6)
    e0 = [f'v_exp_f32 {Sx[i]}, {Sx[i]}' for i in range(4)] + \
         [f'v_cvt_pk_bf16_f32 {P[0]}, {Sx[0]}, {Sx[1]}', f'v_cvt_pk_bf16_f32 {P[1]}, {Sx[2]}, {Sx[3]}']
    e1 = [f'v_exp_f32 {Sx[i]}, {Sx[i]}' for i in range(4, 8)] + \
         [f'v_cvt_pk_bf16_f32 {P[2]}, {Sx[4]}, {Sx[5]}', f'v_cvt_pk_bf16_f32 {P[3]}, {Sx[6]}, {Sx[7]}']
    for u in range(4):
        ds.wait('q%d' % u)
        smx(0, u)
        if u == 1 and late_w1:
            emit(late_w1.pop(0))
        if u >= 2:
            for x in kep[3 * u - 6:3 * u - 3]:
                a(x)
    ds.issue(f'ds_write2st64_b32 {vQw}, {kp[0]}, {kp[1]} offset0:16 offset1:18', 'kw')
    for u in range(4):
        smx(1, u)
        if u in (0, 3) and late_w1:
            emit(late_w1.pop(0))
        a(e0[u])
    assert not late_w1
    a(e0[4])
    a(e0[5])
    ds.wait('kw')
    a('s_barrier')
    for u in range(4):
        kread(u)
        a(e1[u])
    for u in range(4):
        ds.wait('k%d' % u)
        smm(u)
        if u < 2:
            a(e1[4 + u])
    stamp(7)
    a(f'v_mfma_f32_16x16x32_bf16 {O[0:4]}, {vx[0:4]}, {P}, 0')
    a(f'v_mfma_f32_16x16x32_bf16 {O[4:8]}, {vx[4:8]}, {P}, 0')
    a(f'v_mfma_f32_16x16x32_bf16 {L}, {P}, {vOne}, 0')
    labv, labvr = a.newlabel('v'), a.newlabel('vretry')
    nv2 = vm.count_after('ldv2')
    vm.wait('ldv')
    a.label(labv)
    a(f'v_cmp_eq_u32 vcc, {vPo[0]}, {rv[0]}')
    a(f'v_lshlrev_b32 {vT[0]}, 16, {rv[0]}')
    a(f'v_and_b32 {vT[1]}, 0xffff0000, {rv[0]}')
    a(f'v_lshlrev_b32 {vT[2]}, 16, {rv[1]}')
    a(f'v_and_b32 {vT[3]}, 0xffff0000, {rv[1]}')
    a(f's_cbranch_vccnz {labvr}')
    stamp(8)
    a(f'v_mul_f32 {Sm[0]}, {sC[0]}, {Sm[0]}')
    a(f'v_mul_f32 {Sm[1]}, {sC[0]}, {Sm[1]}')
    a(f'v_exp_f32 {Sm[0]}, {Sm[0]}')
    a(f'v_exp_f32 {Sm[1]}, {Sm[1]}')
    for i in range(4):
        a(f'v_add_f32 {vT[i]}, {vT[i]}, {av[i]}')
    a(f'v_cvt_pk_bf16_f32 {vPm[0]}, {Sm[0]}, {Sm[1]}')
    a(f'v_cvt_pk_bf16_f32 {vVm[0]}, {vT[0]}, {vT[1]}')
    a(f'v_cvt_pk_bf16_f32 {vVm[2]}, {vT[2]}, {vT[3]}')
    labs, labj = a.newlabel('slowsm'), a.newlabel('smjoin')
    if not cfg.get('noexp'):
        a(f'v_cndmask_b32 {vT[0]}, {kp[0]}, {vVm[0]}, {sJm}')
    a.label(labj)
    a(f'v_mfma_f32_16x16x32_bf16 {O[0:4]}, {vVm}, {vPm}, {O[0:4]}')
    if not cfg.get('noexp'):
        a(f'v_cndmask_b32 {vT[1]}, {kp[1]}, {vVm[2]}, {sJm}')
    a(f'v_mfma_f32_16x16x32_bf16 {O[4:8]}, {vVm1}, {vPm}, {O[4:8]}')
    if not cfg.get('noexp'):
        a(f'buffer_store_dwordx2 {vT[0:2]}, {vXs}, {sWS}, {sExK} offen sc1')
    zB = R('v', vPm.base + 2, 4)
    a(f's_mov_b64 vcc, {sLow}')
    a(f'v_bfe_u32 {vDum}, {vL16}, 8, 1')
    a(f'v_lshl_or_b32 {vDum}, {vDum}, 5, {vZ}')
    a(f'v_xor_b32 {vDum}, {vDum}, {vL16}')
    a(f'v_cvt_pk_bf16_f32 {O[0]}, {O[0]}, {O[1]}')
    a(f'v_cvt_pk_bf16_f32 {O[1]}, {O[2]}, {O[3]}')
    a(f'v_cvt_pk_bf16_f32 {O[2]}, {O[4]}, {O[5]}')
    a(f'v_cvt_pk_bf16_f32 {O[3]}, {O[6]}, {O[7]}')
    a(f'v_mfma_f32_16x16x32_bf16 {L}, {vPm}, {vOne}, {L}')
    for i in range(2):
        a(f'v_cndmask_b32_dpp {O[i]}, {O[2 + i]}, {O[i]}, vcc quad_perm:[0,1,0,1] row_mask:0xf bank_mask:0xf')
    ds.issue(f'ds_write_b64 {vOw}, {O[0:2]}', 'ow')
    stamp(9)
    a(f'v_mfma_f32_16x16x32_bf16 {wacc[16:20]}, {vPm}, {zB}, 0')
    a(f'v_mfma_f32_32x32x16_bf16 {wacc[0:16]}, {vPm}, {zB}, 0')
    a(f'v_max_f32 {vT[2]}, {L[0]}, {L[1]}')
    a(f'v_min_f32 {vT[3]}, {L[0]}, {L[1]}')
    a(f'v_cmp_nge_f32 vcc, {sHi}, {vT[2]}')
    a(f'v_cmp_nle_f32 {sTm2}, {sLo}, {vT[3]}')
    a(f'v_rcp_f32 {rl[0]}, {L[0]}')
    a(f'v_rcp_f32 {rl[1]}, {L[1]}')

    def idle():
        a(f'v_mfma_f32_16x16x32_bf16 {Sm}, {vOne}, {vOne}, {Sm}')
    a(f's_or_b64 vcc, vcc, {sTm2}')
    a(f's_and_b64 vcc, vcc, {sChk}')
    a(f's_or_b64 vcc, vcc, {sEnd}')
    for _ in range(cfg.get('idle1', 1)):
        idle()
    ds.wait('ow')
    a('s_barrier')
    ds.issue(f'ds_read_b128 {oa[0:4]}, {vDum} offset:{L_OX}', 'o0')
    ds.issue(f'ds_read_b128 {oa[4:8]}, {vDum} offset:{L_OX + 1024}', 'o1')
    idle()
    a(f's_cbranch_vccnz {labs}')
    for i in range(cfg.get('idle2', 2)):
        idle()
        wot1(i)
    wn = cfg.get('idle2', 2)
    a(f's_mov_b64 {sChk}, -1')
    stamp(10)

    W = [wacc[4 * b:4 * b + 4] for b in range(5)]

    def fin(b, dst, packed=False):
        if packed:
            return [fold(W[b], 0), f'v_pk_mul_f32 {W[b][0:2]}, {W[b][0:2]}, {rl}', f'v_cvt_pk_bf16_f32 {dst}, {W[b][0]}, {W[b][1]}']
        return fold2(W[b], 0) + [f'v_mul_f32 {W[b][i]}, {W[b][i]}, {rl[i]}' for i in range(2)] + \
            [f'v_cvt_pk_bf16_f32 {dst}, {W[b][0]}, {W[b][1]}']

    def tag(x):
        return f'v_and_or_b32 {x}, {x}, -2, {sTag}'
    fw = {k: [] for k in range(10)}
    e = fin(1, vT[0]) + [tag(vT[0])] + fin(2, vT[1]) + [f'buffer_store_dwordx2 {vT[0:2]}, {vRSst}, {sWS}, {sRS} offen{stf}'] + \
        fin(3, vT[2]) + [tag(vT[2])]
    rest = [lambda i=i: wot1(i) for i in range(wn, 8)]
    for k in range(4):
        fw[k] = rest[:2 if k >= 2 else 1]
        rest = rest[len(fw[k]):]
    assert not rest
    for k, n in ((3, 1), (4, 2), (5, 3), (6, 3), (7, 3), (8, 3), (9, 3)):
        fw[k] += e[:n]
        e = e[n:]
    tail = e + fin(4, vT[3]) + [f'buffer_store_dwordx2 {vT[2:4]}, {vRSst}, {sWS}, {sRSl2} offen{stf}'] + \
        fin(0, vT[0], True) + [tag(vT[0]), f'buffer_store_dword {vT[0]}, {vRSst1}, {sWS}, {sRS} offen{stf}']
    k = 0
    for b in (1, 2, 3, 4, 0):
        for bb in range(2):
            ds.wait('o%d' % bb)
            wop = place[('WO', b, bb)] if b in (1, 2, 3) else WoT[8 * (2 * (b == 0) + bb):8 * (2 * (b == 0) + bb) + 8]
            if b in (4, 0):
                ds.wait('wo%d' % (2 * (b == 0) + bb))
            a(f'v_smfmac_f32_16x16x64_bf16 {W[b]}, {oa[4 * bb:4 * bb + 4]}, {wop}, {vIdx}')
            for x in fw[k]:
                emit(x)
            k += 1
    for x in tail:
        a(x)
    stamp(11)
    ND = cfg.get('rsdepth', 2)
    labl, labd, labn = a.newlabel('rsl'), a.newlabel('rsd'), a.newlabel('nored')
    a(f's_mov_b32 {sAGp}, {sAG}')
    a(f's_xor_b32 {sRi}, {sRw}, 0x10000')
    zs = [f'v_mov_b32 {x[i]}, 0' for x in (av, aq) for i in range(8)] + [f'v_mov_b32 {ak[i]}, 0' for i in range(4)]

    big = R('v', mfL.base, 64)
    sets = [big[16 * i:16 * i + 16] for i in range(ND)]
    cans = [vx[0], vx[1], vx[2], vx[3]]
    mk = []
    for i in range(4):
        m8 = 3 << (2 * i)
        m32 = m8 * 0x01010101
        mk += [f's_mov_b32 vcc_lo, {m32:#x}', f's_mov_b32 vcc_hi, {m32:#x}', f'v_cndmask_b32 {vSel[i]}, {vZ}, {vSp[0]}, vcc']

    def rsload(i):
        for jj in range(4):
            a(f'buffer_load_dwordx4 {sets[i][4 * jj:4 * jj + 4]}, {vRSld}, {sWS}, {sRSl} offen offset:{jj * 1024} sc1')
    nz0 = cfg.get('rsdelay', 48)
    for x in zs[:nz0]:
        a(x)
    labz = a.newlabel('zrest')
    a(f's_cmp_eq_u32 {sIsRed}, 0')
    a(f's_cbranch_scc1 {labz}')
    for x in mk:
        a(x)
    warm(max(0, nz0 - len(zs) - len(mk)))
    for i in range(ND - 1):
        rsload(i)
        g = cfg.get('rsgap', 16)
        for x in zs[nz0:][:g]:
            a(x)
        warm(g - len(zs[nz0:][:g]))
        nz0 += g
    for x in zs[nz0:]:
        a(x)
    a.label(labl)
    for i in range(ND):
        rsload((i + ND - 1) % ND)
        d = sets[i]
        for jj in range(4):
            a(f's_waitcnt vmcnt({4 * ND - 1 - jj})')
            a(f'v_mfma_f32_16x16x32_bf16 {red}, {d[4 * jj:4 * jj + 4]}, {vSel}, {"0" if jj == 0 else red}')
            if jj == 1:
                a(f'v_bitop3_b32 {vT[0]}, {d[0]}, {d[4]}, {sTag} bitop3:0x7e')
            if jj == 3:
                a(f'v_bitop3_b32 {vT[1]}, {d[8]}, {d[12]}, {sTag} bitop3:0x7e')
        a(f'v_bitop3_b32 {vT[0]}, {vT[0]}, {vT[1]}, 1 bitop3:0xa8')
        a(f'v_cmp_ne_u32 vcc, 0, {vT[0]}')
        count(0)
        a(f's_cbranch_vccz {labd}')
    bail(4)
    a(f's_branch {labl}')
    a.label(labd)
    a(f'v_pk_add_f32 {red[0:2]}, {red[0:2]}, {red[2:4]}')
    a(f'v_cvt_pk_bf16_f32 {vT[2]}, {red[0]}, {red[1]}')
    a(f'v_max_i32 {vT[2]}, {POISON + 1}, {vT[2]}')
    a(f'buffer_store_dword {vT[2]}, {vAGst}, {sWS}, {sRw} offen sc1')
    a(f'buffer_store_dword {vT[2]}, {vAGst}, {sWS}, {sAG} offen{stf}')
    a(f'buffer_store_dword {vPo[0]}, {vAGst}, {sWS}, {sAGn} offen{stf}')
    a.label(labn)
    a('s_barrier')
    stamp(12)
    for i in range(4, 8):
        a(f'v_mov_b32 {ak[i]}, 0')
    marks = []
    n0 = len(a.ins)
    a(f's_add_u32 {sStep}, {sStep}, 1')
    a(f's_add_u32 {sExK}, {sExK}, 2048')
    step_scalars()
    sc = a.ins[n0:]
    del a.ins[n0:]
    k = min(cfg.get('cut', 30), len(sc))
    while k < len(sc) and sc[k].op.startswith('s_cselect'):
        k += 1
    a.ins += sc[:k]
    warm(cfg.get('cutwarm', 10))
    image(sAGp, L_AG, vx[0])
    a.ins += sc[k:]
    nafter = 0
    if EARLY:
        warm(cfg.get('rwarm', 0))
        a('s_barrier')
        image(sRi, L_RM, rv[0])
        nafter = 3
    labk, labsp = a.newlabel('lok'), a.newlabel('lspin')
    a(f's_waitcnt vmcnt({nafter})')
    a(f'v_cmp_eq_u32 vcc, {vPo[0]}, {vx[0]}')
    a(f's_cbranch_vccnz {labsp}')
    a.label(labk)
    a('s_barrier')
    stamp(13)
    for b in range(5):
        a(f'ds_read_b128 {mfL[4 * b:4 * b + 4]}, {vL16} offset:{L_AG + 1024 * b}')
    if not EARLY:
        image(sRi, L_RM, rv[0], None, 0)
    stamp_out()
    a(f's_branch {LS}')
    a.label(labz)
    for x in zs[cfg.get('rsdelay', 48):]:
        a(x)
    a(f's_branch {labn}')

    def spin(lab, back, src, dst, cans, code, cnt, first, after=None, pre=None):
        a.label(lab)
        lp, out = a.newlabel('sp'), a.newlabel('spo')
        if pre is not None:
            a(f's_waitcnt vmcnt({pre})')
            a(f'v_cmp_eq_u32 vcc, {vPo[0]}, {cans[1]}')
            a(f's_cbranch_vccz {back}')
        if first:
            image(src, dst, cans[1])
        a.label(lp)
        for i in (1, 0):
            count(cnt)
            image(src, dst, cans[1 - i])
            a('s_waitcnt vmcnt(3)')
            a(f'v_cmp_eq_u32 vcc, {vPo[0]}, {cans[i]}')
            a(f's_cbranch_vccz {out}')
        bail(code)
        a(f's_branch {lp}')
        a.label(out)
        if after:
            a(after)
        a(f's_branch {back}')
    NR3 = nr3[0]
    spin(labsp, labk, sAGp, L_AG, [vx[0], vx[1]], 5, 3, True)
    spin(labr, labrj, sRi, L_RM, [rv[0], rv[1]], 6, 1, True, 's_waitcnt vmcnt(0)', NR3)

    for labw, labo in late:
        a.label(labw)
        a(f'buffer_load_dword {vFl}, {vFa}, {sWS}, {sFl} offen sc1')
        bail(3)
        a('s_waitcnt vmcnt(0)')
        a(f'v_cmp_gt_u32 vcc, {sT1}, {vFl}')
        a(f's_cbranch_vccnz {labw}')
        a(f's_branch {labo}')
    a.label(labvr)
    labv2 = a.newlabel('vr2')
    a(f's_waitcnt vmcnt({nv2})')
    a(f'v_mov_b32 {rv[0]}, {rvB[0]}')
    a(f'v_mov_b32 {rv[1]}, {rvB[1]}')
    a(f'v_cmp_eq_u32 vcc, {vPo[0]}, {rvB[0]}')
    a(f's_cbranch_vccz {labv}')
    a.label(labv2)
    a(ldv)
    bail(7)
    count(2)
    a('s_waitcnt vmcnt(0)')
    a(f'v_cmp_eq_u32 vcc, {vPo[0]}, {rv[0]}')
    a(f's_cbranch_vccnz {labv2}')
    a(f's_branch {labv}')
    a.label(labs)
    a(f's_cmp_eq_u32 {sStep}, 63')
    a(f's_cbranch_scc1 {LD}')
    count(3)
    a(f's_mov_b64 {sChk}, 0')
    a('s_waitcnt lgkmcnt(0)')
    a('s_barrier')
    a(f'v_xor_b32 {vT[2]}, 16384, {vKrd}' if not cfg.get('noimp') else f'v_mov_b32 {vT[2]}, {vKrd}')
    a(f'v_xor_b32 {vT[3]}, 16384, {vVrd}' if not cfg.get('noimp') else f'v_mov_b32 {vT[3]}, {vVrd}')
    for i in range(8):
        a(f'ds_read_b128 {kx[4 * i:4 * i + 4]}, {vT[2]} offset:{1024 * i}')
    for t in range(2):
        for T in range(2):
            a(f'ds_read_b64_tr_b16 {vx[4 * t + 2 * T:4 * t + 2 * T + 2]}, {vT[3]} offset:{4096 * T + 512 * t}')
    a('s_waitcnt lgkmcnt(0)')
    for u in range(4):
        qread(u)
        kread(u)
        a('s_waitcnt lgkmcnt(0)')
    for t in range(2):
        for u in range(4):
            smx(t, u)
    for u in range(4):
        smm(u)
    vals = [Sx[i] for i in range(8)] + [Sm[0], Sm[1]]
    a(f'v_mul_f32 {Sm[0]}, {sC[0]}, {Sm[0]}')
    a(f'v_mul_f32 {Sm[1]}, {sC[0]}, {Sm[1]}')
    m = vT[2]
    a(f'v_max3_f32 {m}, {vals[0]}, {vals[1]}, {vals[2]}')
    for i in range(3, 9, 2):
        a(f'v_max3_f32 {m}, {m}, {vals[i]}, {vals[i + 1]}')
    a(f'v_max_f32 {m}, {m}, {vals[9]}')
    a(f'v_mov_b32 {vT[3]}, {m}')
    a(f'v_permlane32_swap_b32 {vT[3]}, {m}')
    a(f'v_max_f32 {m}, {m}, {vT[3]}')
    a(f'v_mov_b32 {vT[3]}, {m}')
    a(f'v_permlane16_swap_b32 {vT[3]}, {m}')
    a(f'v_max_f32 {m}, {m}, {vT[3]}')
    for x in vals:
        a(f'v_sub_f32 {x}, {x}, {m}')
        a(f'v_exp_f32 {x}, {x}')
    for k in range(4):
        a(f'v_cvt_pk_bf16_f32 {P[k]}, {Sx[2 * k]}, {Sx[2 * k + 1]}')
    a(f'v_cvt_pk_bf16_f32 {vPm[0]}, {Sm[0]}, {Sm[1]}')
    a(f'v_mfma_f32_16x16x32_bf16 {O[0:4]}, {vx[0:4]}, {P}, 0')
    a(f'v_mfma_f32_16x16x32_bf16 {O[4:8]}, {vx[4:8]}, {P}, 0')
    a(f'v_mfma_f32_16x16x32_bf16 {L}, {P}, {vOne}, 0')
    a(f's_branch {labj}')
    a.label(LD)
    a('s_waitcnt vmcnt(0)')
    a(f'v_mov_b32 {vT[0]}, 64')
    a(f'buffer_store_dword {vT[0]}, {vFlo}, {sWS}, {sFl} offen sc1')
    if cfg.get('timing'):
        a(f's_memtime {sTm2}')
        a('s_waitcnt lgkmcnt(0)')
        a(f's_sub_u32 {sT0}, {sTm2[0]}, {sTm[0]}')
        a(f's_lshl_b32 {sT1}, {sJ}, 5')
        a(f's_add_u32 {sT1}, {sT1}, {sH}')
        a(f's_lshl_b32 {sT1}, {sT1}, 2')
        a(f's_add_u32 {sT1}, {sT1}, {sW}')
        a(f's_lshl_b32 {sT1}, {sT1}, 7')
        a(f's_add_u32 {sT1}, {sT1}, {TIM}')
        outs = [sT0, sBud] + [sCnt[i] for i in range(4)]
        for i, x in enumerate(outs):
            a(f'v_mov_b32 {vT[0]}, {x}')
            a(f'buffer_store_dword {vT[0]}, {vZ}, {sWS}, {sT1} offen offset:{4 * i}')
    a('s_endpgm')
```

```python
import math
from dsl import R, Regs, Cnt
from layout import *
from role_r2 import lane_addr, f32hex, SCALE_LOG2E

MF32 = 'v_mfma_f32_32x32x16_bf16'
MF16 = 'v_mfma_f32_16x16x32_bf16'
LOG2E = math.log2(math.e)


class Ctx:
    def __init__(self, a, S, cfg, name):
        self.a, self.S, self.cfg, self.name = a, S, cfg, name
        self.sr = Regs('s', S['free'], 102)
        self.v = Regs('v', 1, 256)
        self.lane = self.v.alloc('lane')
        self.tmp = self.v.alloc('tmp')
        self.vZ = self.v.alloc('z')
        self.vLin = self.v.alloc('lin')
        self.t = self.v.alloc('t', 4)
        a(f'v_and_b32 {self.lane}, 63, v0')
        a(f'v_mov_b32 {self.vZ}, 0')
        a(f'v_lshlrev_b32 {self.vLin}, 4, {self.lane}')

    def LA(self, dst, fields, sterms=(), const=0):
        lane_addr(self.a, dst, self.lane, self.tmp, fields, sterms, const, self.S['t0'])

    def bail(self, code):
        a, S = self.a, self.S
        lab = a.newlabel('ok')
        a(f's_sub_u32 {S["budget"]}, {S["budget"]}, 1')
        a(f's_cbranch_scc0 {lab}')
        a(f's_mov_b32 {S["t0"]}, {code}')
        a('s_branch L_bail')
        a.label(lab)

    def srd(self, dst, ptr, nbytes):
        a = self.a
        a(f's_mov_b32 {dst[0]}, {ptr[0]}')
        a(f's_and_b32 {dst[1]}, {ptr[1]}, 0xffff')
        a(f's_mov_b32 {dst[2]}, {nbytes}')
        a(f's_mov_b32 {dst[3]}, 0x20000')

    def own_word(self, dst, line_sreg, base_line):
        a, S = self.a, self.S
        self.LA(dst, [], [(line_sreg, 128)], FLG + base_line * 128)
        a(f'v_mov_b32 {self.t[0]}, {OOB}')
        a('v_cmp_eq_u32 vcc, 0, v0')
        a(f'v_cndmask_b32 {dst}, {self.t[0]}, {dst}, vcc')

    def spin_flags(self, vFl, vFo, sFo, sNeed, code):
        a = self.a
        lab = a.newlabel('fl')
        a.label(lab)
        a(f'buffer_load_dword {vFl}, {vFo}, {self.S["ws"]}, {sFo} offen sc1')
        self.bail(code)
        a('s_waitcnt vmcnt(0)')
        a(f'v_cmp_gt_u32 vcc, {sNeed}, {vFl}')
        a(f's_cbranch_vccnz {lab}')

    def load_weights(self, nch, issue, rowbytes, rows, between=None):
        a = self.a
        for ci in range(nch):
            issue(ci)
        nlater = 0
        for ci in range(nch):
            a(f's_waitcnt vmcnt({4 * (nch - 1 - ci) + nlater})')
            a('s_barrier')
            if between:
                nlater += between(ci)
            a(f'v_add_u32 {self.t[0]}, {ci * 16384}, {self.vR}')
            for ks in range(4):
                for aa in range(2):
                    r = 16 * ci + 4 * ks + 2 * aa
                    a(f'ds_read_b64_tr_b16 a[{r}:{r + 1}], {self.t[0]} offset:{rows(ks, aa) * rowbytes}')
            a('s_waitcnt lgkmcnt(0)')
        a('s_barrier')

    def plain_weights(self, ptr, nbytes, pitch, sBase, nch, rows, lanerow, between=None):
        a, S = self.a, self.S
        sWt = self.sr.alloc('wt', 4)
        sM = self.sr.alloc('wm')
        vA = self.v.alloc('wa')
        self.vR = self.v.alloc('wr')
        self.srd(sWt, ptr, nbytes)
        self.LA(self.t[1], [(4, 2, 4)])
        self.LA(self.t[2], [(0, 4, 1)])
        a(f'v_xor_b32 {self.t[1]}, {self.t[1]}, {self.t[2]}')
        self.LA(vA, [(4, 2, pitch)], [(S['w'], 16 * pitch)])
        a(f'v_lshl_add_u32 {vA}, {self.t[1]}, 4, {vA}')
        self.LA(self.t[1], [(2, 2, 4)])
        self.LA(self.t[2], [(4, 1, 2), (1, 1, 1)], [(S['w'], 4)])
        a(f'v_xor_b32 {self.t[1]}, {self.t[1]}, {self.t[2]}')
        self.LA(self.vR, [(2, 2, 256), (5, 1, lanerow * 256), (0, 1, 8)])
        a(f'v_lshl_add_u32 {self.vR}, {self.t[1]}, 4, {self.vR}')
        a(f's_lshl_b32 {sM}, {S["w"]}, 12')
        ntf = ' nt' if self.cfg.get('nt', True) else ''

        def issue(ci):
            for ip in range(4):
                a(f's_add_u32 {S["t1"]}, {sBase}, {(64 * ci + 4 * ip) * pitch}')
                a(f's_add_u32 m0, {sM}, {ci * 16384 + ip * 1024}')
                a(f'buffer_load_dwordx4 {vA}, {sWt}, {S["t1"]} offen{ntf} lds')
        self.load_weights(nch, issue, 256, rows, between)


def tile_dma(c, nk, vSrc, sSrc, sDst):
    a, S = c.a, c.S
    ops = []
    for i in range(nk // 4):
        def op(i=i):
            if i % 4 == 0:
                a(f's_add_u32 {S["t2"]}, {sSrc}, {4096 * (i // 4)}')
            a(f's_add_u32 m0, {sDst}, {4096 * (i // 4)}')
            return f'buffer_load_dwordx4 {vSrc}, {S["ws"]}, {S["t2"]} offen offset:{1024 * (i % 4)} sc1 lds'
        ops.append(op)
    return ops


def mfma_loop(c, nk, acc, xf, vRd, fill, w_is_a=True, ds=None):
    a = c.a
    ds = ds or Cnt(a, 'lgkmcnt', 15)
    D = len(xf)
    for k in range(min(D - 1, nk)):
        ds.issue(f'ds_read_b128 {xf[k % D]}, {vRd} offset:{1024 * k}', 'x%d' % k)
    for k in range(nk):
        if k + D - 1 < nk:
            kk = k + D - 1
            ds.issue(f'ds_read_b128 {xf[kk % D]}, {vRd} offset:{1024 * kk}', 'x%d' % kk)
        ds.wait('x%d' % k)
        w = f'a[{4 * k}:{4 * k + 3}]'
        A, B = (w, xf[k % D]) if w_is_a else (xf[k % D], w)
        a(f'{MF32} {acc}, {A}, {B}, {"0" if k == 0 else acc}')
        for x in fill.get(k, []):
            if callable(x):
                x()
            else:
                a(x)


def spread(fill, ops, start, per=1, step=1):
    for i, x in enumerate(ops):
        fill.setdefault(start + (i // per) * step, []).append(x)


class XnFlags:
    def __init__(self, c):
        self.c = c
        self.sLine = c.sr.alloc('xl')
        self.sNeed = c.sr.alloc('xn')
        self.vFo = c.vZ

    def set(self, seg):
        a = self.c.a
        a(f's_mov_b32 {self.sLine}, {FLG + (F_XN + seg % NF) * 128}')
        a(f's_mov_b32 {self.sNeed}, {seg // NF + 1}')

    def advance(self, sSeg):
        a, S = self.c.a, self.c.S
        a(f's_mul_i32 {S["t3"]}, {sSeg}, 4682')
        a(f's_lshr_b32 {self.sNeed}, {S["t3"]}, 16')
        a(f's_mul_i32 {S["t3"]}, {self.sNeed}, {NF}')
        a(f's_sub_u32 {S["t3"]}, {sSeg}, {S["t3"]}')
        a(f's_lshl_b32 {S["t3"]}, {S["t3"]}, 7')
        a(f's_add_u32 {self.sLine}, {S["t3"]}, {FLG + F_XN * 128}')
        a(f's_add_u32 {self.sNeed}, {self.sNeed}, 1')


class SegFlags:
    def __init__(self, c, vFo):
        self.c = c
        self.sLine = c.sr.alloc('gl')
        self.sNeed = c.sr.alloc('gn')
        self.vFo = vFo
        c.a(f's_mov_b32 {self.sLine}, 0')

    def set(self, seg):
        self.c.a(f's_mov_b32 {self.sNeed}, {seg + 1}')

    def advance(self, sSeg):
        self.c.a(f's_add_u32 {self.sNeed}, {sSeg}, 1')


def stream_gemm(c, nk, flags, src_base, src_stride, sSrcOff, weights, epilogue, vOwn, census):
    a, S = c.a, c.S
    sWS = S['ws']
    acc = [c.v.alloc('acc%d' % i, 16) for i in range(2)]
    xf = [c.v.alloc('xf%d' % i, 4) for i in range(4)]
    vRd, vFl, vCnt = c.v.alloc('rd'), c.v.alloc('fl'), c.v.alloc('cnt')
    sSeg, sPre, sBufR, sBufW, sSrc, sDst, sWq = [c.sr.alloc('g%d' % i) for i in range(7)]
    TB = nk * 1024
    nd = nk // 4
    a(f's_mul_i32 {sWq}, {S["w"]}, {TB // 4}')

    def src():
        a(f's_mul_i32 {sSrc}, {sPre}, {src_stride}')
        a(f's_add_u32 {sSrc}, {sSrc}, {src_base}')
        if sSrcOff is not None:
            a(f's_add_u32 {sSrc}, {sSrc}, {sSrcOff}')
        a(f's_add_u32 {sSrc}, {sSrc}, {sWq}')
        a(f's_add_u32 {sDst}, {sBufW}, {sWq}')
    weights(None)
    census(c.t[1], c.t[2])
    for s in range(2):
        flags.set(s)
        c.spin_flags(vFl, flags.vFo, flags.sLine, flags.sNeed, 20)
        a(f's_mov_b32 {sPre}, {s}')
        a(f's_mov_b32 {sBufW}, {s * TB}')
        src()
        for op in tile_dma(c, nk, c.vLin, sSrc, sDst):
            a(op())
    flags.set(2)
    a(f'buffer_load_dword {vFl}, {flags.vFo}, {sWS}, {flags.sLine} offen sc1')
    a(f's_mov_b32 {sSeg}, 0')
    a(f's_mov_b32 {sPre}, 2')
    a(f's_mov_b32 {sBufR}, 0')
    a(f's_mov_b32 {sBufW}, {2 * TB}')
    a('s_waitcnt vmcnt(0)')
    top, done = a.newlabel(c.name + 'top'), a.newlabel(c.name + 'end')
    late = []
    a.label(top)
    for p in range(2):
        a(f's_waitcnt vmcnt({nd})')
        a('s_barrier')
        a(f'v_add_u32 {vRd}, {sBufR}, {c.vLin}')
        fill = {}
        labw, labo = a.newlabel('nf'), a.newlabel('nfok')
        late.append((labw, labo))
        pub = [lambda: (a(f's_sub_u32 {S["t3"]}, {sSeg}, 1'), a(f's_max_i32 {S["t3"]}, {S["t3"]}, 0'),
                        a(f'v_mov_b32 {vCnt}, {S["t3"]}'), a(f'buffer_store_dword {vCnt}, {vOwn}, {sWS}, 0 offen sc1'))]
        spread(fill, pub, 0)
        ep = epilogue(acc[1 - p], sSeg, -1)
        per = -(-len(ep) // (nk - nd * 2 - 6))
        spread(fill, ep, 1, per)
        k0 = 2 + -(-len(ep) // per)
        spread(fill, [lambda: (src(), a(f'v_cmp_gt_u32 vcc, {flags.sNeed}, {vFl}')),
                      lambda: (a(f's_cbranch_vccnz {labw}'), a.label(labo), a(f's_add_u32 {sPre}, {sPre}, 1'),
                               a(f's_min_u32 {sPre}, {sPre}, 63'), flags.advance(sPre),
                               a(f'buffer_load_dword {vFl}, {flags.vFo}, {sWS}, {flags.sLine} offen sc1'))], k0)
        spread(fill, [lambda op=op: a(op()) for op in tile_dma(c, nk, c.vLin, sSrc, sDst)], k0 + 2, 1, 2)
        assert max(fill) < nk, (c.name, max(fill))
        mfma_loop(c, nk, acc[p], xf, vRd, fill)
        for x in (sBufR, sBufW):
            a(f's_add_u32 {x}, {x}, {TB}')
            a(f's_cmp_eq_u32 {x}, {3 * TB}')
            a(f's_cselect_b32 {x}, 0, {x}')
        a(f's_add_u32 {sSeg}, {sSeg}, 1')
    a(f's_cmp_lt_u32 {sSeg}, 64')
    a(f's_cbranch_scc1 {top}')
    for x in epilogue(acc[1], sSeg, -1):
        x() if callable(x) else a(x)
    a('s_waitcnt vmcnt(0)')
    a('s_barrier')
    a(f'v_mov_b32 {vCnt}, 64')
    a(f'buffer_store_dword {vCnt}, {vOwn}, {sWS}, 0 offen sc1')
    a('s_endpgm')
    for labw, labo in late:
        a.label(labw)
        c.spin_flags(vFl, flags.vFo, flags.sLine, flags.sNeed, 21)
        a(f's_branch {labo}')


def seg_off(c, dst, sSeg, delta, stride, base, sExtra=None):
    a, S = c.a, c.S
    a(f's_mul_i32 {dst}, {sSeg}, {stride}')
    a(f's_add_u32 {dst}, {dst}, {(base + delta * stride) & 0xffffffff}')
    if sExtra is not None:
        a(f's_add_u32 {dst}, {dst}, {sExtra}')
    if delta < 0:
        a(f's_cmp_eq_u32 {sSeg}, 0')
        a(f's_cselect_b32 {dst}, {OOB}, {dst}')


NAT = lambda ks, aa: 16 * ks + 4 * aa


def gen_KV(a, S, cfg, census):
    c = Ctx(a, S, cfg, 'kv')
    sI = S['idx']
    sPtr = c.sr.alloc('p', 2)
    sB, sHB, sE, sSc = [c.sr.alloc('k%d' % i) for i in range(4)]
    a(f's_cmp_lt_u32 {sI}, 32')
    a(f's_cselect_b32 {sPtr[0]}, {S["ptrs"][2]}, {S["ptrs"][4]}')
    a(f's_cselect_b32 {sPtr[1]}, {S["ptrs"][3]}, {S["ptrs"][5]}')
    a(f's_cselect_b32 {sSc}, {f32hex(SCALE_LOG2E)}, 1.0')
    a(f's_cselect_b32 {sHB}, {HR + HR_KX}, {HR + HR_VX}')
    a(f's_and_b32 {S["t1"]}, {sI}, 31')
    a(f's_lshl_b32 {sB}, {S["t1"]}, 8')
    a(f's_lshl_b32 {S["t1"]}, {S["t1"]}, 21')
    a(f's_add_u32 {sHB}, {sHB}, {S["t1"]}')
    vSt, vOwn = c.v.alloc('st'), c.v.alloc('own')
    pk = c.v.alloc('pk', 8)
    c.LA(vSt, [(4, 1, 4096), (0, 4, 16), (5, 1, 256)], [(S['w'], 1024)])
    c.own_word(vOwn, sI, F_K)

    def ep(acc, sSeg, d):
        return [f'v_mul_f32 {acc[i]}, {sSc}, {acc[i]}' for i in range(16)] + \
               [f'v_cvt_pk_bf16_f32 {pk[i]}, {acc[2 * i]}, {acc[2 * i + 1]}' for i in range(8)] + \
               [lambda: seg_off(c, sE, sSeg, d, 8192, 0, sHB)] + \
               [f'buffer_store_dwordx4 {pk[4 * i:4 * i + 4]}, {vSt}, {S["ws"]}, {sE} offen offset:{512 * i} sc1' for i in range(2)]
    stream_gemm(c, 40, XnFlags(c), XN, 40960, None,
                lambda b: c.plain_weights(sPtr, 640 * 4096 * 2, 8192, sB, 10, NAT, 8, b), ep, vOwn, census)


def gen_G2(a, S, cfg, census):
    c = Ctx(a, S, cfg, 'g2')
    sI = S['idx']
    sE, sB, sM, sO = [c.sr.alloc('k%d' % i) for i in range(4)]
    sWt = [c.sr.alloc('wt%d' % i, 4) for i in range(2)]
    vOwn = c.v.alloc('own')
    pk = c.v.alloc('pk', 4)
    vA = [c.v.alloc('wa%d' % i) for i in range(2)]
    c.vR = c.v.alloc('wr')
    c.own_word(vOwn, sI, F_H)
    a(f's_lshl_b32 {sB}, {sI}, 7')
    a(f's_lshl_b32 {sO}, {sI}, 12')
    a(f's_lshl_b32 {S["t1"]}, {S["w"]}, 10')
    a(f's_add_u32 {sO}, {sO}, {S["t1"]}')
    ntf = ' nt' if cfg.get('nt', True) else ''

    def weights(between):
        pitch = 3456
        for part in range(2):
            c.srd(sWt[part], S['ffn'][2 * part:2 * part + 2], 640 * pitch)
            c.LA(c.t[1], [(4, 1, 2)], [], 4 * part)
            c.LA(c.t[2], [(0, 3, 1)])
            a(f'v_xor_b32 {c.t[1]}, {c.t[1]}, {c.t[2]}')
            c.LA(vA[part], [(3, 3, pitch)], [(S['w'], 16 * pitch)])
            a(f'v_lshl_add_u32 {vA[part]}, {c.t[1]}, 4, {vA[part]}')
        c.LA(c.t[1], [(4, 1, 4), (3, 1, 2)])
        c.LA(c.t[2], [(1, 1, 1)], [(S['w'], 2)])
        a(f'v_xor_b32 {c.t[1]}, {c.t[1]}, {c.t[2]}')
        c.LA(c.vR, [(2, 2, 128), (5, 1, 8 * 128), (4, 1, 8192), (0, 1, 8)])
        a(f'v_lshl_add_u32 {c.vR}, {c.t[1]}, 4, {c.vR}')
        a(f's_lshl_b32 {sM}, {S["w"]}, 11')

        def issue(ci):
            for part in range(2):
                for ip in range(2):
                    a(f's_add_u32 {S["t1"]}, {sB}, {(64 * ci + 8 * ip) * pitch}')
                    a(f's_add_u32 m0, {sM}, {ci * 16384 + part * 8192 + ip * 1024}')
                    a(f'buffer_load_dwordx4 {vA[part]}, {sWt[part]}, {S["t1"]} offen{ntf} lds')
        c.load_weights(10, issue, 128, NAT, between)

    def ep(acc, sSeg, d):
        o = []
        for i in range(8):
            o += [f'v_mul_f32 {acc[i]}, {f32hex(-LOG2E)}, {acc[i]}', f'v_exp_f32 {acc[i]}, {acc[i]}']
        for i in range(8):
            o += [f'v_add_f32 {acc[i]}, 1.0, {acc[i]}', f'v_rcp_f32 {acc[i]}, {acc[i]}']
        o += [f'v_mul_f32 {acc[i]}, {acc[i]}, {acc[8 + i]}' for i in range(8)]
        o += [f'v_cvt_pk_bf16_f32 {pk[i]}, {acc[2 * i]}, {acc[2 * i + 1]}' for i in range(4)]
        o += [lambda: seg_off(c, sE, sSeg, d, 110592, HH, sO),
              f'buffer_store_dwordx4 {pk}, {c.vLin}, {S["ws"]}, {sE} offen sc1']
        return o
    stream_gemm(c, 40, XnFlags(c), XN, 40960, None, weights, ep, vOwn, census)


def partial_epilogue(c, pk, sE, stride, base, sO):
    S = c.S

    def ep(acc, sSeg, d):
        o = [f'v_cvt_pk_bf16_f32 {pk[i]}, {acc[2 * i]}, {acc[2 * i + 1]}' for i in range(8)]
        o += [lambda: seg_off(c, sE, sSeg, d, stride, base, sO)]
        for j in range(2):
            o += [f'v_permlane32_swap_b32 {pk[4 * j + i]}, {pk[4 * j + 2 + i]}' for i in range(2)]
        o += [f'buffer_store_dwordx4 {pk[4 * j:4 * j + 4]}, {c.vLin}, {S["ws"]}, {sE} offen offset:{1024 * j} sc1' for j in range(2)]
        return o
    return ep


def split5(c, sI, sKg, sNg):
    a = c.a
    a(f's_mul_i32 {sKg}, {sI}, 52')
    a(f's_lshr_b32 {sKg}, {sKg}, 8')
    a(f's_mul_i32 {sNg}, {sKg}, 5')
    a(f's_sub_u32 {sNg}, {sI}, {sNg}')


def gen_G3(a, S, cfg, census):
    c = Ctx(a, S, cfg, 'g3')
    sI = S['idx']
    sKg, sNg, sE, sB, sO, sX = [c.sr.alloc('k%d' % i) for i in range(6)]
    split5(c, sI, sKg, sNg)
    vOwn, vFo = c.v.alloc('own'), c.v.alloc('fo')
    pk = c.v.alloc('pk', 8)
    c.own_word(vOwn, sI, F_P3)
    a(f'v_min_u32 {vFo}, 8, {c.lane}')
    a(f'v_lshlrev_b32 {vFo}, 7, {vFo}')
    a(f's_mul_i32 {S["t1"]}, {sKg}, {9 * 128}')
    a(f's_add_u32 {S["t1"]}, {S["t1"]}, {FLG + F_H * 128}')
    a(f'v_add_u32 {vFo}, {S["t1"]}, {vFo}')
    a(f's_mul_i32 {sB}, {sKg}, {576 * 1280}')
    a(f's_lshl_b32 {S["t1"]}, {sNg}, 8')
    a(f's_add_u32 {sB}, {sB}, {S["t1"]}')
    a(f's_lshl_b32 {sO}, {sI}, 13')
    a(f's_lshl_b32 {S["t1"]}, {S["w"]}, 11')
    a(f's_add_u32 {sO}, {sO}, {S["t1"]}')
    a(f's_mul_i32 {sX}, {sKg}, {36 * 1024}')
    rows = lambda ks, aa: 16 * ks + 8 * aa
    stream_gemm(c, 36, SegFlags(c, vFo), HH, 110592, sX,
                lambda b: c.plain_weights(S['ffn'][4:6], 1728 * 1280, 1280, sB, 9, rows, 4, b),
                partial_epilogue(c, pk, sE, 15 * 8192, P3, sO), vOwn, census)


def gen_G4(a, S, cfg, census):
    c = Ctx(a, S, cfg, 'g4')
    sI, sWS = S['idx'], S['ws']
    sKg, sNg, sE, sB, sO, sX, sSeg, sNeed, sM, sSrc = [c.sr.alloc('k%d' % i) for i in range(10)]
    split5(c, sI, sKg, sNg)
    vOwn, vFo, vFl, vCnt = [c.v.alloc('v%d' % i) for i in range(4)]
    pk = c.v.alloc('pk', 8)
    acc = c.v.alloc('acc', 16)
    xf = [c.v.alloc('xf%d' % i, 4) for i in range(8)]
    c.own_word(vOwn, sI, F_P4)
    c.LA(vFo, [(0, 2, 128)], [(sKg, 512)], FLG + F_O * 128)
    a(f's_mul_i32 {sB}, {sKg}, {512 * 1280}')
    a(f's_lshl_b32 {S["t1"]}, {sNg}, 8')
    a(f's_add_u32 {sB}, {sB}, {S["t1"]}')
    a(f's_lshl_b32 {sO}, {sI}, 13')
    a(f's_lshl_b32 {S["t1"]}, {S["w"]}, 11')
    a(f's_add_u32 {sO}, {sO}, {S["t1"]}')
    a(f's_lshl_b32 {sX}, {sKg}, 15')
    a(f's_add_u32 {sX}, {sX}, {S["t1"]}')
    a(f's_mov_b32 {sM}, {S["t1"]}')
    rows = lambda ks, aa: 32 * (ks >> 1) + 16 * aa + 8 * (ks & 1)
    c.plain_weights(S['ptrs'][6:8], 4096 * 1280, 1280, sB, 8, rows, 4)
    census(c.t[1], c.t[2])
    ep = partial_epilogue(c, pk, sE, 40 * 8192, P4, sO)
    a(f's_mov_b32 {sSeg}, 0')
    top, labw, labo = a.newlabel('g4top'), a.newlabel('g4w'), a.newlabel('g4ok')
    a.label(top)
    a(f'buffer_load_dword {vFl}, {vFo}, {sWS}, 0 offen sc1')
    a(f's_add_u32 {sNeed}, {sSeg}, 1')
    seg_off(c, sSrc, sSeg, 0, 262144, OO, sX)
    a(f'v_mov_b32 {vCnt}, {sSeg}')
    a('s_waitcnt vmcnt(0)')
    a('s_barrier')
    a(f'v_cmp_gt_u32 vcc, {sNeed}, {vFl}')
    a(f's_cbranch_vccnz {labw}')
    a.label(labo)
    for g in range(4):
        a(f's_add_u32 {S["t2"]}, {sSrc}, {8192 * g}')
        a(f's_add_u32 m0, {sM}, {8192 * g}')
        for i in range(2):
            a(f'buffer_load_dwordx4 {c.vLin}, {sWS}, {S["t2"]} offen offset:{1024 * i} sc1 lds')
    a(f'buffer_store_dword {vCnt}, {vOwn}, {sWS}, 0 offen sc1')
    ds = Cnt(a, 'lgkmcnt', 15)
    for g in range(4):
        a(f's_waitcnt vmcnt({7 - 2 * g})')
        a('s_barrier')
        for k in range(8):
            ds.issue(f'ds_read_b128 {xf[k]}, {c.vLin} offset:{8192 * g + 1024 * k}', 'x%d' % k)
        for k in range(8):
            ds.wait('x%d' % k)
            kk = 8 * g + k
            a(f'{MF32} {acc}, a[{4 * kk}:{4 * kk + 3}], {xf[k]}, {"0" if kk == 0 else acc}')
    for x in ep(acc, sSeg, 0):
        x() if callable(x) else a(x)
    a(f's_add_u32 {sSeg}, {sSeg}, 1')
    a(f's_cmp_lt_u32 {sSeg}, 64')
    a(f's_cbranch_scc1 {top}')
    a('s_waitcnt vmcnt(0)')
    a('s_barrier')
    a(f'v_mov_b32 {vCnt}, 64')
    a(f'buffer_store_dword {vCnt}, {vOwn}, {sWS}, 0 offen sc1')
    a('s_endpgm')
    a.label(labw)
    a(f'buffer_store_dword {vCnt}, {vOwn}, {sWS}, 0 offen sc1')
    c.spin_flags(vFl, vFo, '0', sNeed, 22)
    a(f's_branch {labo}')


def gen_QA(a, S, cfg, census):
    c = Ctx(a, S, cfg, 'qa')
    sI, sWS, sW = S['idx'], S['ws'], S['w']
    L_X, L_KV, L_Q, L_KM = 0, 81920, 114688, 122880
    sB, sHB, sSeg, sPre, sSrc, sDst, sWq, sKs, sKd, sE, sO, sNeed, sEx, sPar, sC, sN2 = [c.sr.alloc('k%d' % i) for i in range(16)]
    (vOwn, vFx, vFlx, vFe, vFle, vFk, vFlk, vCnt, vRd, vQw, vQr, vKr, vVr, vXs, vVs, vMw, vMr, vMr1, vSt) = [
        c.v.alloc('v%d' % i) for i in range(19)]
    acc = c.v.alloc('acc', 16)
    xf = [c.v.alloc('xf%d' % i, 4) for i in range(4)]
    pk = c.v.alloc('pk', 8)
    qb = c.v.alloc('qb', 16)
    kx = c.v.alloc('kx', 32)
    vt = c.v.alloc('vt', 16)
    ka = c.v.alloc('ka', 16)
    km = c.v.alloc('km', 2)
    vm = c.v.alloc('vm', 4)
    Sx = c.v.alloc('S', 12)
    P = c.v.alloc('P', 4)
    Pa = c.v.alloc('Pa', 8)
    Pb = c.v.alloc('Pb', 6)
    O = c.v.alloc('O', 16)
    L = c.v.alloc('L', 4)
    one = c.v.alloc('one', 4)
    msk = c.v.alloc('msk', 8)
    fx = XnFlags(c)
    c.own_word(vOwn, sI, F_O)
    a(f's_lshl_b32 {sB}, {sI}, 8')
    a(f's_lshl_b32 {sHB}, {sI}, 21')
    a(f's_add_u32 {sHB}, {sHB}, {HR}')
    a(f's_mul_i32 {sWq}, {sW}, 10240')
    a(f's_mov_b32 {sC}, {f32hex(SCALE_LOG2E)}')
    sQh, sEh = S['t1'], S['t2']
    a(f's_and_b32 {sQh}, {sW}, 1')
    a(f's_lshr_b32 {sEh}, {sW}, 1')
    c.LA(vFe, [(0, 1, 4096)], [(sI, 128)], FLG + F_EX * 128)
    c.LA(vFk, [(0, 1, 4096)], [(sI, 128)], FLG + F_K * 128)
    c.LA(vQw, [(4, 1, 4096), (0, 4, 16), (5, 1, 256)], [(sW, 1024)], L_Q)
    c.LA(vQr, [(0, 6, 16)], [(sQh, 4096)], L_Q)
    c.LA(vXs, [(0, 6, 8)], [(sW, 512)])
    c.LA(vVs, [(0, 6, 8)], [(sEh, 1024)], HR_VM - HR_KM)
    c.LA(vMw, [(0, 4, 32), (4, 2, 8)], [(sW, 1024)], L_KM)
    c.LA(vMr, [(5, 1, 512), (4, 1, 128), (2, 2, 32), (0, 2, 8)], [], L_KM)
    c.LA(vSt, [(5, 1, 1024), (4, 1, 512), (0, 4, 16)], [(sQh, 256), (sEh, 4096), (sI, 8192)])
    c.LA(vVr, [(4, 2, 64), (2, 2, 16), (0, 1, 256), (1, 1, 8)], [(sEh, 2048)], 8192)
    c.LA(c.t[1], [(0, 4, 1)], [(sQh, 16)])
    c.LA(c.t[2], [(4, 2, 4)])
    a(f'v_sub_u32 {c.t[1]}, {c.t[1]}, {c.t[2]}')
    a(f'v_mov_b32 {c.t[2]}, {f32hex(-1e30)}')
    for i in range(8):
        a(f'v_cmp_gt_i32 vcc, {16 * (i >> 2) + (i & 3)}, {c.t[1]}')
        a(f'v_cndmask_b32 {msk[i]}, {c.vZ}, {c.t[2]}, vcc')
    for i in range(4):
        a(f'v_mov_b32 {one[i]}, 0x3f803f80')
    for x in [Pa[i] for i in range(8)] + [Pb[i] for i in range(6)]:
        a(f'v_mov_b32 {x}, 0')
    c.plain_weights(S['ptrs'][0:2], 640 * 4096 * 2, 8192, sB, 10, NAT, 8)
    census(c.t[1], c.t[2])

    def src():
        a(f's_mul_i32 {sSrc}, {sPre}, 40960')
        a(f's_add_u32 {sSrc}, {sSrc}, {XN}')
        a(f's_add_u32 {sSrc}, {sSrc}, {sWq}')
        a(f's_and_b32 {sPar}, {sPre}, 1')
        a(f's_mul_i32 {sDst}, {sPar}, 40960')
        a(f's_add_u32 {sDst}, {sDst}, {sWq}')
        a(f's_lshl_b32 {sKs}, {sPre}, 13')
        a(f's_add_u32 {sKs}, {sKs}, {sHB}')
        a(f's_lshl_b32 {S["t3"]}, {sW}, 11')
        a(f's_add_u32 {sKs}, {sKs}, {S["t3"]}')
        a(f's_lshl_b32 {sKd}, {sPar}, 14')
        a(f's_add_u32 {sKd}, {sKd}, {S["t3"]}')
        a(f's_add_u32 {sN2}, {sPre}, 1')

    def kv_dma():
        ops = []
        for i in range(4):
            def op(i=i):
                a(f's_add_u32 {S["t2"]}, {sKs}, {HR_VX * (i >> 1)}')
                a(f's_add_u32 m0, {sKd}, {L_KV + 8192 * (i >> 1)}')
                return f'buffer_load_dwordx4 {c.vLin}, {sWS}, {S["t2"]} offen offset:{1024 * (i & 1)} sc1 lds'
            ops.append(op)
        return ops
    a(f's_mov_b32 {sPre}, 0')
    src()
    fx.set(0)
    c.spin_flags(vFlx, c.vZ, fx.sLine, fx.sNeed, 23)
    for op in tile_dma(c, 40, c.vLin, sSrc, sDst):
        a(op())
    c.spin_flags(vFlk, vFk, '0', sN2, 24)
    for op in kv_dma():
        a(op())
    fx.set(1)
    a(f'buffer_load_dword {vFlx}, {c.vZ}, {sWS}, {fx.sLine} offen sc1')
    a(f's_mov_b32 {sSeg}, 0')
    a(f's_mov_b32 {sPre}, 1')
    a('s_waitcnt vmcnt(0)')
    top = a.newlabel('qatop')
    lx, lxo, lk, lko, le, leo = [a.newlabel('qa') for _ in range(6)]
    a.label(top)
    a('s_waitcnt vmcnt(2)')
    a('s_barrier')
    a(f's_and_b32 {S["t3"]}, {sSeg}, 1')
    a(f's_mul_i32 {S["t1"]}, {S["t3"]}, 40960')
    a(f'v_add_u32 {vRd}, {S["t1"]}, {c.vLin}')
    a(f's_lshl_b32 {S["t3"]}, {S["t3"]}, 14')
    a(f's_add_u32 {S["t3"]}, {S["t3"]}, {L_KV}')
    a(f'v_add_u32 {vKr}, {S["t3"]}, {c.vLin}')
    a(f'v_add_u32 {vMr1}, {S["t3"]}, {vVr}')
    fill = {}
    spread(fill, [lambda: (src(), a(f'v_cmp_gt_u32 vcc, {fx.sNeed}, {vFlx}')),
                  lambda: None,
                  lambda: (a(f's_cbranch_vccnz {lx}'), a.label(lxo), a(f'v_cmp_gt_u32 vcc, {sN2}, {vFlk}')),
                  lambda: None,
                  lambda: (a(f's_cbranch_vccnz {lk}'), a.label(lko))], 0)
    spread(fill, [lambda op=op: a(op()) for op in tile_dma(c, 40, c.vLin, sSrc, sDst) + kv_dma()], 5, 1, 2)
    kp = cfg.get('qapub', 20)
    spread(fill, [lambda: (a(f's_waitcnt vmcnt({(kp - 5) // 2 + 1})'), a('s_barrier'), a(f'v_mov_b32 {vCnt}, {sSeg}'),
                           a(f'buffer_store_dword {vCnt}, {vOwn}, {sWS}, 0 offen sc1'))], kp)
    spread(fill, [lambda: (a(f's_add_u32 {sPre}, {sPre}, 1'), a(f's_min_u32 {sPre}, {sPre}, 63'), fx.advance(sPre),
                           a(f'buffer_load_dword {vFlx}, {c.vZ}, {sWS}, {fx.sLine} offen sc1'),
                           a(f'buffer_load_dword {vFlk}, {vFk}, {sWS}, 0 offen sc1'),
                           a(f'buffer_load_dword {vFle}, {vFe}, {sWS}, 0 offen sc1'))], 38)
    assert max(fill) < 40
    ds = Cnt(a, 'lgkmcnt', 15)
    mfma_loop(c, 40, acc, xf, vRd, fill, True, ds)
    for i in range(8):
        ds.issue(f'ds_read_b128 {kx[4 * i:4 * i + 4]}, {vKr} offset:{1024 * i}', 'kx')
    a(f's_add_u32 {sNeed}, {sSeg}, 1')
    a(f's_lshl_b32 {sEx}, {sSeg}, 11')
    a(f's_add_u32 {sEx}, {sEx}, {sHB}')
    a(f's_add_u32 {sEx}, {sEx}, {HR_KM}')
    seg_off(c, sE, sSeg, 0, 262144, OO)
    for i in range(8):
        a(f'v_cvt_pk_bf16_f32 {pk[i]}, {acc[2 * i]}, {acc[2 * i + 1]}')
    for i in range(2):
        ds.issue(f'ds_write_b128 {vQw}, {pk[4 * i:4 * i + 4]} offset:{512 * i}', 'qw')
    ds.drain()
    a('s_barrier')
    for u in range(4):
        ds.issue(f'ds_read_b128 {qb[4 * u:4 * u + 4]}, {vQr} offset:{1024 * u}', 'q%d' % u)
    for E in range(4):
        for T in range(2):
            ds.issue(f'ds_read_b64_tr_b16 {vt[4 * E + 2 * T:4 * E + 2 * T + 2]}, {vMr1} offset:{4096 * T + 1024 * (E >> 1) + 512 * (E & 1)}', 'vt')
    for u in range(4):
        ds.wait('q%d' % u)
        for t in range(2):
            a(f'{MF16} {Sx[4 * t:4 * t + 4]}, {kx[(4 * t + u) * 4:(4 * t + u) * 4 + 4]}, {qb[4 * u:4 * u + 4]}, '
              f'{msk[4 * t:4 * t + 4] if u == 0 else Sx[4 * t:4 * t + 4]}')
    a('s_waitcnt vmcnt(0)')
    a(f'v_cmp_gt_u32 vcc, {sNeed}, {vFle}')
    a(f's_cbranch_vccnz {le}')
    a.label(leo)
    a(f'buffer_load_dwordx2 {km}, {vXs}, {sWS}, {sEx} offen sc1')
    a(f'buffer_load_dwordx2 {vm[0:2]}, {vVs}, {sWS}, {sEx} offen sc1')
    a(f'buffer_load_dwordx2 {vm[2:4]}, {vVs}, {sWS}, {sEx} offen offset:512 sc1')
    m, t1 = c.t[0], c.t[1]
    a(f'v_max3_f32 {m}, {Sx[0]}, {Sx[1]}, {Sx[2]}')
    a(f'v_max3_f32 {m}, {m}, {Sx[3]}, {Sx[4]}')
    a(f'v_max3_f32 {m}, {m}, {Sx[5]}, {Sx[6]}')
    a(f'v_max_f32 {m}, {m}, {Sx[7]}')
    a('s_waitcnt vmcnt(2)')
    a(f'ds_write2_b32 {vMw}, {km[0]}, {km[1]} offset0:0 offset1:128')
    ds.drain()
    a('s_barrier')
    for u in range(4):
        for aa in range(2):
            ds.issue(f'ds_read_b64_tr_b16 {ka[4 * u + 2 * aa:4 * u + 2 * aa + 2]}, {vMr} offset:{u * 1024 + aa * 256}', 'k%d' % u)
    for u in range(4):
        ds.wait('k%d' % u)
        a(f'{MF16} {Sx[8:12]}, {ka[4 * u:4 * u + 4]}, {qb[4 * u:4 * u + 4]}, {"0" if u == 0 else Sx[8:12]}')
    a(f'v_mul_f32 {Sx[8]}, {sC}, {Sx[8]}')
    a(f'v_mul_f32 {Sx[9]}, {sC}, {Sx[9]}')
    a(f'v_max3_f32 {m}, {m}, {Sx[8]}, {Sx[9]}')
    for sw in ('32', '16'):
        a(f'v_mov_b32 {t1}, {m}')
        a(f'v_permlane{sw}_swap_b32 {t1}, {m}')
        a(f'v_max_f32 {m}, {m}, {t1}')
    for i in range(10):
        a(f'v_sub_f32 {Sx[i]}, {Sx[i]}, {m}')
        a(f'v_exp_f32 {Sx[i]}, {Sx[i]}')
    for k in range(4):
        a(f'v_cvt_pk_bf16_f32 {P[k]}, {Sx[2 * k]}, {Sx[2 * k + 1]}')
    a(f'v_cvt_pk_bf16_f32 {Pa[3]}, {Sx[8]}, {Sx[9]}')
    a(f'v_cvt_pk_bf16_f32 {Pb[2]}, {Sx[8]}, {Sx[9]}')
    a(f'{MF16} {L}, {one}, {P}, 0')
    a(f'{MF16} {L}, {one}, {Pb[2:6]}, {L}')
    a('s_waitcnt vmcnt(0)')
    sel = [Pb[2:6], Pa[2:6], Pb[0:4], Pa[0:4]]
    for E in range(4):
        a(f'{MF16} {O[4 * E:4 * E + 4]}, {vt[4 * E:4 * E + 4]}, {P}, 0')
        a(f'{MF16} {O[4 * E:4 * E + 4]}, {vm}, {sel[E]}, {O[4 * E:4 * E + 4]}')
        if E == 1:
            a(f'v_rcp_f32 {m}, {L[0]}')
    for pr in range(2):
        for i in range(8):
            a(f'v_mul_f32 {O[8 * pr + i]}, {O[8 * pr + i]}, {m}')
        for i in range(4):
            a(f'v_cvt_pk_bf16_f32 {pk[4 * pr + i]}, {O[8 * pr + 2 * i]}, {O[8 * pr + 2 * i + 1]}')
        a(f'buffer_store_dwordx4 {pk[4 * pr:4 * pr + 4]}, {vSt}, {sWS}, {sE} offen offset:{2048 * pr} sc1')
    a(f's_add_u32 {sSeg}, {sSeg}, 1')
    a(f's_cmp_lt_u32 {sSeg}, 64')
    a(f's_cbranch_scc1 {top}')
    a('s_waitcnt vmcnt(0)')
    a('s_barrier')
    a(f'v_mov_b32 {vCnt}, 64')
    a(f'buffer_store_dword {vCnt}, {vOwn}, {sWS}, 0 offen sc1')
    a('s_endpgm')
    for lab, back, args in ((lx, lxo, (vFlx, c.vZ, fx.sLine, fx.sNeed, 25)), (lk, lko, (vFlk, vFk, '0', sN2, 26)),
                            (le, leo, (vFle, vFe, '0', sNeed, 27))):
        a.label(lab)
        c.spin_flags(*args)
        a(f's_branch {back}')


def gen_F(a, S, cfg, census):
    c = Ctx(a, S, cfg, 'f')
    sI, sWS, sW = S['idx'], S['ws'], S['w']
    sX = c.sr.alloc('x', 4)
    sOut = c.sr.alloc('o', 4)
    sSeg, sE, sCnt, sTask, sCg, sO8, sNg, sNeed, sP4, sP3, sRow, sBest = [c.sr.alloc('k%d' % i) for i in range(12)]
    sTm = [c.sr.alloc('tm%d' % i, 2) for i in range(2)]
    sMin = c.sr.alloc('mn', 2)
    vOwn, vA, vB, vF3, vF4, vFl, vCnt, vP = [c.v.alloc('v%d' % i) for i in range(8)]
    xr = c.v.alloc('xr', 48)
    f = c.v.alloc('f', 80)
    c.srd(sX, S['x'], 2048 * 1280)
    c.srd(sOut, S['out'], 2048 * 1280)
    c.own_word(vOwn, sI, F_XN)
    c.LA(vA, [(0, 3, 1280), (3, 3, 16)], [(sW, 8 * 1280)])
    c.LA(vB, [(4, 2, 1024), (3, 1, 512), (0, 3, 16)], [(sW, 128)])
    a(f's_mov_b32 {sSeg}, {sI}')
    a(f's_mov_b32 {sCnt}, 0')

    def xload():
        a(f's_mul_i32 {sE}, {sSeg}, 40960')
        for i in range(10):
            a(f'buffer_load_dwordx4 {xr[4 * i:4 * i + 4]}, {vA}, {sX}, {sE} offen offset:{128 * i}')
    xload()
    census(c.t[1], c.t[2], init=(lambda: flag_reset(c)))
    top = a.newlabel('ln')
    a.label(top)
    a('s_waitcnt vmcnt(0)')
    for i in range(40):
        a(f'v_lshlrev_b32 {f[2 * i]}, 16, {xr[i]}')
        a(f'v_and_b32 {f[2 * i + 1]}, 0xffff0000, {xr[i]}')
    a(f's_mul_i32 {sRow}, {sSeg}, 40960')
    a(f's_add_u32 {sRow}, {sRow}, {XN}')
    a(f's_add_u32 {sSeg}, {sSeg}, {NF}')
    xload()
    s0, s1 = c.t[0], c.t[1]

    def rowsum():
        a(f'v_add_f32_dpp {s0}, {s0}, {s0} row_ror:8 row_mask:0xf bank_mask:0xf')
        for sw in ('16', '32'):
            a(f'v_mov_b32 {s1}, {s0}')
            a(f'v_permlane{sw}_swap_b32 {s1}, {s0}')
            a(f'v_add_f32 {s0}, {s0}, {s1}')
    t2 = c.t[2:4]
    a(f'v_pk_add_f32 {t2}, {f[0:2]}, {f[2:4]}')
    for i in range(2, 40):
        a(f'v_pk_add_f32 {t2}, {t2}, {f[2 * i:2 * i + 2]}')
    a(f'v_add_f32 {s0}, {t2[0]}, {t2[1]}')
    rowsum()
    a(f'v_mul_f32 {s0}, {f32hex(1.0 / 640)}, {s0}')
    for i in range(80):
        a(f'v_sub_f32 {f[i]}, {f[i]}, {s0}')
    a(f'v_pk_mul_f32 {t2}, {f[0:2]}, {f[0:2]}')
    for i in range(1, 40):
        a(f'v_pk_fma_f32 {t2}, {f[2 * i:2 * i + 2]}, {f[2 * i:2 * i + 2]}, {t2}')
    a(f'v_add_f32 {s0}, {t2[0]}, {t2[1]}')
    rowsum()
    a(f'v_mov_b32 {s1}, {f32hex(1e-5)}')
    a(f'v_fmac_f32 {s1}, {f32hex(1.0 / 640)}, {s0}')
    a(f'v_rsq_f32 {s0}, {s1}')
    for i in range(10):
        for k in range(8):
            a(f'v_mul_f32 {f[8 * i + k]}, {f[8 * i + k]}, {s0}')
        for k in range(4):
            a(f'v_cvt_pk_bf16_f32 {f[8 * i + k]}, {f[8 * i + 2 * k]}, {f[8 * i + 2 * k + 1]}')
        a(f's_add_u32 {S["t2"]}, {sRow}, {4096 * i}')
        a(f'buffer_store_dwordx4 {f[8 * i:8 * i + 4]}, {vB}, {sWS}, {S["t2"]} offen sc1')
    a(f's_add_u32 {sCnt}, {sCnt}, 1')
    a(f'v_mov_b32 {vCnt}, {sCnt}')
    a('s_waitcnt vmcnt(0)')
    a('s_barrier')
    a(f'buffer_store_dword {vCnt}, {vOwn}, {sWS}, 0 offen sc1')
    a(f's_cmp_lt_u32 {sSeg}, 64')
    a(f's_cbranch_scc1 {top}')
    labp = a.newlabel('noprobe')
    a(f's_lshl_b32 {S["t1"]}, {sI}, 2')
    a(f's_add_u32 {sTask}, {S["t1"]}, {sW}')
    a(f's_cmp_lg_u32 {sTask}, {4 * NF - 1}')
    a(f's_cbranch_scc1 {labp}')
    a(f'v_mov_b32 {vP}, {AGR + 131072}')
    a('s_mov_b64 exec, 1')
    a(f's_mov_b32 {sMin[0]}, -1')
    a(f's_mov_b32 {sMin[1]}, -1')
    a('s_waitcnt vmcnt(0)')
    for it in range(5):
        for p in range(2):
            a(f's_mov_b32 {S["t2"]}, {8192 * p + 128 * it}')
            a(f's_memtime {sTm[0]}')
            a('s_waitcnt lgkmcnt(0)')
            a(f'buffer_store_dword {c.vZ}, {vP}, {sWS}, {S["t2"]} offen sc1')
            a('s_waitcnt vmcnt(0)')
            a(f's_memtime {sTm[1]}')
            a('s_waitcnt lgkmcnt(0)')
            a(f's_sub_u32 {S["t2"]}, {sTm[1][0]}, {sTm[0][0]}')
            a(f's_min_u32 {sMin[p]}, {sMin[p]}, {S["t2"]}')
    a(f's_cmp_lt_u32 {sMin[1]}, {sMin[0]}')
    a(f's_cselect_b32 {S["t2"]}, 1, 0')
    a(f's_lshr_b32 {S["t3"]}, {S["xcc"]}, 2')
    a(f's_xor_b32 {S["t2"]}, {S["t2"]}, {S["t3"]}')
    a(f's_or_b32 {S["t2"]}, {S["t2"]}, 2')
    a(f'v_mov_b32 {vP}, {S["t2"]}')
    a(f'global_store_dword {c.vZ}, {vP}, {S["dbg"]} offset:{4 * D_PAR} sc1')
    a('s_mov_b64 exec, -1')
    a.label(labp)
    c.LA(vA, [(3, 3, 1280), (0, 3, 16)])
    c.LA(vB, [(2, 1, 2048), (1, 1, 1024), (0, 1, 512), (3, 3, 16)])
    a(f'v_min_u32 {vF3}, 2, {c.lane}')
    a(f'v_mul_u32_u24 {vF3}, 640, {vF3}')
    a(f'v_add_u32 {vF3}, {FLG + F_P3 * 128}, {vF3}')
    c.LA(vF4, [(0, 3, 640)], [], FLG + F_P4 * 128)
    top = a.newlabel('fin')
    a.label(top)
    a(f's_mul_i32 {sSeg}, {sTask}, 52429')
    a(f's_lshr_b32 {sSeg}, {sSeg}, 21')
    a(f's_mul_i32 {S["t1"]}, {sSeg}, 40')
    a(f's_sub_u32 {S["t1"]}, {sTask}, {S["t1"]}')
    a(f's_mul_i32 {sO8}, {S["t1"]}, 26')
    a(f's_lshr_b32 {sO8}, {sO8}, 8')
    a(f's_mul_i32 {S["t2"]}, {sO8}, 10')
    a(f's_sub_u32 {sCg}, {S["t1"]}, {S["t2"]}')
    a(f's_lshr_b32 {sNg}, {sCg}, 1')
    a(f's_add_u32 {sNeed}, {sSeg}, 1')
    a(f's_mul_i32 {sRow}, {sSeg}, 40960')
    a(f's_mul_i32 {S["t1"]}, {sO8}, 10240')
    a(f's_add_u32 {sRow}, {sRow}, {S["t1"]}')
    a(f's_lshl_b32 {S["t1"]}, {sCg}, 7')
    a(f's_add_u32 {sRow}, {sRow}, {S["t1"]}')
    a(f's_lshl_b32 {S["t1"]}, {sNg}, 13')
    a(f's_and_b32 {S["t2"]}, {sCg}, 1')
    a(f's_lshl_b32 {S["t2"]}, {S["t2"]}, 12')
    a(f's_add_u32 {S["t1"]}, {S["t1"]}, {S["t2"]}')
    a(f's_lshl_b32 {S["t2"]}, {sO8}, 7')
    a(f's_add_u32 {S["t1"]}, {S["t1"]}, {S["t2"]}')
    seg_off(c, sP4, sSeg, 0, 40 * 8192, P4, S['t1'])
    seg_off(c, sP3, sSeg, 0, 15 * 8192, P3, S['t1'])
    a(f's_lshl_b32 {sNg}, {sNg}, 7')
    a(f'buffer_load_dwordx4 {xr[0:4]}, {vA}, {sX}, {sRow} offen')
    c.spin_flags(vFl, vF3, sNg, sNeed, 28)
    for k in range(3):
        a(f's_add_u32 {S["t2"]}, {sP3}, {k * 40960}')
        a(f'buffer_load_dwordx4 {xr[4 + 4 * k:8 + 4 * k]}, {vB}, {sWS}, {S["t2"]} offen sc1')

    def add(k, first=False):
        for i in range(4):
            d = f[2 * i:2 * i + 2] if first else f[8:10]
            a(f'v_lshlrev_b32 {d[0]}, 16, {xr[4 * k + i]}')
            a(f'v_and_b32 {d[1]}, 0xffff0000, {xr[4 * k + i]}')
            if not first:
                a(f'v_pk_add_f32 {f[2 * i:2 * i + 2]}, {f[2 * i:2 * i + 2]}, {d}')
    c.spin_flags(vFl, vF4, sNg, sNeed, 29)
    for k in range(8):
        a(f's_add_u32 {S["t2"]}, {sP4}, {k * 40960}')
        a(f'buffer_load_dwordx4 {xr[16 + 4 * k:20 + 4 * k]}, {vB}, {sWS}, {S["t2"]} offen sc1')
    for k in range(4):
        add(k, k == 0)
    for k in range(8):
        a(f's_waitcnt vmcnt({7 - k})')
        add(4 + k)
    for i in range(4):
        a(f'v_cvt_pk_bf16_f32 {f[12 + i]}, {f[2 * i]}, {f[2 * i + 1]}')
    a(f'buffer_store_dwordx4 {f[12:16]}, {vA}, {sOut}, {sRow} offen')
    a(f's_add_u32 {sTask}, {sTask}, {4 * NF}')
    a(f's_cmp_lt_u32 {sTask}, {64 * 40}')
    a(f's_cbranch_scc1 {top}')
    a('s_endpgm')


def flag_reset(c):
    a, S = c.a, c.S
    a(f'v_lshlrev_b32 {c.t[1]}, 7, v0')
    a(f's_mov_b32 {S["t1"]}, {FLG}')
    a(f'buffer_store_dword {c.vZ}, {c.t[1]}, {S["ws"]}, {S["t1"]} offen sc1')
    a(f's_mov_b32 {S["t1"]}, {FLG + 256 * 128}')
    a(f'buffer_store_dword {c.vZ}, {c.t[1]}, {S["ws"]}, {S["t1"]} offen sc1')
```

```python
import sys, json
from dsl import Asm, Regs, R, Ins
from layout import *
from role_r2 import gen_R
import roles_tok as T

NAME = 'parallel_sum__memory_aug_recurrent_mem_tr__glu_gated_glu__prompt_kernel'
HEAD = open('ref_head.txt').read().split('; Override')[0]


def build(cfg):
    a = Asm()
    sr = Regs('s', 4, 102)
    S = {}
    S['ws'] = sr.alloc('ws', 4)
    S['ptrs'] = sr.alloc('ptrs', 8, align=4)
    ld0 = sr.alloc('x_mem0', 4)
    S['x'], S['mem0'] = ld0[0:2], ld0[2:4]
    ld1 = sr.alloc('dbg_ws', 4)
    S['dbg'] = ld1[0:2]
    for nme in ('h', 'j', 'w', 'budget', 't0', 't1', 't2', 't3', 'xcc', 'mode'):
        S[nme] = sr.alloc(nme)
    S['idx'] = S['h']
    rfree = sr.next
    ffn = sr.alloc('ffn', 8, align=4)
    S['ffn'], S['out'] = ffn[0:6], ffn[6:8]
    S['free'] = sr.next
    t0, t1, t2 = S['t0'], S['t1'], S['t2']
    a('s_cmp_ge_u32 s2, 256')
    a('s_cbranch_scc1 L_exit')
    a(f's_load_dwordx4 {ld0}, s[0:1], 0')
    a(f's_load_dwordx8 {S["ptrs"]}, s[0:1], 16')
    a(f's_load_dwordx4 {ld1}, s[0:1], 96')
    a(f's_mov_b64 {R("s", 100, 2)}, s[0:1]')
    a(f's_getreg_b32 {S["xcc"]}, hwreg(HW_REG_XCC_ID, 0, 4)')
    a('v_lshrrev_b32 v1, 6, v0')
    a(f'v_readfirstlane_b32 {S["w"]}, v1')
    a(f's_mov_b32 {S["budget"]}, {cfg.get("budget", 400000)}')
    a(f's_mov_b32 {S["mode"]}, 0')
    a('s_waitcnt lgkmcnt(0)')
    a(f's_mov_b32 {S["ws"][0]}, {ld1[2]}')
    a(f's_and_b32 {S["ws"][1]}, {ld1[3]}, 0xffff')
    a(f's_mov_b32 {S["ws"][2]}, 0x10000000')
    a(f's_mov_b32 {S["ws"][3]}, 0x20000')
    a(f's_cmp_lg_u32 {S["w"]}, 0')
    a('s_cbranch_scc1 L_tk')
    a(f's_and_b32 {t0}, {S["xcc"]}, 7')
    a(f's_lshl_b32 {t0}, {t0}, 2')
    a(f'v_mov_b32 v1, {t0}')
    a('v_mov_b32 v2, 1')
    a('s_mov_b64 exec, 1')
    a(f'global_atomic_add v3, v1, v2, {S["dbg"]} sc0')
    a('v_mov_b32 v1, 0')
    a('s_waitcnt vmcnt(0)')
    a('ds_write_b32 v1, v3')
    a('s_waitcnt lgkmcnt(0)')
    a('s_mov_b64 exec, -1')
    a.label('L_tk')
    a('s_barrier')
    a('v_mov_b32 v1, 0')
    a('ds_read_b32 v2, v1')
    a('s_waitcnt lgkmcnt(0)')
    a(f'v_readfirstlane_b32 {S["h"]}, v2')
    a('s_barrier')
    a(f's_and_b32 {S["j"]}, {S["xcc"]}, 7')
    a(f's_cmp_ge_u32 {S["h"]}, 32')
    a('s_cbranch_scc1 L_norole')
    a.label('L_dispatch')
    h, j = S['h'], S['j']
    a(f's_cmp_lt_u32 {j}, 2')
    a('s_cbranch_scc1 L_R')
    a(f's_load_dwordx8 {ffn}, s[100:101], 64')
    a('s_waitcnt lgkmcnt(0)')
    a(f's_cmp_eq_u32 {j}, 2\ns_cbranch_scc1 L_KV')
    a(f's_cmp_eq_u32 {j}, 4\ns_cbranch_scc1 L_QA')
    a(f's_cmp_eq_u32 {j}, 3\ns_cbranch_scc0 L_d5')
    a(f's_add_u32 {h}, {h}, 32\ns_branch L_KV')
    a.label('L_d5')
    a(f's_cmp_eq_u32 {j}, 5\ns_cbranch_scc0 L_d6')
    a(f's_cmp_lt_u32 {h}, 27\ns_cbranch_scc1 L_G2')
    a(f's_sub_u32 {h}, {h}, 27\ns_branch L_F')
    a.label('L_d6')
    a(f's_cmp_eq_u32 {j}, 6\ns_cbranch_scc0 L_d7')
    a(f's_cmp_lt_u32 {h}, 30\ns_cbranch_scc1 L_G4')
    a(f's_sub_u32 {h}, {h}, 25\ns_branch L_F')
    a.label('L_d7')
    a(f's_cmp_lt_u32 {h}, 10\ns_cbranch_scc0 L_d7b')
    a(f's_add_u32 {h}, {h}, 30\ns_branch L_G4')
    a.label('L_d7b')
    a(f's_cmp_lt_u32 {h}, 25\ns_cbranch_scc0 L_d7c')
    a(f's_sub_u32 {h}, {h}, 10\ns_branch L_G3')
    a.label('L_d7c')
    a(f's_sub_u32 {h}, {h}, 18\ns_branch L_F')

    def bail(code):
        lab = a.newlabel('ok')
        a(f's_sub_u32 {S["budget"]}, {S["budget"]}, 1')
        a(f's_cbranch_scc0 {lab}')
        a(f's_mov_b32 {t0}, {code}')
        a('s_branch L_bail')
        a.label(lab)

    def count(va, vb):
        lab = a.newlabel('cen')
        a(f'v_mbcnt_lo_u32_b32 {va}, -1, 0')
        a(f'v_and_b32 {va}, 7, {va}')
        a(f'v_lshlrev_b32 {va}, 2, {va}')
        a.label(lab)
        a(f'global_load_dword {vb}, {va}, {S["dbg"]} sc1')
        bail(10)
        a('s_waitcnt vmcnt(0)')
        a(f's_mov_b32 {t1}, 0')
        for i in range(8):
            a(f'v_readlane_b32 {t2}, {vb}, {i}')
            a(f's_add_u32 {t1}, {t1}, {t2}')
        a(f's_cmp_lt_u32 {t1}, 256')
        a(f's_cbranch_scc1 {lab}')
        a(f'v_cmp_ne_u32 vcc, {33 if cfg.get("force_fb") else 32}, {vb}')
        a('s_cbranch_vccnz L_fallback')

    def census(va, vb, init=None):
        lab, lab2, lab3 = a.newlabel('cs'), a.newlabel('ci'), a.newlabel('cw')
        a(f's_cmp_eq_u32 {S["mode"]}, 1')
        a(f's_cbranch_scc1 {lab}')
        count(va, vb)
        a.label(lab)
        a(f's_lshl_b32 {t1}, {S["mode"]}, 2')
        if init:
            a(f's_cmp_eq_u32 {S["idx"]}, 0')
            a(f's_cbranch_scc0 {lab2}')
            init()
            a('s_waitcnt vmcnt(0)')
            a('s_barrier')
            a(f's_lshl_b32 {t1}, {S["mode"]}, 2')
            a(f'v_mov_b32 {va}, {t1}')
            a(f'v_mov_b32 {vb}, 1')
            a(f'global_store_dword {va}, {vb}, {S["dbg"]} offset:{4 * D_INIT} sc1')
            a.label(lab2)
        a(f'v_mov_b32 {va}, {t1}')
        a.label(lab3)
        a(f'global_load_dword {vb}, {va}, {S["dbg"]} offset:{4 * D_INIT} sc1')
        bail(11)
        a('s_waitcnt vmcnt(0)')
        a(f'v_cmp_eq_u32 vcc, 0, {vb}')
        a(f's_cbranch_vccnz {lab3}')

    a.label('L_norole')
    count('v1', 'v2')
    a.label('L_fallback')
    a('s_waitcnt vmcnt(0) lgkmcnt(0)')
    a('s_barrier')
    a(f's_mov_b32 {S["mode"]}, 1')
    a('v_mbcnt_lo_u32_b32 v0, -1, 0')
    a('v_mbcnt_hi_u32_b32 v0, -1, v0')
    a(f's_lshl_b32 {t0}, {S["w"]}, 6')
    a(f'v_add_u32 v0, {t0}, v0')
    a(f's_lshr_b32 {j}, s2, 5')
    a(f's_and_b32 {h}, s2, 31')
    a('s_branch L_dispatch')
    for lab, fn in (('L_F', T.gen_F), ('L_KV', T.gen_KV), ('L_QA', T.gen_QA), ('L_G2', T.gen_G2), ('L_G3', T.gen_G3), ('L_G4', T.gen_G4)):
        a.label(lab)
        fn(a, S, cfg, census)
    a.label('L_bail')
    a(f'v_mov_b32 v1, {t0}')
    a('v_mov_b32 v2, 0')
    a(f'global_store_dword v2, v1, {S["dbg"]} offset:{4 * D_BAIL}')
    a.label('L_exit')
    a('s_endpgm')
    a.label('L_R')
    a(f's_cmp_eq_u32 {S["mode"]}, 1')
    a('s_cbranch_scc1 L_R1')
    for fb in range(2):
        if fb:
            a.label('L_R1')
        S['alloc'] = Regs('s', rfree, 100)
        c2 = dict(cfg)
        c2['fast'] = not fb
        if fb:
            c2.pop('prof', None)
        gen_R(a, S, c2, census)
    a.fix_hazards(verbose=cfg.get('verbose', False))
    head = HEAD + f'''; one persistent launch, 256 workgroups = one per CU; roles are listed in the generator notes below
; @launch grid=(256,1,1) block=(256,1,1) lds=163840
.amdgcn_target "amdgcn-amd-amdhsa--gfx950"
.text
.globl {NAME}
.p2align 8
.type {NAME},@function
{NAME}:
'''
    tail = f'''.section .rodata,"a"
.p2align 6
.amdhsa_kernel {NAME}
  .amdhsa_next_free_vgpr 512
  .amdhsa_next_free_sgpr 102
  .amdhsa_accum_offset 256
  .amdhsa_group_segment_fixed_size 0
  .amdhsa_kernarg_size 112
  .amdhsa_user_sgpr_count 2
  .amdhsa_user_sgpr_kernarg_segment_ptr 1
  .amdhsa_system_sgpr_workgroup_id_x 1
.end_amdhsa_kernel
'''
    return head + a.text() + tail


if __name__ == '__main__':
    cfg = json.loads(sys.argv[2]) if len(sys.argv) > 2 else {}
    open(sys.argv[1], 'w').write(build(cfg))
```

```python
import math
import struct
from dsl import R, Regs, Cnt
from layout import *

L_KV = 0
L_AG = 32768
L_QX = 37888
L_RM = 41984
L_KX = 41984
L_OX = 47104
L_RING = 49152
NSLOT = 7
SAFE_T = 30.0

SCALE_LOG2E = (128 ** -0.5) * math.log2(math.e)


def f32hex(x):
    return '0x%08x' % struct.unpack('<I', struct.pack('<f', x))[0]


def lane_addr(a, dst, lane, tmp, fields, sterms=(), const=0, stmp=None):
    first = True
    for lo, nb, mul in fields:
        a(f'v_bfe_u32 {tmp}, {lane}, {lo}, {nb}')
        if first:
            a(f'v_mul_u32_u24 {dst}, {mul}, {tmp}')
            first = False
        else:
            a(f'v_mul_u32_u24 {tmp}, {mul}, {tmp}')
            a(f'v_add_u32 {dst}, {dst}, {tmp}')
    if first:
        a(f'v_mov_b32 {dst}, 0')
    for sreg, mul in sterms:
        a(f's_mul_i32 {stmp}, {sreg}, {mul}')
        a(f'v_add_u32 {dst}, {stmp}, {dst}')
    if const:
        a(f'v_add_u32 {dst}, {const}, {dst}')


def gen_R(a, S, cfg, census=None):
    fb = 0 if cfg.get('fast', True) else 1
    LS, LD = 'L_step%d' % fb, 'L_rdone%d' % fb
    rb = fb * RING_FB
    sWS, sH, sJ, sW, sBud = S['ws'], S['h'], S['j'], S['w'], S['budget']
    sr = S['alloc']
    sWt = sr.alloc('wt', 4)
    (sStep, sTag, sXo, sXi, sXp, sRS, sRS1, sRS2, sRSl, sRSl2, sAG, sAGn, sAGp, sRw, sRn, sRi, sMa, sHB, sEx,
     sImp, sImpV, sM0, sFl, sIsRed, sMb, sXb, sRb, sHi, sLo, sExK, sExV) = [sr.alloc('r%d' % i) for i in range(31)]
    sC = sr.alloc('c', 2)
    sChk = sr.alloc('chk', 2)
    sJm = sr.alloc('jm', 2)
    sLow = R('s', 0, 2)
    sEnd = R('s', sRS1.base, 2)
    assert sRS1.base % 2 == 0 and sRS2.base == sRS1.base + 1
    sT0, sT1, sT2, sT3 = S['t0'], S['t1'], S['t2'], S['t3']
    sTm = sr.alloc('tm', 2)
    sTm2 = sr.alloc('tm2', 2)

    stf = '' if cfg.get('fast', True) else ' sc1'
    ntf = ' nt' if cfg.get('nt', True) else ''

    v = Regs('v', 0, 144)
    (vQr1, vIdx, vL16, vX, vD, vXs, vAGst, vRSst, vRSst1, vQw, vQr, vOw, vKV, vKrd, vVrd, vFlo,
     vWl, vWh, vDum, vRSld, vFa, vFl) = [v.alloc('c%d' % i) for i in range(22)]
    vPo = v.alloc('po', 2)
    vCan = vPo[1]
    vT = v.alloc('t', 4)
    rvB = v.alloc('rvB', 2)
    vSp = v.alloc('spare', 2)
    vVm = v.alloc('vm', 4)
    vOne = v.alloc('one', 4)
    vPm = v.alloc('pm', 4)
    assert vOne.base == vVm.base + 4
    vZ = vPm[1]
    vVm1 = R('v', vVm.base + 2, 4)
    mfL = v.alloc('mfL', 20)
    Bt = v.alloc('Bt', 24)
    mfR = v.alloc('mfR', 20)
    aq = v.alloc('aq', 8)
    ak = v.alloc('ak', 8)
    av = v.alloc('av', 8)
    vx = v.alloc('vx', 8)
    rv = v.alloc('rv', 2)
    kp = v.alloc('kp', 2)
    assert Bt.base == mfL.base + 20 and mfR.base == Bt.base + 24
    vSel = vx[4:8]
    kx = R('v', mfL.base, 32)
    rs = kx
    WoT = kx
    qb = R('v', Bt.base + 12, 16)
    ka = R('v', Bt.base + 28, 16)
    wacc = R('v', qb.base, 20)
    Sx = aq
    Sm = ak[4:8]
    kexp = ak[0:4]
    L = ak[0:4]
    P = av[4:8]
    rl = ak[2:4]
    O = aq
    oa = vx
    red = ak[4:8]

    chunks = [('V', b) for b in range(4)] + [('QL', b) for b in range(3)] + [('KL', b) for b in range(3)] + \
             [('QR', b) for b in range(5)] + [('KR', b) for b in range(5)] + [('WO', b) for b in (1, 2, 3)] + \
             [('V', 4), ('QL', 3), ('QL', 4), ('KL', 3), ('KL', 4), ('WO', 4), ('WO', 0)]
    NCH = len(chunks)
    place = {}
    for ci, ch in enumerate(chunks):
        for t in range(2):
            if ci < NCH - NSLOT:
                i = ci * 2 + t
                place[ch + (t,)] = R('a', i * 8, 8) if i < 32 else R('v', 144 + (i - 32) * 8, 8)
            else:
                place[ch + (t,)] = (ci % NSLOT) * 16384 + t * 2048

    def bail(code):
        lab = a.newlabel('ok')
        a(f's_sub_u32 {sBud}, {sBud}, 1')
        a(f's_cbranch_scc0 {lab}')
        a(f's_mov_b32 {sT0}, {code}')
        a('s_branch L_bail')
        a.label(lab)

    lane = aq[0]
    tmp = aq[1]
    t2, t3 = aq[2], aq[3]
    a(f'v_and_b32 {lane}, 63, v0')
    a(f'v_mov_b32 {vZ}, 0')

    def LA(dst, fields, sterms=(), const=0):
        lane_addr(a, dst, lane, tmp, fields, sterms, const, sT0)
    LA(vL16, [(0, 6, 16)])
    LA(vX, [(0, 6, 16)], [(sW, 1024)])
    LA(vD, [(0, 6, 4)], [(sW, 256)], 4096)
    LA(vXs, [(0, 6, 8)], [(sW, 512)])
    a(f'v_and_b32 {t2}, 2, {lane}')
    a(f'v_cmp_ne_u32 vcc, 0, {t2}')
    a(f'v_mov_b32 {t2}, 0x44444444')
    a(f'v_mov_b32 {t3}, 0xeeeeeeee')
    a(f'v_cndmask_b32 {vIdx}, {t2}, {t3}, vcc')
    a(f's_add_u32 {sT1}, {sH}, 16')
    a(f's_cmp_lt_u32 {sH}, 8')
    a(f's_cselect_b32 {sT1}, {sH}, {sT1}')
    a(f's_lshl_b32 {sT2}, {sH}, 1')
    a(f's_add_u32 {sT2}, {sT2}, {sW}')
    a(f's_sub_u32 {sT2}, {sT2}, 40')
    a(f's_cmp_lt_u32 {sH}, 24')
    a(f's_cselect_b32 {sEx}, {sT1}, {sT2}')
    a(f's_cselect_b32 {sT1}, 1, 2')
    a(f's_cmp_lt_u32 {sW}, {sT1}')
    a(f's_cselect_b32 {sIsRed}, 1, 0')
    a(f's_cselect_b32 {sT1}, 0, {OOB}')
    LA(vAGst, [(2, 1, 64), (1, 1, 32), (0, 1, 16), (4, 2, 4)], [(sEx, 128)])
    LA(t3, [(3, 1, 1)], [])
    a(f'v_lshl_add_u32 {t3}, {t3}, 30, {sT1}')
    a(f'v_add_u32 {vAGst}, {t3}, {vAGst}')
    a(f's_lshl_b32 {sEx}, {sEx}, 12')
    LA(vFa, [(0, 1, (F_V - F_K) * 128)])
    LA(vCan, [(0, 5, 32)], [(sW, 1024)])
    LA(t3, [(0, 3, 32)], [(sW, 256)], 4096)
    a(f'v_and_b32 {t2}, 32, {lane}')
    a(f'v_cmp_ne_u32 vcc, 0, {t2}')
    a(f'v_cndmask_b32 {vCan}, {vCan}, {t3}, vcc')
    LA(vRSld, [(1, 1, 512), (4, 2, 128), (2, 2, 32), (0, 1, 16)])
    LA(vOw, [(2, 2, 64), (5, 1, 32), (0, 1, 16), (4, 1, 8), (1, 1, 256)], [(sW, 512)], L_OX)
    LA(t2, [(1, 1, 32)])
    a(f'v_xor_b32 {vOw}, {vOw}, {t2}')
    a(f's_mov_b32 {sLow[0]}, 0x33333333')
    a(f's_mov_b32 {sLow[1]}, 0x33333333')
    for dst, th, rest in ((vRSst1, ([(5, 1, 1)], [(sW, 2)], 0), [(0, 3, 16), (4, 1, 8), (3, 1, 4)]),
                          (vRSst, ([(3, 1, 8), (5, 1, 1)], [(sW, 2)], 8), [(0, 3, 16), (4, 1, 8)])):
        LA(t2, *th)
        a(f'v_add_u32 {t3}, {sH}, {t2}')
        a(f'v_and_b32 {t3}, 31, {t3}')
        LA(dst, rest)
        a(f'v_lshl_add_u32 {dst}, {t2}, 12, {dst}')
        a(f'v_lshl_add_u32 {dst}, {t3}, 7, {dst}')
    LA(t2, [(4, 2, 1)])
    LA(t3, [(2, 2, 1)])
    a(f'v_xor_b32 {t2}, {t2}, {t3}')
    LA(vQw, [(0, 4, 32)], [(sW, 1024)], L_QX)
    a(f'v_lshl_add_u32 {vQw}, {t2}, 3, {vQw}')
    LA(t2, [(0, 2, 1)])
    LA(t3, [(4, 1, 1)])
    a(f'v_xor_b32 {t2}, {t2}, {t3}')
    LA(vQr, [(5, 1, 512), (4, 1, 128), (2, 2, 32)], [], L_QX)
    a(f'v_lshl_add_u32 {vQr}, {t2}, 3, {vQr}')
    a(f'v_xor_b32 {vQr1}, 16, {vQr}')
    LA(vKV, [(0, 6, 16)], [(sW, 2048)])
    LA(vKrd, [(0, 6, 16)])
    LA(vVrd, [(4, 2, 64), (2, 2, 16), (0, 1, 256), (1, 1, 8)], [(sW, 1024)], 8192)
    LA(vWl, [(0, 6, 16)], [(sW, 4096)], L_RING)
    a(f'v_add_u32 {vWh}, 65536, {vWl}')
    LA(t2, [(0, 6, 16)], [(sW, 1024)], L_QX)
    for i in range(4):
        a(f'v_mov_b32 {ak[i]}, 0')
    a(f'ds_write_b128 {t2}, {ak[0:4]}')
    a('s_waitcnt lgkmcnt(0)')
    LA(t2, [], [(sJ, 4096)], (F_EX - F_K) * 128)
    a(f'v_mov_b32 {vFlo}, {OOB}')
    a(f'v_cmp_eq_u32 vcc, 0, {lane}')
    a(f'v_cndmask_b32 {vFlo}, {vFlo}, {t2}, vcc')
    a(f's_cmp_eq_u32 {sW}, 2')
    a(f's_cselect_b32 {sT1}, 0, {OOB}')
    a(f'v_or_b32 {vFlo}, {sT1}, {vFlo}')
    a(f's_lshl_b32 {sMa}, {sW}, 10')
    a(f's_lshl_b32 {sMb}, {sW}, 8')
    a(f's_add_u32 {sMb}, {sMb}, 4096')
    for i in range(4):
        a(f'v_mov_b32 {vOne[i]}, 0x3f803f80')
        a(f'v_mov_b32 {vVm[i]}, 0')
        a(f'v_mov_b32 {vPm[i]}, 0')
    a(f'v_mov_b32 {vPo[0]}, {POISON}')
    a(f'v_and_b32 {t2}, 1, {lane}')
    a(f'v_lshlrev_b32 {t2}, 4, {t2}')
    a(f'v_mov_b32 {tmp}, 0x3f80')
    a(f'v_lshlrev_b32 {vSp[0]}, {t2}, {tmp}')
    a(f's_mov_b32 {sC[0]}, {f32hex(SCALE_LOG2E)}')
    a(f's_mov_b32 {sC[1]}, {f32hex(SCALE_LOG2E)}')
    a(f's_mov_b32 {sHi}, {f32hex(2.0 ** cfg.get("safe", SAFE_T))}')
    a(f's_mov_b32 {sLo}, {f32hex(2.0 ** -cfg.get("safe", SAFE_T))}')
    a(f's_lshl_b32 {sHB}, {sH}, 21')
    a(f's_add_u32 {sHB}, {sHB}, {HR}')
    a(f's_lshl_b32 {sFl}, {sH}, 7')
    a(f's_add_u32 {sFl}, {sFl}, {FLG + F_K * 128}')
    a(f's_add_u32 {sXb}, {sHB}, {HR_X + fb * 131072}')
    a(f's_mov_b32 {sRb}, {AGR + rb}')

    m1 = ak[0:4]
    for i in range(4):
        a(f'v_mov_b32 {m1[i]}, -1')
    a(f's_lshl_b32 {sT2}, {sJ}, 19')
    a(f's_add_u32 {sT2}, {sT2}, {RSB + rb}')
    for slot in range(2):
        a(f's_add_u32 {sT1}, {sT2}, {slot * 163840}')
        a(f'buffer_store_dword {m1[0]}, {vRSst1}, {sWS}, {sT1} offen{stf}')
        a(f'buffer_store_dwordx2 {m1[0:2]}, {vRSst}, {sWS}, {sT1} offen{stf}')
        a(f's_add_u32 {sT1}, {sT1}, 65536')
        a(f'buffer_store_dwordx2 {m1[0:2]}, {vRSst}, {sWS}, {sT1} offen{stf}')
    a(f's_lshl_b32 {sT2}, {sJ}, 16')
    for slot in range(4):
        a(f's_add_u32 {sT1}, {sT2}, {AGB + rb + slot * 8192}')
        a(f'buffer_store_dword {vPo[0]}, {vAGst}, {sWS}, {sT1} offen{stf}')
        for par in range(2):
            a(f's_add_u32 {sT1}, {sT2}, {AGR + rb + slot * 16384 + par * 8192}')
            a(f'buffer_store_dword {vPo[0]}, {vAGst}, {sWS}, {sT1} offen sc1')
    a(f's_lshl_b32 {sT2}, {sJ}, 12')
    a(f's_add_u32 {sT2}, {sT2}, {sXb}')
    for slot in range(8):
        a(f's_add_u32 {sT1}, {sT2}, {slot * 8192}')
        a(f'buffer_store_dwordx2 {vPo[0:2]}, {vXs}, {sWS}, {sT1} offen sc1')

    va = [mfR[i] for i in range(4)]
    vb = [mfR[4 + i] for i in range(4)]
    vra = [mfR[8], mfR[9]]
    vrb = mfR[10]
    vr = mfR[11]
    vc = [mfR[12 + i] for i in range(4)]
    stg = R('v', mfL.base, 16)
    for ip in range(4):
        LA(t2, [(4, 1, 2)], [], ip << 2)
        a(f'v_and_b32 {t3}, 15, {lane}')
        a(f'v_xor_b32 {t2}, {t2}, {t3}')
        LA(va[ip], [(4, 2, 8192)], [(sW, 16 * 8192)], 4 * ip * 8192)
        a(f'v_lshl_add_u32 {va[ip]}, {t2}, 4, {va[ip]}')
        LA(vc[ip], [(4, 2, 8192)], [(sW, 16 * 8192)], (64 * (1 + (ip >> 1)) + 4 * (ip & 1)) * 8192)
        a(f'v_lshl_add_u32 {vc[ip]}, {t2}, 4, {vc[ip]}')
        LA(t2, [(5, 1, 2)], [], 4 * (ip & 1))
        a(f'v_and_b32 {t3}, 7, {lane}')
        a(f'v_xor_b32 {t2}, {t2}, {t3}')
        LA(vb[ip], [(3, 3, 1280)], [(sW, 32 * 1280)], 8 * ip * 1280)
        a(f'v_lshl_add_u32 {vb[ip]}, {t2}, 4, {vb[ip]}')
    rowf = lambda m: [(5, 1, 16 * m), (3, 1, 8 * m), (4, 1, 4 * m), (2, 1, m)]
    LA(t2, [(3, 1, 8), (4, 1, 4), (2, 1, 2)])
    LA(t3, [(1, 1, 1)], [(sW, 4)])
    a(f'v_xor_b32 {t2}, {t2}, {t3}')
    LA(vra[0], rowf(256) + [(0, 1, 8)])
    a(f'v_lshl_add_u32 {vra[0]}, {t2}, 4, {vra[0]}')
    a(f'v_xor_b32 {vra[1]}, 32, {vra[0]}')
    LA(t2, [(3, 1, 4), (4, 1, 2)])
    LA(t3, [(1, 1, 1)], [(sW, 2)])
    a(f'v_xor_b32 {t2}, {t2}, {t3}')
    LA(vrb, rowf(128) + [(0, 1, 8)])
    a(f'v_lshl_add_u32 {vrb}, {t2}, 4, {vrb}')
    sPtr = S['ptrs']
    sAL, sAR, sB0 = sRS, sRS1, sRS2
    a(f's_lshl_b32 {sT1}, {sH}, 8')
    a(f's_mul_i32 {sAL}, {sJ}, {320 * 8192}')
    a(f's_sub_u32 {sAR}, {320 * 8192}, {sAL}')
    a(f's_add_u32 {sAL}, {sAL}, {sT1}')
    a(f's_add_u32 {sAR}, {sAR}, {sT1}')
    a(f's_mul_i32 {sB0}, {sH}, {128 * 1280}')
    a(f's_mul_i32 {sT1}, {sJ}, 640')
    a(f's_add_u32 {sB0}, {sB0}, {sT1}')
    a(f's_lshl_b32 {sM0}, {sW}, 12')
    a(f's_mov_b32 {sWt[2]}, {640 * 4096 * 2}')
    a(f's_mov_b32 {sWt[3]}, 0x20000')
    cur = [None]

    def issue(ci):
        kind, b = chunks[ci]
        mi = {'Q': 0, 'K': 1, 'V': 2, 'W': 3}[kind[0]]
        if cur[0] != mi:
            a(f's_mov_b32 {sWt[0]}, {sPtr[2 * mi]}')
            a(f's_and_b32 {sWt[1]}, {sPtr[2 * mi + 1]}, 0xffff')
            cur[0] = mi
        if mi < 3:
            a(f's_add_u32 {sT0}, {sAR if kind[-1] == "R" else sAL}, {(128 * (max(b - 1, 0) >> 1) + 8 * (max(b - 1, 0) & 1)) * 8192}')
        else:
            a(f's_add_u32 {sT0}, {sB0}, {b * 128}')
        for ip in range(4):
            a(f's_add_u32 m0, {sM0}, {L_RING + (ci % NSLOT) * 16384 + ip * 1024}')
            a(f'buffer_load_dwordx4 {(vb if mi == 3 else vc if b else va)[ip]}, {sWt}, {sT0} offen{ntf} lds')

    for ci in range(NSLOT - 1):
        issue(ci)
    for ci in range(NCH):
        a(f's_waitcnt vmcnt({4 * min(NSLOT - 2, NCH - 1 - ci)})')
        a('s_barrier')
        if ci == 0:
            lab = a.newlabel('arr')
            a(f's_cmp_lg_u32 {sW}, 0')
            a(f's_cbranch_scc1 {lab}')
            a(f'v_mov_b32 {t2}, 1')
            a('s_mov_b64 exec, 1')
            a(f'global_atomic_add {vZ}, {t2}, {S["dbg"]} offset:{4 * (D_RBAR + fb)}')
            a('s_mov_b64 exec, -1')
            a.label(lab)
        if ci + NSLOT - 1 < NCH:
            issue(ci + NSLOT - 1)
        base = L_RING + (ci % NSLOT) * 16384
        kind, b = chunks[ci]
        res = ci >= NCH - NSLOT
        for t in range(2):
            dst = stg[8 * t:8 * t + 8] if res else place[(kind, b, t)]
            if kind != 'WO':
                a(f'v_add_u32 {vr}, {base}, {vra[t]}')
            elif t == 0:
                a(f'v_add_u32 {vr}, {base}, {vrb}')
            for aa in range(4):
                row = 32 * (aa >> 1) + 2 * (aa & 1)
                off = row * 256 if kind != 'WO' else (64 * t + row) * 128
                a(f'ds_read_b64_tr_b16 {dst[2 * aa:2 * aa + 2]}, {vr} offset:{off}')
        a('s_waitcnt lgkmcnt(0)')
        if res:
            a('s_barrier')
            a(f'v_add_u32 {vr}, {(ci % NSLOT) * 16384}, {vWl}')
            for q in range(4):
                a(f'ds_write_b128 {vr}, {stg[4 * q:4 * q + 4]} offset:{q * 1024}')
            a('s_waitcnt lgkmcnt(0)')

    a(f's_mov_b32 {sWt[0]}, {S["mem0"][0]}')
    a(f's_and_b32 {sWt[1]}, {S["mem0"][1]}, 0xffff')
    a(f's_mov_b32 {sWt[2]}, {8 * 1280}')
    LA(t2, [(2, 2, 2560), (0, 1, 1280), (1, 1, 16), (4, 2, 32)])
    a(f's_mul_i32 {sT1}, {sJ}, 640')
    a(f's_sub_u32 {sT2}, 640, {sT1}')
    LA(t3, [(2, 2, 2560), (0, 1, 1280), (1, 1, 128), (4, 2, 32)], [], 128)
    for x, so in ((mfL, sT1), (mfR, sT2)):
        a(f'buffer_load_dwordx4 {x[0:4]}, {t2}, {sWt}, {so} offen')
        for b in range(1, 5):
            a(f'buffer_load_dwordx4 {x[4 * b:4 * b + 4]}, {t3}, {sWt}, {so} offen offset:{256 * ((b - 1) >> 1) + 16 * ((b - 1) & 1)}')
    a('s_waitcnt vmcnt(0)')
    for b in range(5):
        for x in (mfL, mfR):
            a(f'v_max_i32 {x[4 * b]}, {POISON + 1}, {x[4 * b]}')
        a(f'ds_write_b128 {vL16}, {mfL[4 * b:4 * b + 4]} offset:{L_AG + 1024 * b}')
        a(f'ds_write_b128 {vL16}, {mfR[4 * b:4 * b + 4]} offset:{L_RM + 1024 * b}')
        a(f's_lshl_b32 {sRi}, {sJ}, 13')
        a(f's_add_u32 {sRi}, {sRi}, {sXb}')
        a(f's_add_u32 {sRi}, {sRi}, 65536')
        a(f's_add_u32 {sT3}, {sRi}, {1024 * b}')
        a(f'buffer_store_dwordx4 {mfR[4 * b:4 * b + 4]}, {vL16}, {sWS}, {sT3} offen')
    a('s_waitcnt lgkmcnt(0)')
    if census:
        census(t2, t3)
        lab = a.newlabel('par')
        a.label(lab)
        a(f'global_load_dword {t2}, {vZ}, {S["dbg"]} offset:{4 * D_PAR} sc1')
        bail(8)
        a('s_waitcnt vmcnt(0)')
        a(f'v_readfirstlane_b32 {sT1}, {t2}')
        a(f's_cmp_eq_u32 {sT1}, 0')
        a(f's_cbranch_scc1 {lab}')
        a(f's_and_b32 {sT1}, {sT1}, 1')
    else:
        a(f's_mov_b32 {sT1}, {cfg.get("par", 0)}')
    a(f's_lshl_b32 {sT2}, {sT1}, 13')
    a(f's_add_u32 {sRb}, {sRb}, {sT2}')
    a(f's_xor_b32 {sT1}, {sT1}, {sH}')
    a(f's_and_b32 {sT1}, {sT1}, 1')
    a(f's_lshl_b32 {sT1}, {sT1}, 13')
    a(f's_add_u32 {sXb}, {sXb}, {sT1}')
    lab = a.newlabel('kv0')
    a.label(lab)
    a(f'buffer_load_dword {vFl}, {vFa}, {sWS}, {sFl} offen sc1')
    bail(1)
    a('s_waitcnt vmcnt(0)')
    a(f'v_cmp_gt_u32 vcc, 1, {vFl}')
    a(f's_cbranch_vccnz {lab}')
    a(f's_lshl_b32 {sM0}, {sW}, 11')
    a(f's_add_u32 {sImpV}, {sHB}, {HR_VX}')
    a(f's_mov_b32 m0, {sM0}')
    a(f'buffer_load_dwordx4 {vKV}, {sWS}, {sHB} offen sc1 lds')
    a(f'buffer_load_dwordx4 {vKV}, {sWS}, {sHB} offen offset:1024 sc1 lds')
    a(f's_add_u32 m0, {sM0}, 8192')
    a(f'buffer_load_dwordx4 {vKV}, {sWS}, {sImpV} offen sc1 lds')
    a(f'buffer_load_dwordx4 {vKV}, {sWS}, {sImpV} offen offset:1024 sc1 lds')
    lab = a.newlabel('rbar')
    a.label(lab)
    a(f'global_load_dword {t2}, {vZ}, {S["dbg"]} offset:{4 * (D_RBAR + fb)} sc1')
    bail(2)
    a('s_waitcnt vmcnt(0)')
    a(f'v_cmp_gt_u32 vcc, 64, {t2}')
    a(f's_cbranch_vccnz {lab}')
    a('s_barrier')
    for i in range(8):
        a(f'v_mov_b32 {aq[i]}, 0')
        a(f'v_mov_b32 {ak[i]}, 0')
        a(f'v_mov_b32 {av[i]}, 0')
    a(f's_mov_b32 {sStep}, 0')
    a(f's_mov_b32 {sExV}, -1')
    a(f's_mov_b64 {sChk}, -1')
    a(f's_lshl_b32 {sT0}, {sJ}, 18')
    a(f's_add_u32 {sExK}, {sHB}, {HR_KM}')
    a(f's_add_u32 {sExK}, {sExK}, {sT0}')
    a(f's_cmp_eq_u32 {sJ}, 0')
    a(f's_cselect_b64 {sJm}, 0, -1')

    def step_scalars():
        a(f's_bfe_u32 {sTag}, {sStep}, 0x10001')
        a(f's_and_b32 {sT1}, {sStep}, 3')
        a(f's_lshl_b32 {sT0}, {sJ}, 16')
        a(f's_lshl_b32 {sT3}, {sT1}, 13')
        a(f's_add_u32 {sAG}, {sT0}, {sT3}')
        a(f's_add_u32 {sAG}, {sAG}, {AGB + rb}')
        a(f's_xor_b32 {sAGn}, {sAG}, 16384')
        a(f's_add_u32 {sT0}, {sT0}, {sRb}')
        a(f's_lshl_b32 {sT3}, {sT1}, 14')
        a(f's_add_u32 {sRw}, {sT0}, {sT3}')
        a(f's_add_u32 {sRn}, {sT3}, 16384')
        a(f's_and_b32 {sRn}, {sRn}, 65535')
        a(f's_add_u32 {sRn}, {sRn}, {sT0}')
        a(f's_lshl_b32 {sT0}, {sJ}, 12')
        a(f's_add_u32 {sT0}, {sT0}, {sXb}')
        a(f's_add_u32 {sXo}, {sT0}, {sT3}')
        a(f's_xor_b32 {sXi}, {sXo}, 4096')
        a(f's_xor_b32 {sXp}, {sXo}, 32768')
        a(f's_and_b32 {sT0}, {sStep}, 1')
        a(f's_mul_i32 {sT1}, {sT0}, 163840')
        a(f's_lshl_b32 {sT2}, {sJ}, 19')
        a(f's_add_u32 {sT1}, {sT1}, {sT2}')
        a(f's_add_u32 {sRS}, {sT1}, {RSB + rb}')
        a(f's_add_u32 {sRSl}, {sRS}, {sEx}')
        a(f's_add_u32 {sRSl2}, {sRS}, 65536')
        a(f's_add_u32 {sT1}, {sStep}, 1')
        a(f's_min_u32 {sT1}, {sT1}, 63')
        a(f's_lshl_b32 {sT1}, {sT1}, 13')
        a(f's_add_u32 {sImp}, {sHB}, {sT1}')
        a(f's_add_u32 {sImpV}, {sImp}, {HR_VX}')
        a(f's_cmp_eq_u32 {sStep}, 63')
        a(f's_cselect_b64 {sEnd}, -1, 0')
        a(f's_xor_b32 {sT0}, {sT0}, 1')
        a(f's_lshl_b32 {sT0}, {sT0}, 14')
        a(f's_lshl_b32 {sM0}, {sW}, 11')
        a(f's_add_u32 {sM0}, {sM0}, {sT0}')

    NST = 14
    prof = cfg.get('prof')
    sStm0 = sr.alloc('stm', 2 * (NST - 6), align=2) if prof is not None else None
    stm = [sPtr[2 * i:2 * i + 2] for i in range(4)] + [sWt[0:2], sWt[2:4]] + \
          ([sStm0[2 * i:2 * i + 2] for i in range(NST - 6)] if prof is not None else [])

    S['stm'] = stm

    def stamp(i):
        if prof is not None and not cfg.get('at') and i in cfg.get('only', range(NST)):
            a(f's_memrealtime {stm[i]}' if cfg.get('rt') else f's_memtime {stm[i]}')

    def stamp_out():
        if prof is None:
            return
        lab = a.newlabel('so')
        a(f's_cmp_eq_u32 {sStep}, {prof + 1}')
        a(f's_cbranch_scc0 {lab}')
        a('s_waitcnt lgkmcnt(0)')
        a(f's_lshl_b32 {sT1}, {sJ}, 5')
        a(f's_add_u32 {sT1}, {sT1}, {sH}')
        a(f's_lshl_b32 {sT1}, {sT1}, 2')
        a(f's_add_u32 {sT1}, {sT1}, {sW}')
        a(f's_lshl_b32 {sT1}, {sT1}, 7')
        a(f's_add_u32 {sT1}, {sT1}, {TIM + 32}')
        for i in range(NST):
            a(f'v_mov_b32 {vDum}, {stm[i][0]}')
            a(f'buffer_store_dword {vDum}, {vZ}, {sWS}, {sT1} offen offset:{4 * i}')
        a('s_waitcnt vmcnt(0)')
        a.label(lab)
    sCnt = sr.alloc('cnt', 4, align=1) if cfg.get('timing') else None

    def count(i):
        if cfg.get('timing'):
            a(f's_add_u32 {sCnt[i]}, {sCnt[i]}, 1')
    if 'tl' in S:
        S['tl'](3, vT[0], vT[1])
    step_scalars()
    a(f's_mov_b32 {sAGp}, {OOB}')
    if cfg.get('timing'):
        for i in range(4):
            a(f's_mov_b32 {sCnt[i]}, 0')
        a(f's_memtime {sTm}')
        a('s_waitcnt lgkmcnt(0)')
    late = []

    def w1ops(issue):
        labw, labo = a.newlabel('w1'), a.newlabel('w1ok')
        ops = []
        if not cfg.get('noimp'):
            ops += [lambda: (a(f's_add_u32 {sT1}, {sStep}, 2'), a(f's_min_u32 {sT1}, {sT1}, 64'),
                             a(f'v_cmp_gt_u32 vcc, {sT1}, {vFl}')),
                    lambda: (a(f's_cbranch_vccnz {labw}'), a.label(labo), a(f's_mov_b32 m0, {sM0}'),
                             issue(f'buffer_load_dwordx4 {vKV}, {sWS}, {sImp} offen sc1 lds')),
                    lambda: (a(f's_mov_b32 m0, {sM0}'),
                             issue(f'buffer_load_dwordx4 {vKV}, {sWS}, {sImp} offen offset:1024 sc1 lds')),
                    lambda: (a(f's_add_u32 m0, {sM0}, 8192'),
                             issue(f'buffer_load_dwordx4 {vKV}, {sWS}, {sImpV} offen sc1 lds')),
                    lambda: (a(f's_add_u32 m0, {sM0}, 8192'),
                             issue(f'buffer_load_dwordx4 {vKV}, {sWS}, {sImpV} offen offset:1024 sc1 lds')),
                    lambda: issue(f'buffer_load_dword {vFl}, {vFa}, {sWS}, {sFl} offen sc1')]
            late.append((labw, labo))
        st = [lambda: issue(f'buffer_store_dwordx2 {vPo}, {vXs}, {sWS}, {sXp} offen sc1'),
              lambda: issue(f'buffer_store_dword {vPo[0]}, {vAGst}, {sWS}, {sRn} offen sc1')]
        if not cfg.get('noexp'):
            st += [lambda: (a(f'v_mov_b32 {vT[1]}, {sStep}'),
                            issue(f'buffer_store_dword {vT[1]}, {vFlo}, {sWS}, {sFl} offen sc1'))]
        ops = st + ops if cfg.get('stfirst', 0) else ops + st
        return ops

    def image(src, dst, can, issue=None, half=None):
        issue = issue or a
        if half != 1:
            issue(f'buffer_load_dword {can}, {vCan}, {sWS}, {src} offen sc1')
            a(f's_add_u32 m0, {sMa}, {dst}')
            issue(f'buffer_load_dwordx4 {vX}, {sWS}, {src} offen sc1 lds')
        if half != 0:
            a(f's_add_u32 m0, {sMb}, {dst}')
            issue(f'buffer_load_dword {vD}, {sWS}, {src} offen sc1 lds')
    a('s_waitcnt vmcnt(0)')
    for b in range(5):
        a(f'ds_read_b128 {mfL[4 * b:4 * b + 4]}, {vL16} offset:{L_AG + 1024 * b}')
    image(sRi, L_RM, rv[0], None, None if cfg.get('early', 0) else 0)

    a.label(LS)
    stamp(0)
    vm = Cnt(a, 'vmcnt', 63)
    ds = Cnt(a, 'lgkmcnt', 15)
    EARLY = cfg.get('early', 0)
    vm.note('R', 3 if EARLY else 2)
    for b in range(5):
        ds.note('L%d' % b)

    def emit(x):
        if callable(x):
            x()
        else:
            a(x)

    def warm(n):
        for _ in range(n):
            a(f'v_mov_b32 {vDum}, 0')

    def wl(off):
        return (vWl, off) if off < 65536 else (vWh, off - 65536)

    def fold(x, t):
        return f'v_pk_add_f32 {x[4 * t:4 * t + 2]}, {x[4 * t:4 * t + 2]}, {x[4 * t + 2:4 * t + 4]}'

    def fold2(x, t, d=None):
        d = x[4 * t:4 * t + 2] if d is None else d
        return [f'v_add_f32 {d[i]}, {x[4 * t + i]}, {x[4 * t + 2 + i]}' for i in range(2)]

    acc = {'V': av, 'QL': aq, 'KL': ak, 'QR': aq, 'KR': ak}
    seq = []
    for kind, order in (('V', [(0, 0), (0, 1), (1, 0), (1, 1), (2, 0), (2, 1), (3, 0), (4, 0), (3, 1), (4, 1)]),
                        ('QL', [(0, 0), (0, 1), (3, 0), (1, 0), (3, 1), (1, 1), (4, 0), (2, 0), (2, 1), (4, 1)]),
                        ('KL', [(0, 0), (3, 0), (0, 1), (1, 0), (3, 1), (1, 1), (4, 0), (2, 0), (4, 1), (2, 1)])):
        seq += [(kind, b, t) for b, t in order]
    ldsops = [i for i, o in enumerate(seq) if isinstance(place[o], int)]
    buf = {i: Bt[8 * (k % 3):8 * (k % 3) + 8] for k, i in enumerate(ldsops)}

    def btload(k, half):
        i = ldsops[k]
        base, off = wl(place[seq[i]] + half * 1024)
        ds.issue(f'ds_read_b128 {buf[i][4 * half:4 * half + 4]}, {base} offset:{off}', 'B%d' % i)
    fill = {i: [] for i in range(len(seq))}
    for k in range(3):
        fill[2 * k] += [lambda k=k: btload(k, 0)]
        fill[2 * k + 1] += [lambda k=k: btload(k, 1)]
    for k in range(3, len(ldsops)):
        p = ldsops[k - 3]
        fill[p] += [lambda k=k: btload(k, 0)]
        fill[p + 1] += [lambda k=k: btload(k, 1)]

    def put(lst, start, per):
        for i, x in enumerate(lst):
            fill[start + i // per].append(x)
    fill[10].append('s_nop 0')
    fill[11].append('s_nop 1')
    put(fold2(av, 0) + fold2(av, 1, av[2:4]) + [f'v_cvt_pk_bf16_f32 {av[4]}, {av[0]}, {av[1]}',
        f'v_cvt_pk_bf16_f32 {av[5]}, {av[2]}, {av[3]}', f'v_max_i32 {av[4]}, {POISON + 1}, {av[4]}',
        lambda: vm.issue(f'buffer_store_dwordx2 {av[4:6]}, {vXs}, {sWS}, {sXo} offen sc1', 'stv')], 12, cfg.get('vper', 4))
    if not EARLY:
        fill[cfg.get('r1pos', 1)].append(lambda: image(sRi, L_RM, None, lambda x: vm.issue(x, 'R'), 1))
    for p in cfg.get('rextra', []):
        fill[p].append(lambda: image(sRi, L_RM, rv[1], lambda x: vm.issue(x, 'R3'), 0))
        fill[p + 2].append(lambda: image(sRi, L_RM, None, lambda x: vm.issue(x, 'R3'), 1))
    rpos = cfg.get('rpos', 27)
    labr, labrj = a.newlabel('rretry'), a.newlabel('rjoin')
    fill[rpos - 2].append(lambda: (vm.wait('R'), a(f'v_cmp_eq_u32 vcc, {vPo[0]}, {rv[0]}')))

    nr3 = []

    def rstage():
        nr3.append(vm.count_after('R3') if 'R3' in vm.ops else None)
        a(f's_cbranch_vccnz {labr}')
        a.label(labrj)
        a('s_barrier')
        stamp(4)
        for b in range(5):
            ds.issue(f'ds_read_b128 {mfR[4 * b:4 * b + 4]}, {vL16} offset:{L_RM + 1024 * b}', 'R%d' % b)
    fill[rpos].append(rstage)
    late_w1 = w1ops(vm.issue)
    for p in cfg.get('w1at', [2, 4, 7, 10, 14, 17, 19, 21, 23]):
        if late_w1:
            fill[p].append(late_w1.pop(0))
    for i, o in enumerate(seq):
        kind, b, t = o
        if kind == 'V':
            ds.wait('L%d' % b)
        if i in buf:
            ds.wait('B%d' % i)
        a(f'v_smfmac_f32_16x16x64_bf16 {acc[kind][4 * t:4 * t + 4]}, {mfL[4 * b:4 * b + 4]}, {buf.get(i, place[o])}, {vIdx}')
        for x in fill[i]:
            emit(x)
        if i == 9:
            stamp(1)
        if i == 19:
            stamp(2)
    stamp(3)
    kq = [('KR', b, t) for b in range(5) for t in range(2)]

    def smf(o, src=mfR):
        kind, b, t = o
        a(f'v_smfmac_f32_16x16x64_bf16 {acc[kind][4 * t:4 * t + 4]}, {src[4 * b:4 * b + 4]}, {place[o]}, {vIdx}')
    ldv = f'buffer_load_dwordx2 {rv}, {vXs}, {sWS}, {sXi} offen sc1'
    ldv2 = f'buffer_load_dwordx2 {rvB}, {vXs}, {sWS}, {sXi} offen sc1'
    kfill = [lambda i=i: ds.issue(f'ds_read_b128 {kx[4 * i:4 * i + 4]}, {vKrd} offset:{1024 * i}', 'kx') for i in range(8)] + \
            [lambda t=t: [ds.issue(f'ds_read_b64_tr_b16 {vx[4 * t + 2 * T:4 * t + 2 * T + 2]}, {vVrd} offset:{4096 * T + 512 * t}', 'vx')
                          for T in range(2)] for t in range(2)]
    for b in range(5):
        ds.wait('R%d' % b)
        smf(('QR', b, 0))
        emit(kfill.pop(0))
        smf(('QR', b, 1))
        emit(kfill.pop(0))
        if b < 4:
            for _ in range(cfg.get('kint', 0)):
                if kq[0][1] <= b:
                    smf(kq.pop(0))
        if b == cfg.get('ldvpos', 4):
            vm.issue(ldv, 'ldv')
        if b == cfg.get('ldvpos2', 5):
            vm.issue(ldv2, 'ldv2')
        if late_w1 and b in cfg.get('w1q', []):
            emit(late_w1.pop(0))
    stamp(5)
    qep = fold2(aq, 0) + fold2(aq, 1) + [f'v_cvt_pk_bf16_f32 {aq[0]}, {aq[0]}, {aq[1]}', f'v_cvt_pk_bf16_f32 {aq[1]}, {aq[4]}, {aq[5]}']
    kep = fold2(ak, 0) + fold2(ak, 1) + \
        [f'v_cvt_pk_bf16_f32 {kp[0]}, {ak[0]}, {ak[1]}', f'v_cvt_pk_bf16_f32 {kp[1]}, {ak[4]}, {ak[5]}']

    def smx(t, u):
        c = '0' if u == 0 else str(Sx[4 * t:4 * t + 4])
        a(f'v_mfma_f32_16x16x32_bf16 {Sx[4 * t:4 * t + 4]}, {kx[(t * 4 + u) * 4:(t * 4 + u) * 4 + 4]}, {qb[4 * u:4 * u + 4]}, {c}')

    def smm(u):
        c = '0' if u == 0 else str(Sm)
        a(f'v_mfma_f32_16x16x32_bf16 {Sm}, {ka[4 * u:4 * u + 4]}, {qb[4 * u:4 * u + 4]}, {c}')

    def qread(u):
        for aa in range(2):
            ds.issue(f'ds_read_b64_tr_b16 {qb[4 * u + 2 * aa:4 * u + 2 * aa + 2]}, {(vQr, vQr1)[aa]} offset:{u * 1024 + aa * 256}', 'q%d' % u)

    def kread(u):
        for aa in range(2):
            ds.issue(f'ds_read_b64_tr_b16 {ka[4 * u + 2 * aa:4 * u + 2 * aa + 2]}, {(vQr, vQr1)[aa]} offset:{4096 + u * 1024 + aa * 256}', 'k%d' % u)

    def wot1(i):
        b, bb = ((4, 0), (4, 1), (0, 0), (0, 1))[i // 2]
        base, off = wl(place[('WO', b, bb)] + (i & 1) * 1024)
        ds.issue(f'ds_read_b128 {WoT[4 * i:4 * i + 4]}, {base} offset:{off}', 'wo%d' % (i // 2))

    def knext(pad=None):
        if kq:
            smf(kq.pop(0))
        elif pad:
            warm(pad)
    knext()
    if late_w1:
        emit(late_w1.pop(0))
    knext()
    for x in qep:
        a(x)
    ds.issue(f'ds_write2_b32 {vQw}, {aq[0]}, {aq[1]} offset0:0 offset1:128', 'qw')
    knext(4)
    if cfg.get('ldvpos2', 5) == 5:
        vm.issue(ldv2, 'ldv2')
    knext(4)
    if not cfg.get('noimp'):
        a(f'v_xor_b32 {vKrd}, 16384, {vKrd}')
    knext(4)
    if late_w1:
        emit(late_w1.pop(0))
    knext(4)
    if not cfg.get('noimp'):
        a(f'v_xor_b32 {vVrd}, 16384, {vVrd}')
    while len(kq) > cfg.get('kleft', 4):
        knext()
    vm.wait('R3')
    ds.wait('qw')
    a('s_barrier')
    assert not any(o[1] == 0 for o in kq)
    for u in range(4):
        qread(u)
        knext(3)
        if u == 2 and late_w1:
            emit(late_w1.pop(0))
    assert not kq
    stamp(6)
    e0 = [f'v_exp_f32 {Sx[i]}, {Sx[i]}' for i in range(4)] + \
         [f'v_cvt_pk_bf16_f32 {P[0]}, {Sx[0]}, {Sx[1]}', f'v_cvt_pk_bf16_f32 {P[1]}, {Sx[2]}, {Sx[3]}']
    e1 = [f'v_exp_f32 {Sx[i]}, {Sx[i]}' for i in range(4, 8)] + \
         [f'v_cvt_pk_bf16_f32 {P[2]}, {Sx[4]}, {Sx[5]}', f'v_cvt_pk_bf16_f32 {P[3]}, {Sx[6]}, {Sx[7]}']
    for u in range(4):
        ds.wait('q%d' % u)
        smx(0, u)
        if u == 1 and late_w1:
            emit(late_w1.pop(0))
        if u >= 2:
            for x in kep[3 * u - 6:3 * u - 3]:
                a(x)
    ds.issue(f'ds_write2st64_b32 {vQw}, {kp[0]}, {kp[1]} offset0:16 offset1:18', 'kw')
    for u in range(4):
        smx(1, u)
        if u in (0, 3) and late_w1:
            emit(late_w1.pop(0))
        a(e0[u])
    assert not late_w1
    a(e0[4])
    a(e0[5])
    ds.wait('kw')
    a('s_barrier')
    for u in range(4):
        kread(u)
        a(e1[u])
    for u in range(4):
        ds.wait('k%d' % u)
        smm(u)
        if u < 2:
            a(e1[4 + u])
    stamp(7)
    a(f'v_mfma_f32_16x16x32_bf16 {O[0:4]}, {vx[0:4]}, {P}, 0')
    a(f'v_mfma_f32_16x16x32_bf16 {O[4:8]}, {vx[4:8]}, {P}, 0')
    a(f'v_mfma_f32_16x16x32_bf16 {L}, {P}, {vOne}, 0')
    labv, labvr = a.newlabel('v'), a.newlabel('vretry')
    nv2 = vm.count_after('ldv2')
    vm.wait('ldv')
    a.label(labv)
    a(f'v_cmp_eq_u32 vcc, {vPo[0]}, {rv[0]}')
    a(f'v_lshlrev_b32 {vT[0]}, 16, {rv[0]}')
    a(f'v_and_b32 {vT[1]}, 0xffff0000, {rv[0]}')
    a(f'v_lshlrev_b32 {vT[2]}, 16, {rv[1]}')
    a(f'v_and_b32 {vT[3]}, 0xffff0000, {rv[1]}')
    a(f's_cbranch_vccnz {labvr}')
    stamp(8)
    a(f'v_mul_f32 {Sm[0]}, {sC[0]}, {Sm[0]}')
    a(f'v_mul_f32 {Sm[1]}, {sC[0]}, {Sm[1]}')
    a(f'v_exp_f32 {Sm[0]}, {Sm[0]}')
    a(f'v_exp_f32 {Sm[1]}, {Sm[1]}')
    for i in range(4):
        a(f'v_add_f32 {vT[i]}, {vT[i]}, {av[i]}')
    a(f'v_cvt_pk_bf16_f32 {vPm[0]}, {Sm[0]}, {Sm[1]}')
    a(f'v_cvt_pk_bf16_f32 {vVm[0]}, {vT[0]}, {vT[1]}')
    a(f'v_cvt_pk_bf16_f32 {vVm[2]}, {vT[2]}, {vT[3]}')
    labs, labj = a.newlabel('slowsm'), a.newlabel('smjoin')
    if not cfg.get('noexp'):
        a(f'v_cndmask_b32 {vT[0]}, {kp[0]}, {vVm[0]}, {sJm}')
    a.label(labj)
    a(f'v_mfma_f32_16x16x32_bf16 {O[0:4]}, {vVm}, {vPm}, {O[0:4]}')
    if not cfg.get('noexp'):
        a(f'v_cndmask_b32 {vT[1]}, {kp[1]}, {vVm[2]}, {sJm}')
    a(f'v_mfma_f32_16x16x32_bf16 {O[4:8]}, {vVm1}, {vPm}, {O[4:8]}')
    if not cfg.get('noexp'):
        a(f'buffer_store_dwordx2 {vT[0:2]}, {vXs}, {sWS}, {sExK} offen sc1')
    zB = R('v', vPm.base + 2, 4)
    a(f's_mov_b64 vcc, {sLow}')
    a(f'v_bfe_u32 {vDum}, {vL16}, 8, 1')
    a(f'v_lshl_or_b32 {vDum}, {vDum}, 5, {vZ}')
    a(f'v_xor_b32 {vDum}, {vDum}, {vL16}')
    a(f'v_cvt_pk_bf16_f32 {O[0]}, {O[0]}, {O[1]}')
    a(f'v_cvt_pk_bf16_f32 {O[1]}, {O[2]}, {O[3]}')
    a(f'v_cvt_pk_bf16_f32 {O[2]}, {O[4]}, {O[5]}')
    a(f'v_cvt_pk_bf16_f32 {O[3]}, {O[6]}, {O[7]}')
    a(f'v_mfma_f32_16x16x32_bf16 {L}, {vPm}, {vOne}, {L}')
    for i in range(2):
        a(f'v_cndmask_b32_dpp {O[i]}, {O[2 + i]}, {O[i]}, vcc quad_perm:[0,1,0,1] row_mask:0xf bank_mask:0xf')
    ds.issue(f'ds_write_b64 {vOw}, {O[0:2]}', 'ow')
    stamp(9)
    a(f'v_mfma_f32_16x16x32_bf16 {wacc[16:20]}, {vPm}, {zB}, 0')
    a(f'v_mfma_f32_32x32x16_bf16 {wacc[0:16]}, {vPm}, {zB}, 0')
    a(f'v_max_f32 {vT[2]}, {L[0]}, {L[1]}')
    a(f'v_min_f32 {vT[3]}, {L[0]}, {L[1]}')
    a(f'v_cmp_nge_f32 vcc, {sHi}, {vT[2]}')
    a(f'v_cmp_nle_f32 {sTm2}, {sLo}, {vT[3]}')
    a(f'v_rcp_f32 {rl[0]}, {L[0]}')
    a(f'v_rcp_f32 {rl[1]}, {L[1]}')

    def idle():
        a(f'v_mfma_f32_16x16x32_bf16 {Sm}, {vOne}, {vOne}, {Sm}')
    a(f's_or_b64 vcc, vcc, {sTm2}')
    a(f's_and_b64 vcc, vcc, {sChk}')
    a(f's_or_b64 vcc, vcc, {sEnd}')
    for _ in range(cfg.get('idle1', 1)):
        idle()
    ds.wait('ow')
    a('s_barrier')
    ds.issue(f'ds_read_b128 {oa[0:4]}, {vDum} offset:{L_OX}', 'o0')
    ds.issue(f'ds_read_b128 {oa[4:8]}, {vDum} offset:{L_OX + 1024}', 'o1')
    idle()
    a(f's_cbranch_vccnz {labs}')
    for i in range(cfg.get('idle2', 2)):
        idle()
        wot1(i)
    wn = cfg.get('idle2', 2)
    a(f's_mov_b64 {sChk}, -1')
    stamp(10)

    W = [wacc[4 * b:4 * b + 4] for b in range(5)]

    def fin(b, dst, packed=False):
        if packed:
            return [fold(W[b], 0), f'v_pk_mul_f32 {W[b][0:2]}, {W[b][0:2]}, {rl}', f'v_cvt_pk_bf16_f32 {dst}, {W[b][0]}, {W[b][1]}']
        return fold2(W[b], 0) + [f'v_mul_f32 {W[b][i]}, {W[b][i]}, {rl[i]}' for i in range(2)] + \
            [f'v_cvt_pk_bf16_f32 {dst}, {W[b][0]}, {W[b][1]}']

    def tag(x):
        return f'v_and_or_b32 {x}, {x}, -2, {sTag}'
    fw = {k: [] for k in range(10)}
    e = fin(1, vT[0]) + [tag(vT[0])] + fin(2, vT[1]) + [f'buffer_store_dwordx2 {vT[0:2]}, {vRSst}, {sWS}, {sRS} offen{stf}'] + \
        fin(3, vT[2]) + [tag(vT[2])]
    rest = [lambda i=i: wot1(i) for i in range(wn, 8)]
    for k in range(4):
        fw[k] = rest[:2 if k >= 2 else 1]
        rest = rest[len(fw[k]):]
    assert not rest
    for k, n in ((3, 1), (4, 2), (5, 3), (6, 3), (7, 3), (8, 3), (9, 3)):
        fw[k] += e[:n]
        e = e[n:]
    tail = e + fin(4, vT[3]) + [f'buffer_store_dwordx2 {vT[2:4]}, {vRSst}, {sWS}, {sRSl2} offen{stf}'] + \
        fin(0, vT[0], True) + [tag(vT[0]), f'buffer_store_dword {vT[0]}, {vRSst1}, {sWS}, {sRS} offen{stf}']
    k = 0
    for b in (1, 2, 3, 4, 0):
        for bb in range(2):
            ds.wait('o%d' % bb)
            wop = place[('WO', b, bb)] if b in (1, 2, 3) else WoT[8 * (2 * (b == 0) + bb):8 * (2 * (b == 0) + bb) + 8]
            if b in (4, 0):
                ds.wait('wo%d' % (2 * (b == 0) + bb))
            a(f'v_smfmac_f32_16x16x64_bf16 {W[b]}, {oa[4 * bb:4 * bb + 4]}, {wop}, {vIdx}')
            for x in fw[k]:
                emit(x)
            k += 1
    for x in tail:
        a(x)
    stamp(11)
    ND = cfg.get('rsdepth', 2)
    labl, labd, labn = a.newlabel('rsl'), a.newlabel('rsd'), a.newlabel('nored')
    a(f's_mov_b32 {sAGp}, {sAG}')
    a(f's_xor_b32 {sRi}, {sRw}, 0x10000')
    zs = [f'v_mov_b32 {x[i]}, 0' for x in (av, aq) for i in range(8)] + [f'v_mov_b32 {ak[i]}, 0' for i in range(4)]

    big = R('v', mfL.base, 64)
    sets = [big[16 * i:16 * i + 16] for i in range(ND)]
    cans = [vx[0], vx[1], vx[2], vx[3]]
    mk = []
    for i in range(4):
        m8 = 3 << (2 * i)
        m32 = m8 * 0x01010101
        mk += [f's_mov_b32 vcc_lo, {m32:#x}', f's_mov_b32 vcc_hi, {m32:#x}', f'v_cndmask_b32 {vSel[i]}, {vZ}, {vSp[0]}, vcc']

    def rsload(i):
        for jj in range(4):
            a(f'buffer_load_dwordx4 {sets[i][4 * jj:4 * jj + 4]}, {vRSld}, {sWS}, {sRSl} offen offset:{jj * 1024} sc1')
    nz0 = cfg.get('rsdelay', 48)
    for x in zs[:nz0]:
        a(x)
    labz = a.newlabel('zrest')
    a(f's_cmp_eq_u32 {sIsRed}, 0')
    a(f's_cbranch_scc1 {labz}')
    for x in mk:
        a(x)
    warm(max(0, nz0 - len(zs) - len(mk)))
    for i in range(ND - 1):
        rsload(i)
        g = cfg.get('rsgap', 16)
        for x in zs[nz0:][:g]:
            a(x)
        warm(g - len(zs[nz0:][:g]))
        nz0 += g
    for x in zs[nz0:]:
        a(x)
    a.label(labl)
    for i in range(ND):
        rsload((i + ND - 1) % ND)
        d = sets[i]
        for jj in range(4):
            a(f's_waitcnt vmcnt({4 * ND - 1 - jj})')
            a(f'v_mfma_f32_16x16x32_bf16 {red}, {d[4 * jj:4 * jj + 4]}, {vSel}, {"0" if jj == 0 else red}')
            if jj == 1:
                a(f'v_bitop3_b32 {vT[0]}, {d[0]}, {d[4]}, {sTag} bitop3:0x7e')
            if jj == 3:
                a(f'v_bitop3_b32 {vT[1]}, {d[8]}, {d[12]}, {sTag} bitop3:0x7e')
        a(f'v_bitop3_b32 {vT[0]}, {vT[0]}, {vT[1]}, 1 bitop3:0xa8')
        a(f'v_cmp_ne_u32 vcc, 0, {vT[0]}')
        count(0)
        a(f's_cbranch_vccz {labd}')
    bail(4)
    a(f's_branch {labl}')
    a.label(labd)
    a(f'v_pk_add_f32 {red[0:2]}, {red[0:2]}, {red[2:4]}')
    a(f'v_cvt_pk_bf16_f32 {vT[2]}, {red[0]}, {red[1]}')
    a(f'v_max_i32 {vT[2]}, {POISON + 1}, {vT[2]}')
    a(f'buffer_store_dword {vT[2]}, {vAGst}, {sWS}, {sRw} offen sc1')
    a(f'buffer_store_dword {vT[2]}, {vAGst}, {sWS}, {sAG} offen{stf}')
    a(f'buffer_store_dword {vPo[0]}, {vAGst}, {sWS}, {sAGn} offen{stf}')
    a.label(labn)
    a('s_barrier')
    stamp(12)
    for i in range(4, 8):
        a(f'v_mov_b32 {ak[i]}, 0')
    marks = []
    n0 = len(a.ins)
    a(f's_add_u32 {sStep}, {sStep}, 1')
    a(f's_add_u32 {sExK}, {sExK}, 2048')
    step_scalars()
    sc = a.ins[n0:]
    del a.ins[n0:]
    k = min(cfg.get('cut', 30), len(sc))
    while k < len(sc) and sc[k].op.startswith('s_cselect'):
        k += 1
    a.ins += sc[:k]
    warm(cfg.get('cutwarm', 10))
    image(sAGp, L_AG, vx[0])
    a.ins += sc[k:]
    nafter = 0
    if EARLY:
        warm(cfg.get('rwarm', 0))
        a('s_barrier')
        image(sRi, L_RM, rv[0])
        nafter = 3
    labk, labsp = a.newlabel('lok'), a.newlabel('lspin')
    a(f's_waitcnt vmcnt({nafter})')
    a(f'v_cmp_eq_u32 vcc, {vPo[0]}, {vx[0]}')
    a(f's_cbranch_vccnz {labsp}')
    a.label(labk)
    a('s_barrier')
    stamp(13)
    for b in range(5):
        a(f'ds_read_b128 {mfL[4 * b:4 * b + 4]}, {vL16} offset:{L_AG + 1024 * b}')
    if not EARLY:
        image(sRi, L_RM, rv[0], None, 0)
    stamp_out()
    a(f's_branch {LS}')
    a.label(labz)
    for x in zs[cfg.get('rsdelay', 48):]:
        a(x)
    a(f's_branch {labn}')

    def spin(lab, back, src, dst, cans, code, cnt, first, after=None, pre=None):
        a.label(lab)
        lp, out = a.newlabel('sp'), a.newlabel('spo')
        if pre is not None:
            a(f's_waitcnt vmcnt({pre})')
            a(f'v_cmp_eq_u32 vcc, {vPo[0]}, {cans[1]}')
            a(f's_cbranch_vccz {back}')
        if first:
            image(src, dst, cans[1])
        a.label(lp)
        for i in (1, 0):
            count(cnt)
            image(src, dst, cans[1 - i])
            a('s_waitcnt vmcnt(3)')
            a(f'v_cmp_eq_u32 vcc, {vPo[0]}, {cans[i]}')
            a(f's_cbranch_vccz {out}')
        bail(code)
        a(f's_branch {lp}')
        a.label(out)
        if after:
            a(after)
        a(f's_branch {back}')
    NR3 = nr3[0]
    spin(labsp, labk, sAGp, L_AG, [vx[0], vx[1]], 5, 3, True)
    spin(labr, labrj, sRi, L_RM, [rv[0], rv[1]], 6, 1, True, 's_waitcnt vmcnt(0)', NR3)

    for labw, labo in late:
        a.label(labw)
        a(f'buffer_load_dword {vFl}, {vFa}, {sWS}, {sFl} offen sc1')
        bail(3)
        a('s_waitcnt vmcnt(0)')
        a(f'v_cmp_gt_u32 vcc, {sT1}, {vFl}')
        a(f's_cbranch_vccnz {labw}')
        a(f's_branch {labo}')
    a.label(labvr)
    labv2 = a.newlabel('vr2')
    a(f's_waitcnt vmcnt({nv2})')
    a(f'v_mov_b32 {rv[0]}, {rvB[0]}')
    a(f'v_mov_b32 {rv[1]}, {rvB[1]}')
    a(f'v_cmp_eq_u32 vcc, {vPo[0]}, {rvB[0]}')
    a(f's_cbranch_vccz {labv}')
    a.label(labv2)
    a(ldv)
    bail(7)
    count(2)
    a('s_waitcnt vmcnt(0)')
    a(f'v_cmp_eq_u32 vcc, {vPo[0]}, {rv[0]}')
    a(f's_cbranch_vccnz {labv2}')
    a(f's_branch {labv}')
    a.label(labs)
    a(f's_cmp_eq_u32 {sStep}, 63')
    a(f's_cbranch_scc1 {LD}')
    count(3)
    a(f's_mov_b64 {sChk}, 0')
    a('s_waitcnt lgkmcnt(0)')
    a('s_barrier')
    a(f'v_xor_b32 {vT[2]}, 16384, {vKrd}' if not cfg.get('noimp') else f'v_mov_b32 {vT[2]}, {vKrd}')
    a(f'v_xor_b32 {vT[3]}, 16384, {vVrd}' if not cfg.get('noimp') else f'v_mov_b32 {vT[3]}, {vVrd}')
    for i in range(8):
        a(f'ds_read_b128 {kx[4 * i:4 * i + 4]}, {vT[2]} offset:{1024 * i}')
    for t in range(2):
        for T in range(2):
            a(f'ds_read_b64_tr_b16 {vx[4 * t + 2 * T:4 * t + 2 * T + 2]}, {vT[3]} offset:{4096 * T + 512 * t}')
    a('s_waitcnt lgkmcnt(0)')
    for u in range(4):
        qread(u)
        kread(u)
        a('s_waitcnt lgkmcnt(0)')
    for t in range(2):
        for u in range(4):
            smx(t, u)
    for u in range(4):
        smm(u)
    vals = [Sx[i] for i in range(8)] + [Sm[0], Sm[1]]
    a(f'v_mul_f32 {Sm[0]}, {sC[0]}, {Sm[0]}')
    a(f'v_mul_f32 {Sm[1]}, {sC[0]}, {Sm[1]}')
    m = vT[2]
    a(f'v_max3_f32 {m}, {vals[0]}, {vals[1]}, {vals[2]}')
    for i in range(3, 9, 2):
        a(f'v_max3_f32 {m}, {m}, {vals[i]}, {vals[i + 1]}')
    a(f'v_max_f32 {m}, {m}, {vals[9]}')
    a(f'v_mov_b32 {vT[3]}, {m}')
    a(f'v_permlane32_swap_b32 {vT[3]}, {m}')
    a(f'v_max_f32 {m}, {m}, {vT[3]}')
    a(f'v_mov_b32 {vT[3]}, {m}')
    a(f'v_permlane16_swap_b32 {vT[3]}, {m}')
    a(f'v_max_f32 {m}, {m}, {vT[3]}')
    for x in vals:
        a(f'v_sub_f32 {x}, {x}, {m}')
        a(f'v_exp_f32 {x}, {x}')
    for k in range(4):
        a(f'v_cvt_pk_bf16_f32 {P[k]}, {Sx[2 * k]}, {Sx[2 * k + 1]}')
    a(f'v_cvt_pk_bf16_f32 {vPm[0]}, {Sm[0]}, {Sm[1]}')
    a(f'v_mfma_f32_16x16x32_bf16 {O[0:4]}, {vx[0:4]}, {P}, 0')
    a(f'v_mfma_f32_16x16x32_bf16 {O[4:8]}, {vx[4:8]}, {P}, 0')
    a(f'v_mfma_f32_16x16x32_bf16 {L}, {P}, {vOne}, 0')
    a(f's_branch {labj}')
    a.label(LD)
    a('s_waitcnt vmcnt(0)')
    a(f'v_mov_b32 {vT[0]}, 64')
    a(f'buffer_store_dword {vT[0]}, {vFlo}, {sWS}, {sFl} offen sc1')
    if cfg.get('timing'):
        a(f's_memtime {sTm2}')
        a('s_waitcnt lgkmcnt(0)')
        a(f's_sub_u32 {sT0}, {sTm2[0]}, {sTm[0]}')
        a(f's_lshl_b32 {sT1}, {sJ}, 5')
        a(f's_add_u32 {sT1}, {sT1}, {sH}')
        a(f's_lshl_b32 {sT1}, {sT1}, 2')
        a(f's_add_u32 {sT1}, {sT1}, {sW}')
        a(f's_lshl_b32 {sT1}, {sT1}, 7')
        a(f's_add_u32 {sT1}, {sT1}, {TIM}')
        outs = [sT0, sBud] + [sCnt[i] for i in range(4)]
        for i, x in enumerate(outs):
            a(f'v_mov_b32 {vT[0]}, {x}')
            a(f'buffer_store_dword {vT[0]}, {vZ}, {sWS}, {sT1} offen offset:{4 * i}')
    if 'tl' in S:
        S['tl'](4, vT[0], vT[1])
    a('s_endpgm')
```

```python
import math
from dsl import R, Regs, Cnt
from layout import *
from role_r2 import lane_addr, f32hex, SCALE_LOG2E

MF32 = 'v_mfma_f32_32x32x16_bf16'
MF16 = 'v_mfma_f32_16x16x32_bf16'
LOG2E = math.log2(math.e)


class Ctx:
    def __init__(self, a, S, cfg, name):
        self.a, self.S, self.cfg, self.name = a, S, cfg, name
        self.sr = Regs('s', S['free'], 102)
        self.v = Regs('v', 1, 256)
        self.lane = self.v.alloc('lane')
        self.tmp = self.v.alloc('tmp')
        self.vZ = self.v.alloc('z')
        self.vLin = self.v.alloc('lin')
        self.t = self.v.alloc('t', 4)
        a(f'v_and_b32 {self.lane}, 63, v0')
        a(f'v_mov_b32 {self.vZ}, 0')
        a(f'v_lshlrev_b32 {self.vLin}, 4, {self.lane}')

    def LA(self, dst, fields, sterms=(), const=0):
        lane_addr(self.a, dst, self.lane, self.tmp, fields, sterms, const, self.S['t0'])

    def bail(self, code):
        a, S = self.a, self.S
        lab = a.newlabel('ok')
        a(f's_sub_u32 {S["budget"]}, {S["budget"]}, 1')
        a(f's_cbranch_scc0 {lab}')
        a(f's_mov_b32 {S["t0"]}, {code}')
        a('s_branch L_bail')
        a.label(lab)

    def srd(self, dst, ptr, nbytes):
        a = self.a
        a(f's_mov_b32 {dst[0]}, {ptr[0]}')
        a(f's_and_b32 {dst[1]}, {ptr[1]}, 0xffff')
        a(f's_mov_b32 {dst[2]}, {nbytes}')
        a(f's_mov_b32 {dst[3]}, 0x20000')

    def own_word(self, dst, line_sreg, base_line):
        a, S = self.a, self.S
        self.LA(dst, [], [(line_sreg, 128)], FLG + base_line * 128)
        a(f'v_mov_b32 {self.t[0]}, {OOB}')
        a('v_cmp_eq_u32 vcc, 0, v0')
        a(f'v_cndmask_b32 {dst}, {self.t[0]}, {dst}, vcc')

    def spin_flags(self, vFl, vFo, sFo, sNeed, code):
        a = self.a
        lab = a.newlabel('fl')
        a.label(lab)
        a(f'buffer_load_dword {vFl}, {vFo}, {self.S["ws"]}, {sFo} offen sc1')
        self.bail(code)
        a('s_waitcnt vmcnt(0)')
        a(f'v_cmp_gt_u32 vcc, {sNeed}, {vFl}')
        a(f's_cbranch_vccnz {lab}')

    def hold(self, census, seg):
        a, S = self.a, self.S
        census(self.t[1], self.t[2])
        if seg:
            a(f's_mov_b32 {S["t1"]}, {FLG + F_K * 128}')
            a(f's_mov_b32 {S["t2"]}, {seg}')
            self.spin_flags(self.t[1], self.vZ, S['t1'], S['t2'], 30)

    def load_weights(self, nch, issue, rowbytes, rows, between=None):
        a = self.a
        for ci in range(nch):
            issue(ci)
        nlater = 0
        for ci in range(nch):
            a(f's_waitcnt vmcnt({4 * (nch - 1 - ci) + nlater})')
            a('s_barrier')
            if between:
                nlater += between(ci)
            a(f'v_add_u32 {self.t[0]}, {ci * 16384}, {self.vR}')
            for ks in range(4):
                for aa in range(2):
                    r = 16 * ci + 4 * ks + 2 * aa
                    a(f'ds_read_b64_tr_b16 a[{r}:{r + 1}], {self.t[0]} offset:{rows(ks, aa) * rowbytes}')
            a('s_waitcnt lgkmcnt(0)')
        a('s_barrier')

    def plain_weights(self, ptr, nbytes, pitch, sBase, nch, rows, lanerow, between=None):
        a, S = self.a, self.S
        sWt = self.sr.alloc('wt', 4)
        sM = self.sr.alloc('wm')
        vA = self.v.alloc('wa')
        self.vR = self.v.alloc('wr')
        self.srd(sWt, ptr, nbytes)
        self.LA(self.t[1], [(4, 2, 4)])
        self.LA(self.t[2], [(0, 4, 1)])
        a(f'v_xor_b32 {self.t[1]}, {self.t[1]}, {self.t[2]}')
        self.LA(vA, [(4, 2, pitch)], [(S['w'], 16 * pitch)])
        a(f'v_lshl_add_u32 {vA}, {self.t[1]}, 4, {vA}')
        self.LA(self.t[1], [(2, 2, 4)])
        self.LA(self.t[2], [(4, 1, 2), (1, 1, 1)], [(S['w'], 4)])
        a(f'v_xor_b32 {self.t[1]}, {self.t[1]}, {self.t[2]}')
        self.LA(self.vR, [(2, 2, 256), (5, 1, lanerow * 256), (0, 1, 8)])
        a(f'v_lshl_add_u32 {self.vR}, {self.t[1]}, 4, {self.vR}')
        a(f's_lshl_b32 {sM}, {S["w"]}, 12')
        ntf = ' nt' if self.cfg.get('nt', True) else ''

        def issue(ci):
            for ip in range(4):
                a(f's_add_u32 {S["t1"]}, {sBase}, {(64 * ci + 4 * ip) * pitch}')
                a(f's_add_u32 m0, {sM}, {ci * 16384 + ip * 1024}')
                a(f'buffer_load_dwordx4 {vA}, {sWt}, {S["t1"]} offen{ntf} lds')
        self.load_weights(nch, issue, 256, rows, between)


def tile_dma(c, nk, vSrc, sSrc, sDst):
    a, S = c.a, c.S
    ops = []
    for i in range(nk // 4):
        def op(i=i):
            if i % 4 == 0:
                a(f's_add_u32 {S["t2"]}, {sSrc}, {4096 * (i // 4)}')
            a(f's_add_u32 m0, {sDst}, {4096 * (i // 4)}')
            return f'buffer_load_dwordx4 {vSrc}, {S["ws"]}, {S["t2"]} offen offset:{1024 * (i % 4)} sc1 lds'
        ops.append(op)
    return ops


def mfma_loop(c, nk, acc, xf, vRd, fill, w_is_a=True, ds=None):
    a = c.a
    ds = ds or Cnt(a, 'lgkmcnt', 15)
    D = len(xf)
    for k in range(min(D - 1, nk)):
        ds.issue(f'ds_read_b128 {xf[k % D]}, {vRd} offset:{1024 * k}', 'x%d' % k)
    for k in range(nk):
        if k + D - 1 < nk:
            kk = k + D - 1
            ds.issue(f'ds_read_b128 {xf[kk % D]}, {vRd} offset:{1024 * kk}', 'x%d' % kk)
        ds.wait('x%d' % k)
        w = f'a[{4 * k}:{4 * k + 3}]'
        A, B = (w, xf[k % D]) if w_is_a else (xf[k % D], w)
        a(f'{MF32} {acc}, {A}, {B}, {"0" if k == 0 else acc}')
        for x in fill.get(k, []):
            if callable(x):
                x()
            else:
                a(x)


def spread(fill, ops, start, per=1, step=1):
    for i, x in enumerate(ops):
        fill.setdefault(start + (i // per) * step, []).append(x)


class XnFlags:
    def __init__(self, c):
        self.c = c
        self.sLine = c.sr.alloc('xl')
        self.sNeed = c.sr.alloc('xn')
        self.vFo = c.vZ

    def set(self, seg):
        a = self.c.a
        a(f's_mov_b32 {self.sLine}, {FLG + (F_XN + seg % NF) * 128}')
        a(f's_mov_b32 {self.sNeed}, {seg // NF + 1}')

    def advance(self, sSeg):
        a, S = self.c.a, self.c.S
        a(f's_mul_i32 {S["t3"]}, {sSeg}, 4682')
        a(f's_lshr_b32 {self.sNeed}, {S["t3"]}, 16')
        a(f's_mul_i32 {S["t3"]}, {self.sNeed}, {NF}')
        a(f's_sub_u32 {S["t3"]}, {sSeg}, {S["t3"]}')
        a(f's_lshl_b32 {S["t3"]}, {S["t3"]}, 7')
        a(f's_add_u32 {self.sLine}, {S["t3"]}, {FLG + F_XN * 128}')
        a(f's_add_u32 {self.sNeed}, {self.sNeed}, 1')


class SegFlags:
    def __init__(self, c, vFo):
        self.c = c
        self.sLine = c.sr.alloc('gl')
        self.sNeed = c.sr.alloc('gn')
        self.vFo = vFo
        c.a(f's_mov_b32 {self.sLine}, 0')

    def set(self, seg):
        self.c.a(f's_mov_b32 {self.sNeed}, {seg + 1}')

    def advance(self, sSeg):
        self.c.a(f's_add_u32 {self.sNeed}, {sSeg}, 1')


def stream_gemm(c, nk, flags, src_base, src_stride, sSrcOff, weights, epilogue, vOwn, census, hold=None):
    a, S = c.a, c.S
    sWS = S['ws']
    acc = [c.v.alloc('acc%d' % i, 16) for i in range(2)]
    xf = [c.v.alloc('xf%d' % i, 4) for i in range(4)]
    vRd, vFl, vCnt = c.v.alloc('rd'), c.v.alloc('fl'), c.v.alloc('cnt')
    sSeg, sPre, sBufR, sBufW, sSrc, sDst, sWq = [c.sr.alloc('g%d' % i) for i in range(7)]
    TB = nk * 1024
    nd = nk // 4
    a(f's_mul_i32 {sWq}, {S["w"]}, {TB // 4}')

    def src():
        a(f's_mul_i32 {sSrc}, {sPre}, {src_stride}')
        a(f's_add_u32 {sSrc}, {sSrc}, {src_base}')
        if sSrcOff is not None:
            a(f's_add_u32 {sSrc}, {sSrc}, {sSrcOff}')
        a(f's_add_u32 {sSrc}, {sSrc}, {sWq}')
        a(f's_add_u32 {sDst}, {sBufW}, {sWq}')
    if hold is not None:
        c.hold(census, hold)
    weights(None)
    if hold is None:
        census(c.t[1], c.t[2])
    for s in range(2):
        flags.set(s)
        c.spin_flags(vFl, flags.vFo, flags.sLine, flags.sNeed, 20)
        a(f's_mov_b32 {sPre}, {s}')
        a(f's_mov_b32 {sBufW}, {s * TB}')
        src()
        for op in tile_dma(c, nk, c.vLin, sSrc, sDst):
            a(op())
    flags.set(2)
    a(f'buffer_load_dword {vFl}, {flags.vFo}, {sWS}, {flags.sLine} offen sc1')
    a(f's_mov_b32 {sSeg}, 0')
    a(f's_mov_b32 {sPre}, 2')
    a(f's_mov_b32 {sBufR}, 0')
    a(f's_mov_b32 {sBufW}, {2 * TB}')
    a('s_waitcnt vmcnt(0)')
    top, done = a.newlabel(c.name + 'top'), a.newlabel(c.name + 'end')
    late = []
    S['tl'](3, c.t[0], c.t[1])
    a.label(top)
    for p in range(2):
        a(f's_waitcnt vmcnt({nd})')
        a('s_barrier')
        a(f'v_add_u32 {vRd}, {sBufR}, {c.vLin}')
        fill = {}
        labw, labo = a.newlabel('nf'), a.newlabel('nfok')
        late.append((labw, labo))
        pub = [lambda: (a(f's_sub_u32 {S["t3"]}, {sSeg}, 1'), a(f's_max_i32 {S["t3"]}, {S["t3"]}, 0'),
                        a(f'v_mov_b32 {vCnt}, {S["t3"]}'), a(f'buffer_store_dword {vCnt}, {vOwn}, {sWS}, 0 offen sc1'))]
        spread(fill, pub, 0)
        ep = epilogue(acc[1 - p], sSeg, -1)
        per = -(-len(ep) // (nk - nd * 2 - 6))
        spread(fill, ep, 1, per)
        k0 = 2 + -(-len(ep) // per)
        spread(fill, [lambda: (src(), a(f'v_cmp_gt_u32 vcc, {flags.sNeed}, {vFl}')),
                      lambda: (a(f's_cbranch_vccnz {labw}'), a.label(labo), a(f's_add_u32 {sPre}, {sPre}, 1'),
                               a(f's_min_u32 {sPre}, {sPre}, 63'), flags.advance(sPre),
                               a(f'buffer_load_dword {vFl}, {flags.vFo}, {sWS}, {flags.sLine} offen sc1'))], k0)
        spread(fill, [lambda op=op: a(op()) for op in tile_dma(c, nk, c.vLin, sSrc, sDst)], k0 + 2, 1, 2)
        assert max(fill) < nk, (c.name, max(fill))
        mfma_loop(c, nk, acc[p], xf, vRd, fill)
        for x in (sBufR, sBufW):
            a(f's_add_u32 {x}, {x}, {TB}')
            a(f's_cmp_eq_u32 {x}, {3 * TB}')
            a(f's_cselect_b32 {x}, 0, {x}')
        a(f's_add_u32 {sSeg}, {sSeg}, 1')
    a(f's_cmp_lt_u32 {sSeg}, 64')
    a(f's_cbranch_scc1 {top}')
    for x in epilogue(acc[1], sSeg, -1):
        x() if callable(x) else a(x)
    a('s_waitcnt vmcnt(0)')
    a('s_barrier')
    a(f'v_mov_b32 {vCnt}, 64')
    a(f'buffer_store_dword {vCnt}, {vOwn}, {sWS}, 0 offen sc1')
    S['tl'](4, c.t[0], c.t[1])
    a('s_endpgm')
    for labw, labo in late:
        a.label(labw)
        c.spin_flags(vFl, flags.vFo, flags.sLine, flags.sNeed, 21)
        a(f's_branch {labo}')


def seg_off(c, dst, sSeg, delta, stride, base, sExtra=None):
    a, S = c.a, c.S
    a(f's_mul_i32 {dst}, {sSeg}, {stride}')
    a(f's_add_u32 {dst}, {dst}, {(base + delta * stride) & 0xffffffff}')
    if sExtra is not None:
        a(f's_add_u32 {dst}, {dst}, {sExtra}')
    if delta < 0:
        a(f's_cmp_eq_u32 {sSeg}, 0')
        a(f's_cselect_b32 {dst}, {OOB}, {dst}')


NAT = lambda ks, aa: 16 * ks + 4 * aa


def gen_KV(a, S, cfg, census):
    c = Ctx(a, S, cfg, 'kv')
    sI = S['idx']
    sPtr = c.sr.alloc('p', 2)
    sB, sHB, sE, sSc = [c.sr.alloc('k%d' % i) for i in range(4)]
    a(f's_cmp_lt_u32 {sI}, 32')
    a(f's_cselect_b32 {sPtr[0]}, {S["ptrs"][2]}, {S["ptrs"][4]}')
    a(f's_cselect_b32 {sPtr[1]}, {S["ptrs"][3]}, {S["ptrs"][5]}')
    a(f's_cselect_b32 {sSc}, {f32hex(SCALE_LOG2E)}, 1.0')
    a(f's_cselect_b32 {sHB}, {HR + HR_KX}, {HR + HR_VX}')
    a(f's_and_b32 {S["t1"]}, {sI}, 31')
    a(f's_lshl_b32 {sB}, {S["t1"]}, 8')
    a(f's_lshl_b32 {S["t1"]}, {S["t1"]}, 21')
    a(f's_add_u32 {sHB}, {sHB}, {S["t1"]}')
    vSt, vOwn = c.v.alloc('st'), c.v.alloc('own')
    pk = c.v.alloc('pk', 8)
    c.LA(vSt, [(4, 1, 4096), (0, 4, 16), (5, 1, 256)], [(S['w'], 1024)])
    c.own_word(vOwn, sI, F_K)

    def ep(acc, sSeg, d):
        return [f'v_mul_f32 {acc[i]}, {sSc}, {acc[i]}' for i in range(16)] + \
               [f'v_cvt_pk_bf16_f32 {pk[i]}, {acc[2 * i]}, {acc[2 * i + 1]}' for i in range(8)] + \
               [lambda: seg_off(c, sE, sSeg, d, 8192, 0, sHB)] + \
               [f'buffer_store_dwordx4 {pk[4 * i:4 * i + 4]}, {vSt}, {S["ws"]}, {sE} offen offset:{512 * i} sc1' for i in range(2)]
    stream_gemm(c, 40, XnFlags(c), XN, 40960, None,
                lambda b: c.plain_weights(sPtr, 640 * 4096 * 2, 8192, sB, 10, NAT, 8, b), ep, vOwn, census)


def gen_G2(a, S, cfg, census):
    c = Ctx(a, S, cfg, 'g2')
    sI = S['idx']
    sE, sB, sM, sO = [c.sr.alloc('k%d' % i) for i in range(4)]
    sWt = [c.sr.alloc('wt%d' % i, 4) for i in range(2)]
    vOwn = c.v.alloc('own')
    pk = c.v.alloc('pk', 4)
    vA = [c.v.alloc('wa%d' % i) for i in range(2)]
    c.vR = c.v.alloc('wr')
    c.own_word(vOwn, sI, F_H)
    a(f's_lshl_b32 {sB}, {sI}, 7')
    a(f's_lshl_b32 {sO}, {sI}, 12')
    a(f's_lshl_b32 {S["t1"]}, {S["w"]}, 10')
    a(f's_add_u32 {sO}, {sO}, {S["t1"]}')
    ntf = ' nt' if cfg.get('nt', True) else ''

    def weights(between):
        pitch = 3456
        for part in range(2):
            c.srd(sWt[part], S['ffn'][2 * part:2 * part + 2], 640 * pitch)
            c.LA(c.t[1], [(4, 1, 2)], [], 4 * part)
            c.LA(c.t[2], [(0, 3, 1)])
            a(f'v_xor_b32 {c.t[1]}, {c.t[1]}, {c.t[2]}')
            c.LA(vA[part], [(3, 3, pitch)], [(S['w'], 16 * pitch)])
            a(f'v_lshl_add_u32 {vA[part]}, {c.t[1]}, 4, {vA[part]}')
        c.LA(c.t[1], [(4, 1, 4), (3, 1, 2)])
        c.LA(c.t[2], [(1, 1, 1)], [(S['w'], 2)])
        a(f'v_xor_b32 {c.t[1]}, {c.t[1]}, {c.t[2]}')
        c.LA(c.vR, [(2, 2, 128), (5, 1, 8 * 128), (4, 1, 8192), (0, 1, 8)])
        a(f'v_lshl_add_u32 {c.vR}, {c.t[1]}, 4, {c.vR}')
        a(f's_lshl_b32 {sM}, {S["w"]}, 11')

        def issue(ci):
            for part in range(2):
                for ip in range(2):
                    a(f's_add_u32 {S["t1"]}, {sB}, {(64 * ci + 8 * ip) * pitch}')
                    a(f's_add_u32 m0, {sM}, {ci * 16384 + part * 8192 + ip * 1024}')
                    a(f'buffer_load_dwordx4 {vA[part]}, {sWt[part]}, {S["t1"]} offen{ntf} lds')
        c.load_weights(10, issue, 128, NAT, between)

    def ep(acc, sSeg, d):
        o = []
        for i in range(8):
            o += [f'v_mul_f32 {acc[i]}, {f32hex(-LOG2E)}, {acc[i]}', f'v_exp_f32 {acc[i]}, {acc[i]}']
        for i in range(8):
            o += [f'v_add_f32 {acc[i]}, 1.0, {acc[i]}', f'v_rcp_f32 {acc[i]}, {acc[i]}']
        o += [f'v_mul_f32 {acc[i]}, {acc[i]}, {acc[8 + i]}' for i in range(8)]
        o += [f'v_cvt_pk_bf16_f32 {pk[i]}, {acc[2 * i]}, {acc[2 * i + 1]}' for i in range(4)]
        o += [lambda: seg_off(c, sE, sSeg, d, 110592, HH, sO),
              f'buffer_store_dwordx4 {pk}, {c.vLin}, {S["ws"]}, {sE} offen sc1']
        return o
    stream_gemm(c, 40, XnFlags(c), XN, 40960, None, weights, ep, vOwn, census, cfg.get('hold2', 6))


def partial_epilogue(c, pk, sE, stride, base, sO):
    S = c.S

    def ep(acc, sSeg, d):
        o = [f'v_cvt_pk_bf16_f32 {pk[i]}, {acc[2 * i]}, {acc[2 * i + 1]}' for i in range(8)]
        o += [lambda: seg_off(c, sE, sSeg, d, stride, base, sO)]
        for j in range(2):
            o += [f'v_permlane32_swap_b32 {pk[4 * j + i]}, {pk[4 * j + 2 + i]}' for i in range(2)]
        o += [f'buffer_store_dwordx4 {pk[4 * j:4 * j + 4]}, {c.vLin}, {S["ws"]}, {sE} offen offset:{1024 * j} sc1' for j in range(2)]
        return o
    return ep


def split5(c, sI, sKg, sNg):
    a = c.a
    a(f's_mul_i32 {sKg}, {sI}, 52')
    a(f's_lshr_b32 {sKg}, {sKg}, 8')
    a(f's_mul_i32 {sNg}, {sKg}, 5')
    a(f's_sub_u32 {sNg}, {sI}, {sNg}')


def gen_G3(a, S, cfg, census):
    c = Ctx(a, S, cfg, 'g3')
    sI = S['idx']
    sKg, sNg, sE, sB, sO, sX = [c.sr.alloc('k%d' % i) for i in range(6)]
    split5(c, sI, sKg, sNg)
    vOwn, vFo = c.v.alloc('own'), c.v.alloc('fo')
    pk = c.v.alloc('pk', 8)
    c.own_word(vOwn, sI, F_P3)
    a(f'v_min_u32 {vFo}, 8, {c.lane}')
    a(f'v_lshlrev_b32 {vFo}, 7, {vFo}')
    a(f's_mul_i32 {S["t1"]}, {sKg}, {9 * 128}')
    a(f's_add_u32 {S["t1"]}, {S["t1"]}, {FLG + F_H * 128}')
    a(f'v_add_u32 {vFo}, {S["t1"]}, {vFo}')
    a(f's_mul_i32 {sB}, {sKg}, {576 * 1280}')
    a(f's_lshl_b32 {S["t1"]}, {sNg}, 8')
    a(f's_add_u32 {sB}, {sB}, {S["t1"]}')
    a(f's_lshl_b32 {sO}, {sI}, 13')
    a(f's_lshl_b32 {S["t1"]}, {S["w"]}, 11')
    a(f's_add_u32 {sO}, {sO}, {S["t1"]}')
    a(f's_mul_i32 {sX}, {sKg}, {36 * 1024}')
    rows = lambda ks, aa: 16 * ks + 8 * aa
    stream_gemm(c, 36, SegFlags(c, vFo), HH, 110592, sX,
                lambda b: c.plain_weights(S['ffn'][4:6], 1728 * 1280, 1280, sB, 9, rows, 4, b),
                partial_epilogue(c, pk, sE, 15 * 8192, P3, sO), vOwn, census, cfg.get('hold3', 8))


def gen_G4(a, S, cfg, census):
    c = Ctx(a, S, cfg, 'g4')
    sI, sWS = S['idx'], S['ws']
    sKg, sNg, sE, sB, sO, sX, sSeg, sNeed, sM, sSrc = [c.sr.alloc('k%d' % i) for i in range(10)]
    split5(c, sI, sKg, sNg)
    vOwn, vFo, vFl, vCnt = [c.v.alloc('v%d' % i) for i in range(4)]
    pk = c.v.alloc('pk', 8)
    acc = c.v.alloc('acc', 16)
    xf = [c.v.alloc('xf%d' % i, 4) for i in range(8)]
    c.own_word(vOwn, sI, F_P4)
    c.LA(vFo, [(0, 2, 128)], [(sKg, 512)], FLG + F_O * 128)
    a(f's_mul_i32 {sB}, {sKg}, {512 * 1280}')
    a(f's_lshl_b32 {S["t1"]}, {sNg}, 8')
    a(f's_add_u32 {sB}, {sB}, {S["t1"]}')
    a(f's_lshl_b32 {sO}, {sI}, 13')
    a(f's_lshl_b32 {S["t1"]}, {S["w"]}, 11')
    a(f's_add_u32 {sO}, {sO}, {S["t1"]}')
    a(f's_lshl_b32 {sX}, {sKg}, 15')
    a(f's_add_u32 {sX}, {sX}, {S["t1"]}')
    a(f's_mov_b32 {sM}, {S["t1"]}')
    rows = lambda ks, aa: 32 * (ks >> 1) + 16 * aa + 8 * (ks & 1)
    c.hold(census, cfg.get('hold4', 6))
    c.plain_weights(S['ptrs'][6:8], 4096 * 1280, 1280, sB, 8, rows, 4)
    ep = partial_epilogue(c, pk, sE, 40 * 8192, P4, sO)
    a(f's_mov_b32 {sSeg}, 0')
    top, labw, labo = a.newlabel('g4top'), a.newlabel('g4w'), a.newlabel('g4ok')
    a.label(top)
    a(f'buffer_load_dword {vFl}, {vFo}, {sWS}, 0 offen sc1')
    a(f's_add_u32 {sNeed}, {sSeg}, 1')
    seg_off(c, sSrc, sSeg, 0, 262144, OO, sX)
    a(f'v_mov_b32 {vCnt}, {sSeg}')
    a('s_waitcnt vmcnt(0)')
    a('s_barrier')
    a(f'v_cmp_gt_u32 vcc, {sNeed}, {vFl}')
    a(f's_cbranch_vccnz {labw}')
    a.label(labo)
    for g in range(4):
        a(f's_add_u32 {S["t2"]}, {sSrc}, {8192 * g}')
        a(f's_add_u32 m0, {sM}, {8192 * g}')
        for i in range(2):
            a(f'buffer_load_dwordx4 {c.vLin}, {sWS}, {S["t2"]} offen offset:{1024 * i} sc1 lds')
    a(f'buffer_store_dword {vCnt}, {vOwn}, {sWS}, 0 offen sc1')
    ds = Cnt(a, 'lgkmcnt', 15)
    for g in range(4):
        a(f's_waitcnt vmcnt({7 - 2 * g})')
        a('s_barrier')
        for k in range(8):
            ds.issue(f'ds_read_b128 {xf[k]}, {c.vLin} offset:{8192 * g + 1024 * k}', 'x%d' % k)
        for k in range(8):
            ds.wait('x%d' % k)
            kk = 8 * g + k
            a(f'{MF32} {acc}, a[{4 * kk}:{4 * kk + 3}], {xf[k]}, {"0" if kk == 0 else acc}')
    for x in ep(acc, sSeg, 0):
        x() if callable(x) else a(x)
    a(f's_add_u32 {sSeg}, {sSeg}, 1')
    a(f's_cmp_lt_u32 {sSeg}, 64')
    a(f's_cbranch_scc1 {top}')
    a('s_waitcnt vmcnt(0)')
    a('s_barrier')
    a(f'v_mov_b32 {vCnt}, 64')
    a(f'buffer_store_dword {vCnt}, {vOwn}, {sWS}, 0 offen sc1')
    S['tl'](4, c.t[0], c.t[1])
    a('s_endpgm')
    a.label(labw)
    a(f'buffer_store_dword {vCnt}, {vOwn}, {sWS}, 0 offen sc1')
    c.spin_flags(vFl, vFo, '0', sNeed, 22)
    a(f's_branch {labo}')


def gen_QA(a, S, cfg, census):
    c = Ctx(a, S, cfg, 'qa')
    sI, sWS, sW = S['idx'], S['ws'], S['w']
    L_X, L_KV, L_Q, L_KM = 0, 81920, 114688, 122880
    sB, sHB, sSeg, sPre, sSrc, sDst, sWq, sKs, sKd, sE, sO, sNeed, sEx, sPar, sC, sN2 = [c.sr.alloc('k%d' % i) for i in range(16)]
    (vOwn, vFx, vFlx, vFe, vFle, vFk, vFlk, vCnt, vRd, vQw, vQr, vKr, vVr, vXs, vVs, vMw, vMr, vMr1, vSt) = [
        c.v.alloc('v%d' % i) for i in range(19)]
    acc = c.v.alloc('acc', 16)
    xf = [c.v.alloc('xf%d' % i, 4) for i in range(4)]
    pk = c.v.alloc('pk', 8)
    qb = c.v.alloc('qb', 16)
    kx = c.v.alloc('kx', 32)
    vt = c.v.alloc('vt', 16)
    ka = c.v.alloc('ka', 16)
    km = c.v.alloc('km', 2)
    vm = c.v.alloc('vm', 4)
    Sx = c.v.alloc('S', 12)
    P = c.v.alloc('P', 4)
    Pa = c.v.alloc('Pa', 8)
    Pb = c.v.alloc('Pb', 6)
    O = c.v.alloc('O', 16)
    L = c.v.alloc('L', 4)
    one = c.v.alloc('one', 4)
    msk = c.v.alloc('msk', 8)
    fx = XnFlags(c)
    c.own_word(vOwn, sI, F_O)
    a(f's_lshl_b32 {sB}, {sI}, 8')
    a(f's_lshl_b32 {sHB}, {sI}, 21')
    a(f's_add_u32 {sHB}, {sHB}, {HR}')
    a(f's_mul_i32 {sWq}, {sW}, 10240')
    a(f's_mov_b32 {sC}, {f32hex(SCALE_LOG2E)}')
    sQh, sEh = S['t1'], S['t2']
    a(f's_and_b32 {sQh}, {sW}, 1')
    a(f's_lshr_b32 {sEh}, {sW}, 1')
    c.LA(vFe, [(0, 1, 4096)], [(sI, 128)], FLG + F_EX * 128)
    c.LA(vFk, [(0, 1, 4096)], [(sI, 128)], FLG + F_K * 128)
    c.LA(vQw, [(4, 1, 4096), (0, 4, 16), (5, 1, 256)], [(sW, 1024)], L_Q)
    c.LA(vQr, [(0, 6, 16)], [(sQh, 4096)], L_Q)
    c.LA(vXs, [(0, 6, 8)], [(sW, 512)])
    c.LA(vVs, [(0, 6, 8)], [(sEh, 1024)], HR_VM - HR_KM)
    c.LA(vMw, [(0, 4, 32), (4, 2, 8)], [(sW, 1024)], L_KM)
    c.LA(vMr, [(5, 1, 512), (4, 1, 128), (2, 2, 32), (0, 2, 8)], [], L_KM)
    c.LA(vSt, [(5, 1, 1024), (4, 1, 512), (0, 4, 16)], [(sQh, 256), (sEh, 4096), (sI, 8192)])
    c.LA(vVr, [(4, 2, 64), (2, 2, 16), (0, 1, 256), (1, 1, 8)], [(sEh, 2048)], 8192)
    c.LA(c.t[1], [(0, 4, 1)], [(sQh, 16)])
    c.LA(c.t[2], [(4, 2, 4)])
    a(f'v_sub_u32 {c.t[1]}, {c.t[1]}, {c.t[2]}')
    a(f'v_mov_b32 {c.t[2]}, {f32hex(-1e30)}')
    for i in range(8):
        a(f'v_cmp_gt_i32 vcc, {16 * (i >> 2) + (i & 3)}, {c.t[1]}')
        a(f'v_cndmask_b32 {msk[i]}, {c.vZ}, {c.t[2]}, vcc')
    for i in range(4):
        a(f'v_mov_b32 {one[i]}, 0x3f803f80')
    for x in [Pa[i] for i in range(8)] + [Pb[i] for i in range(6)]:
        a(f'v_mov_b32 {x}, 0')
    c.hold(census, cfg.get('holdq', 2))
    c.plain_weights(S['ptrs'][0:2], 640 * 4096 * 2, 8192, sB, 10, NAT, 8)

    def src():
        a(f's_mul_i32 {sSrc}, {sPre}, 40960')
        a(f's_add_u32 {sSrc}, {sSrc}, {XN}')
        a(f's_add_u32 {sSrc}, {sSrc}, {sWq}')
        a(f's_and_b32 {sPar}, {sPre}, 1')
        a(f's_mul_i32 {sDst}, {sPar}, 40960')
        a(f's_add_u32 {sDst}, {sDst}, {sWq}')
        a(f's_lshl_b32 {sKs}, {sPre}, 13')
        a(f's_add_u32 {sKs}, {sKs}, {sHB}')
        a(f's_lshl_b32 {S["t3"]}, {sW}, 11')
        a(f's_add_u32 {sKs}, {sKs}, {S["t3"]}')
        a(f's_lshl_b32 {sKd}, {sPar}, 14')
        a(f's_add_u32 {sKd}, {sKd}, {S["t3"]}')
        a(f's_add_u32 {sN2}, {sPre}, 1')

    def kv_dma():
        ops = []
        for i in range(4):
            def op(i=i):
                a(f's_add_u32 {S["t2"]}, {sKs}, {HR_VX * (i >> 1)}')
                a(f's_add_u32 m0, {sKd}, {L_KV + 8192 * (i >> 1)}')
                return f'buffer_load_dwordx4 {c.vLin}, {sWS}, {S["t2"]} offen offset:{1024 * (i & 1)} sc1 lds'
            ops.append(op)
        return ops
    a(f's_mov_b32 {sPre}, 0')
    src()
    fx.set(0)
    c.spin_flags(vFlx, c.vZ, fx.sLine, fx.sNeed, 23)
    for op in tile_dma(c, 40, c.vLin, sSrc, sDst):
        a(op())
    c.spin_flags(vFlk, vFk, '0', sN2, 24)
    for op in kv_dma():
        a(op())
    fx.set(1)
    a(f'buffer_load_dword {vFlx}, {c.vZ}, {sWS}, {fx.sLine} offen sc1')
    a(f's_mov_b32 {sSeg}, 0')
    a(f's_mov_b32 {sPre}, 1')
    a('s_waitcnt vmcnt(0)')
    top = a.newlabel('qatop')
    lx, lxo, lk, lko, le, leo = [a.newlabel('qa') for _ in range(6)]
    S['tl'](3, c.t[0], c.t[1])
    a.label(top)
    a('s_waitcnt vmcnt(2)')
    a('s_barrier')
    a(f's_and_b32 {S["t3"]}, {sSeg}, 1')
    a(f's_mul_i32 {S["t1"]}, {S["t3"]}, 40960')
    a(f'v_add_u32 {vRd}, {S["t1"]}, {c.vLin}')
    a(f's_lshl_b32 {S["t3"]}, {S["t3"]}, 14')
    a(f's_add_u32 {S["t3"]}, {S["t3"]}, {L_KV}')
    a(f'v_add_u32 {vKr}, {S["t3"]}, {c.vLin}')
    a(f'v_add_u32 {vMr1}, {S["t3"]}, {vVr}')
    fill = {}
    spread(fill, [lambda: (src(), a(f'v_cmp_gt_u32 vcc, {fx.sNeed}, {vFlx}')),
                  lambda: None,
                  lambda: (a(f's_cbranch_vccnz {lx}'), a.label(lxo), a(f'v_cmp_gt_u32 vcc, {sN2}, {vFlk}')),
                  lambda: None,
                  lambda: (a(f's_cbranch_vccnz {lk}'), a.label(lko))], 0)
    spread(fill, [lambda op=op: a(op()) for op in tile_dma(c, 40, c.vLin, sSrc, sDst) + kv_dma()], 5, 1, 2)
    kp = cfg.get('qapub', 20)
    spread(fill, [lambda: (a(f's_waitcnt vmcnt({(kp - 5) // 2 + 1})'), a('s_barrier'), a(f'v_mov_b32 {vCnt}, {sSeg}'),
                           a(f'buffer_store_dword {vCnt}, {vOwn}, {sWS}, 0 offen sc1'))], kp)
    spread(fill, [lambda: (a(f's_add_u32 {sPre}, {sPre}, 1'), a(f's_min_u32 {sPre}, {sPre}, 63'), fx.advance(sPre),
                           a(f'buffer_load_dword {vFlx}, {c.vZ}, {sWS}, {fx.sLine} offen sc1'),
                           a(f'buffer_load_dword {vFlk}, {vFk}, {sWS}, 0 offen sc1'),
                           a(f'buffer_load_dword {vFle}, {vFe}, {sWS}, 0 offen sc1'))], 38)
    assert max(fill) < 40
    ds = Cnt(a, 'lgkmcnt', 15)
    mfma_loop(c, 40, acc, xf, vRd, fill, True, ds)
    for i in range(8):
        ds.issue(f'ds_read_b128 {kx[4 * i:4 * i + 4]}, {vKr} offset:{1024 * i}', 'kx')
    a(f's_add_u32 {sNeed}, {sSeg}, 1')
    a(f's_lshl_b32 {sEx}, {sSeg}, 11')
    a(f's_add_u32 {sEx}, {sEx}, {sHB}')
    a(f's_add_u32 {sEx}, {sEx}, {HR_KM}')
    seg_off(c, sE, sSeg, 0, 262144, OO)
    for i in range(8):
        a(f'v_cvt_pk_bf16_f32 {pk[i]}, {acc[2 * i]}, {acc[2 * i + 1]}')
    for i in range(2):
        ds.issue(f'ds_write_b128 {vQw}, {pk[4 * i:4 * i + 4]} offset:{512 * i}', 'qw')
    ds.drain()
    a('s_barrier')
    for u in range(4):
        ds.issue(f'ds_read_b128 {qb[4 * u:4 * u + 4]}, {vQr} offset:{1024 * u}', 'q%d' % u)
    for E in range(4):
        for T in range(2):
            ds.issue(f'ds_read_b64_tr_b16 {vt[4 * E + 2 * T:4 * E + 2 * T + 2]}, {vMr1} offset:{4096 * T + 1024 * (E >> 1) + 512 * (E & 1)}', 'vt')
    for u in range(4):
        ds.wait('q%d' % u)
        for t in range(2):
            a(f'{MF16} {Sx[4 * t:4 * t + 4]}, {kx[(4 * t + u) * 4:(4 * t + u) * 4 + 4]}, {qb[4 * u:4 * u + 4]}, '
              f'{msk[4 * t:4 * t + 4] if u == 0 else Sx[4 * t:4 * t + 4]}')
    a('s_waitcnt vmcnt(0)')
    a(f'v_cmp_gt_u32 vcc, {sNeed}, {vFle}')
    a(f's_cbranch_vccnz {le}')
    a.label(leo)
    a(f'buffer_load_dwordx2 {km}, {vXs}, {sWS}, {sEx} offen sc1')
    a(f'buffer_load_dwordx2 {vm[0:2]}, {vVs}, {sWS}, {sEx} offen sc1')
    a(f'buffer_load_dwordx2 {vm[2:4]}, {vVs}, {sWS}, {sEx} offen offset:512 sc1')
    m, t1 = c.t[0], c.t[1]
    a(f'v_max3_f32 {m}, {Sx[0]}, {Sx[1]}, {Sx[2]}')
    a(f'v_max3_f32 {m}, {m}, {Sx[3]}, {Sx[4]}')
    a(f'v_max3_f32 {m}, {m}, {Sx[5]}, {Sx[6]}')
    a(f'v_max_f32 {m}, {m}, {Sx[7]}')
    a('s_waitcnt vmcnt(2)')
    a(f'ds_write2_b32 {vMw}, {km[0]}, {km[1]} offset0:0 offset1:128')
    ds.drain()
    a('s_barrier')
    for u in range(4):
        for aa in range(2):
            ds.issue(f'ds_read_b64_tr_b16 {ka[4 * u + 2 * aa:4 * u + 2 * aa + 2]}, {vMr} offset:{u * 1024 + aa * 256}', 'k%d' % u)
    for u in range(4):
        ds.wait('k%d' % u)
        a(f'{MF16} {Sx[8:12]}, {ka[4 * u:4 * u + 4]}, {qb[4 * u:4 * u + 4]}, {"0" if u == 0 else Sx[8:12]}')
    a(f'v_mul_f32 {Sx[8]}, {sC}, {Sx[8]}')
    a(f'v_mul_f32 {Sx[9]}, {sC}, {Sx[9]}')
    a(f'v_max3_f32 {m}, {m}, {Sx[8]}, {Sx[9]}')
    for sw in ('32', '16'):
        a(f'v_mov_b32 {t1}, {m}')
        a(f'v_permlane{sw}_swap_b32 {t1}, {m}')
        a(f'v_max_f32 {m}, {m}, {t1}')
    for i in range(10):
        a(f'v_sub_f32 {Sx[i]}, {Sx[i]}, {m}')
        a(f'v_exp_f32 {Sx[i]}, {Sx[i]}')
    for k in range(4):
        a(f'v_cvt_pk_bf16_f32 {P[k]}, {Sx[2 * k]}, {Sx[2 * k + 1]}')
    a(f'v_cvt_pk_bf16_f32 {Pa[3]}, {Sx[8]}, {Sx[9]}')
    a(f'v_cvt_pk_bf16_f32 {Pb[2]}, {Sx[8]}, {Sx[9]}')
    a(f'{MF16} {L}, {one}, {P}, 0')
    a(f'{MF16} {L}, {one}, {Pb[2:6]}, {L}')
    a('s_waitcnt vmcnt(0)')
    sel = [Pb[2:6], Pa[2:6], Pb[0:4], Pa[0:4]]
    for E in range(4):
        a(f'{MF16} {O[4 * E:4 * E + 4]}, {vt[4 * E:4 * E + 4]}, {P}, 0')
        a(f'{MF16} {O[4 * E:4 * E + 4]}, {vm}, {sel[E]}, {O[4 * E:4 * E + 4]}')
        if E == 1:
            a(f'v_rcp_f32 {m}, {L[0]}')
    for pr in range(2):
        for i in range(8):
            a(f'v_mul_f32 {O[8 * pr + i]}, {O[8 * pr + i]}, {m}')
        for i in range(4):
            a(f'v_cvt_pk_bf16_f32 {pk[4 * pr + i]}, {O[8 * pr + 2 * i]}, {O[8 * pr + 2 * i + 1]}')
        a(f'buffer_store_dwordx4 {pk[4 * pr:4 * pr + 4]}, {vSt}, {sWS}, {sE} offen offset:{2048 * pr} sc1')
    a(f's_add_u32 {sSeg}, {sSeg}, 1')
    a(f's_cmp_lt_u32 {sSeg}, 64')
    a(f's_cbranch_scc1 {top}')
    a('s_waitcnt vmcnt(0)')
    a('s_barrier')
    a(f'v_mov_b32 {vCnt}, 64')
    a(f'buffer_store_dword {vCnt}, {vOwn}, {sWS}, 0 offen sc1')
    S['tl'](4, c.t[0], c.t[1])
    a('s_endpgm')
    for lab, back, args in ((lx, lxo, (vFlx, c.vZ, fx.sLine, fx.sNeed, 25)), (lk, lko, (vFlk, vFk, '0', sN2, 26)),
                            (le, leo, (vFle, vFe, '0', sNeed, 27))):
        a.label(lab)
        c.spin_flags(*args)
        a(f's_branch {back}')


def gen_F(a, S, cfg, census):
    c = Ctx(a, S, cfg, 'f')
    sI, sWS, sW = S['idx'], S['ws'], S['w']
    sX = c.sr.alloc('x', 4)
    sOut = c.sr.alloc('o', 4)
    sSeg, sE, sCnt, sTask, sCg, sO8, sNg, sNeed, sP4, sP3, sRow, sBest = [c.sr.alloc('k%d' % i) for i in range(12)]
    sTm = [c.sr.alloc('tm%d' % i, 2) for i in range(2)]
    sMin = c.sr.alloc('mn', 2)
    vOwn, vA, vB, vF3, vF4, vFl, vCnt, vP = [c.v.alloc('v%d' % i) for i in range(8)]
    xr = c.v.alloc('xr', 48)
    f = c.v.alloc('f', 80)
    c.srd(sX, S['x'], 2048 * 1280)
    c.srd(sOut, S['out'], 2048 * 1280)
    c.own_word(vOwn, sI, F_XN)
    labp = a.newlabel('noprobe')
    a(f's_lshl_b32 {S["t1"]}, {sI}, 2')
    a(f's_add_u32 {sTask}, {S["t1"]}, {sW}')
    a(f's_cmp_lg_u32 {sTask}, {4 * NF - 1}')
    a(f's_cbranch_scc1 {labp}')
    a(f'v_mov_b32 {vP}, {AGR + 131072}')
    a('s_mov_b64 exec, 1')
    a(f's_mov_b32 {sMin[0]}, -1')
    a(f's_mov_b32 {sMin[1]}, -1')
    a('s_waitcnt vmcnt(0)')
    for it in range(5):
        for p in range(2):
            a(f's_mov_b32 {S["t2"]}, {8192 * p + 128 * it}')
            a(f's_memtime {sTm[0]}')
            a('s_waitcnt lgkmcnt(0)')
            a(f'buffer_store_dword {c.vZ}, {vP}, {sWS}, {S["t2"]} offen sc1')
            a('s_waitcnt vmcnt(0)')
            a(f's_memtime {sTm[1]}')
            a('s_waitcnt lgkmcnt(0)')
            a(f's_sub_u32 {S["t2"]}, {sTm[1][0]}, {sTm[0][0]}')
            a(f's_min_u32 {sMin[p]}, {sMin[p]}, {S["t2"]}')
    a(f's_cmp_lt_u32 {sMin[1]}, {sMin[0]}')
    a(f's_cselect_b32 {S["t2"]}, 1, 0')
    a(f's_lshr_b32 {S["t3"]}, {S["xcc"]}, 2')
    a(f's_xor_b32 {S["t2"]}, {S["t2"]}, {S["t3"]}')
    a(f's_or_b32 {S["t2"]}, {S["t2"]}, 2')
    a(f'v_mov_b32 {vP}, {S["t2"]}')
    a(f'global_store_dword {c.vZ}, {vP}, {S["dbg"]} offset:{4 * D_PAR} sc1')
    a('s_mov_b64 exec, -1')
    a.label(labp)
    c.LA(vA, [(0, 3, 1280), (3, 3, 16)], [(sW, 8 * 1280)])
    c.LA(vB, [(4, 2, 1024), (3, 1, 512), (0, 3, 16)], [(sW, 128)])
    a(f's_mov_b32 {sSeg}, {sI}')
    a(f's_mov_b32 {sCnt}, 0')

    def xload():
        a(f's_mul_i32 {sE}, {sSeg}, 40960')
        for i in range(10):
            a(f'buffer_load_dwordx4 {xr[4 * i:4 * i + 4]}, {vA}, {sX}, {sE} offen offset:{128 * i}')
    xload()
    top = a.newlabel('ln')
    a.label(top)
    a('s_waitcnt vmcnt(0)')
    for i in range(40):
        a(f'v_lshlrev_b32 {f[2 * i]}, 16, {xr[i]}')
        a(f'v_and_b32 {f[2 * i + 1]}, 0xffff0000, {xr[i]}')
    a(f's_mul_i32 {sRow}, {sSeg}, 40960')
    a(f's_add_u32 {sRow}, {sRow}, {XN}')
    a(f's_add_u32 {sSeg}, {sSeg}, {NF}')
    xload()
    s0, s1 = c.t[0], c.t[1]

    def rowsum():
        a(f'v_add_f32_dpp {s0}, {s0}, {s0} row_ror:8 row_mask:0xf bank_mask:0xf')
        for sw in ('16', '32'):
            a(f'v_mov_b32 {s1}, {s0}')
            a(f'v_permlane{sw}_swap_b32 {s1}, {s0}')
            a(f'v_add_f32 {s0}, {s0}, {s1}')
    t2 = c.t[2:4]
    a(f'v_pk_add_f32 {t2}, {f[0:2]}, {f[2:4]}')
    for i in range(2, 40):
        a(f'v_pk_add_f32 {t2}, {t2}, {f[2 * i:2 * i + 2]}')
    a(f'v_add_f32 {s0}, {t2[0]}, {t2[1]}')
    rowsum()
    a(f'v_mul_f32 {s0}, {f32hex(1.0 / 640)}, {s0}')
    for i in range(80):
        a(f'v_sub_f32 {f[i]}, {f[i]}, {s0}')
    a(f'v_pk_mul_f32 {t2}, {f[0:2]}, {f[0:2]}')
    for i in range(1, 40):
        a(f'v_pk_fma_f32 {t2}, {f[2 * i:2 * i + 2]}, {f[2 * i:2 * i + 2]}, {t2}')
    a(f'v_add_f32 {s0}, {t2[0]}, {t2[1]}')
    rowsum()
    a(f'v_mov_b32 {s1}, {f32hex(1e-5)}')
    a(f'v_fmac_f32 {s1}, {f32hex(1.0 / 640)}, {s0}')
    a(f'v_rsq_f32 {s0}, {s1}')
    for i in range(10):
        for k in range(8):
            a(f'v_mul_f32 {f[8 * i + k]}, {f[8 * i + k]}, {s0}')
        for k in range(4):
            a(f'v_cvt_pk_bf16_f32 {f[8 * i + k]}, {f[8 * i + 2 * k]}, {f[8 * i + 2 * k + 1]}')
        a(f's_add_u32 {S["t2"]}, {sRow}, {4096 * i}')
        a(f'buffer_store_dwordx4 {f[8 * i:8 * i + 4]}, {vB}, {sWS}, {S["t2"]} offen sc1')
    a(f's_add_u32 {sCnt}, {sCnt}, 1')
    a(f'v_mov_b32 {vCnt}, {sCnt}')
    labc = a.newlabel('cdone')
    a(f's_cmp_lg_u32 {sCnt}, 1')
    a(f's_cbranch_scc1 {labc}')
    census(c.t[1], c.t[2])
    a.label(labc)
    a('s_waitcnt vmcnt(0)')
    a('s_barrier')
    a(f'buffer_store_dword {vCnt}, {vOwn}, {sWS}, 0 offen sc1')
    a(f's_cmp_lt_u32 {sSeg}, 64')
    a(f's_cbranch_scc1 {top}')
    S['tl'](3, c.t[0], c.t[1])
    c.LA(vA, [(3, 3, 1280), (0, 3, 16)])
    c.LA(vB, [(2, 1, 2048), (1, 1, 1024), (0, 1, 512), (3, 3, 16)])
    a(f'v_min_u32 {vF3}, 2, {c.lane}')
    a(f'v_mul_u32_u24 {vF3}, 640, {vF3}')
    a(f'v_add_u32 {vF3}, {FLG + F_P3 * 128}, {vF3}')
    c.LA(vF4, [(0, 3, 640)], [], FLG + F_P4 * 128)
    top = a.newlabel('fin')
    a.label(top)
    a(f's_mul_i32 {sSeg}, {sTask}, 52429')
    a(f's_lshr_b32 {sSeg}, {sSeg}, 21')
    a(f's_mul_i32 {S["t1"]}, {sSeg}, 40')
    a(f's_sub_u32 {S["t1"]}, {sTask}, {S["t1"]}')
    a(f's_mul_i32 {sO8}, {S["t1"]}, 26')
    a(f's_lshr_b32 {sO8}, {sO8}, 8')
    a(f's_mul_i32 {S["t2"]}, {sO8}, 10')
    a(f's_sub_u32 {sCg}, {S["t1"]}, {S["t2"]}')
    a(f's_lshr_b32 {sNg}, {sCg}, 1')
    a(f's_add_u32 {sNeed}, {sSeg}, 1')
    a(f's_mul_i32 {sRow}, {sSeg}, 40960')
    a(f's_mul_i32 {S["t1"]}, {sO8}, 10240')
    a(f's_add_u32 {sRow}, {sRow}, {S["t1"]}')
    a(f's_lshl_b32 {S["t1"]}, {sCg}, 7')
    a(f's_add_u32 {sRow}, {sRow}, {S["t1"]}')
    a(f's_lshl_b32 {S["t1"]}, {sNg}, 13')
    a(f's_and_b32 {S["t2"]}, {sCg}, 1')
    a(f's_lshl_b32 {S["t2"]}, {S["t2"]}, 12')
    a(f's_add_u32 {S["t1"]}, {S["t1"]}, {S["t2"]}')
    a(f's_lshl_b32 {S["t2"]}, {sO8}, 7')
    a(f's_add_u32 {S["t1"]}, {S["t1"]}, {S["t2"]}')
    seg_off(c, sP4, sSeg, 0, 40 * 8192, P4, S['t1'])
    seg_off(c, sP3, sSeg, 0, 15 * 8192, P3, S['t1'])
    a(f's_lshl_b32 {sNg}, {sNg}, 7')
    a(f'buffer_load_dwordx4 {xr[0:4]}, {vA}, {sX}, {sRow} offen')
    c.spin_flags(vFl, vF3, sNg, sNeed, 28)
    for k in range(3):
        a(f's_add_u32 {S["t2"]}, {sP3}, {k * 40960}')
        a(f'buffer_load_dwordx4 {xr[4 + 4 * k:8 + 4 * k]}, {vB}, {sWS}, {S["t2"]} offen sc1')

    def add(k, first=False):
        for i in range(4):
            d = f[2 * i:2 * i + 2] if first else f[8:10]
            a(f'v_lshlrev_b32 {d[0]}, 16, {xr[4 * k + i]}')
            a(f'v_and_b32 {d[1]}, 0xffff0000, {xr[4 * k + i]}')
            if not first:
                a(f'v_pk_add_f32 {f[2 * i:2 * i + 2]}, {f[2 * i:2 * i + 2]}, {d}')
    c.spin_flags(vFl, vF4, sNg, sNeed, 29)
    for k in range(8):
        a(f's_add_u32 {S["t2"]}, {sP4}, {k * 40960}')
        a(f'buffer_load_dwordx4 {xr[16 + 4 * k:20 + 4 * k]}, {vB}, {sWS}, {S["t2"]} offen sc1')
    for k in range(4):
        add(k, k == 0)
    for k in range(8):
        a(f's_waitcnt vmcnt({7 - k})')
        add(4 + k)
    for i in range(4):
        a(f'v_cvt_pk_bf16_f32 {f[12 + i]}, {f[2 * i]}, {f[2 * i + 1]}')
    a(f'buffer_store_dwordx4 {f[12:16]}, {vA}, {sOut}, {sRow} offen')
    a(f's_add_u32 {sTask}, {sTask}, {4 * NF}')
    a(f's_cmp_lt_u32 {sTask}, {64 * 40}')
    a(f's_cbranch_scc1 {top}')
    S['tl'](4, c.t[0], c.t[1])
    a('s_endpgm')
```

```python
import sys, json
from dsl import Asm, Regs, R, Ins
from layout import *
from role_r2 import gen_R
import roles_tok as T

NAME = 'parallel_sum__memory_aug_recurrent_mem_tr__glu_gated_glu__prompt_kernel'
HEAD = open('ref_head.txt').read().split('; Override')[0]


def build(cfg):
    a = Asm()
    sr = Regs('s', 4, 102)
    S = {}
    S['ws'] = sr.alloc('ws', 4)
    S['ptrs'] = sr.alloc('ptrs', 8, align=4)
    ld0 = sr.alloc('x_mem0', 4)
    S['x'], S['mem0'] = ld0[0:2], ld0[2:4]
    ld1 = sr.alloc('dbg_ws', 4)
    S['dbg'] = ld1[0:2]
    for nme in ('h', 'j', 'w', 'budget', 't0', 't1', 't2', 't3', 'xcc', 'mode'):
        S[nme] = sr.alloc(nme)
    S['idx'] = S['h']
    rfree = sr.next
    ffn = sr.alloc('ffn', 8, align=4)
    S['ffn'], S['out'] = ffn[0:6], ffn[6:8]
    S['free'] = sr.next
    t0, t1, t2 = S['t0'], S['t1'], S['t2']

    def tl(i, va, vb):
        if not cfg.get('tl'):
            return
        a('s_memrealtime vcc')
        a('s_waitcnt lgkmcnt(0)')
        a(f's_lshl_b32 {t0}, s2, 6')
        a(f's_add_u32 {t0}, {t0}, {TIM + 65536 + 4 * i}')
        a(f'v_mov_b32 {va}, vcc_lo')
        a(f'v_mov_b32 {vb}, 0')
        a(f'buffer_store_dword {va}, {vb}, {S["ws"]}, {t0} offen')
        if i == 0:
            a(f's_lshl_b32 {t1}, {S["j"]}, 8')
            a(f's_or_b32 {t1}, {t1}, {S["h"]}')
            a(f'v_mov_b32 {va}, {t1}')
            a(f'buffer_store_dword {va}, {vb}, {S["ws"]}, {t0} offen offset:60')
        a('s_waitcnt vmcnt(0)')
    S['tl'] = tl
    a('s_cmp_ge_u32 s2, 256')
    a('s_cbranch_scc1 L_exit')
    a(f's_load_dwordx4 {ld0}, s[0:1], 0')
    a(f's_load_dwordx8 {S["ptrs"]}, s[0:1], 16')
    a(f's_load_dwordx4 {ld1}, s[0:1], 96')
    a(f's_mov_b64 {R("s", 100, 2)}, s[0:1]')
    a(f's_getreg_b32 {S["xcc"]}, hwreg(HW_REG_XCC_ID, 0, 4)')
    a('v_lshrrev_b32 v1, 6, v0')
    a(f'v_readfirstlane_b32 {S["w"]}, v1')
    a(f's_mov_b32 {S["budget"]}, {cfg.get("budget", 400000)}')
    a(f's_mov_b32 {S["mode"]}, 0')
    a('s_waitcnt lgkmcnt(0)')
    a(f's_mov_b32 {S["ws"][0]}, {ld1[2]}')
    a(f's_and_b32 {S["ws"][1]}, {ld1[3]}, 0xffff')
    a(f's_mov_b32 {S["ws"][2]}, 0x10000000')
    a(f's_mov_b32 {S["ws"][3]}, 0x20000')
    a(f's_cmp_lg_u32 {S["w"]}, 0')
    a('s_cbranch_scc1 L_tk')
    a('s_mov_b64 exec, 3')
    a(f's_lshl_b32 {t0}, s2, 8')
    a(f's_add_u32 {t0}, {t0}, {FLG}')
    a('v_lshlrev_b32 v1, 7, v0')
    a('v_mov_b32 v2, 0')
    a(f'buffer_store_dword v2, v1, {S["ws"]}, {t0} offen sc1')
    a(f's_and_b32 {t0}, {S["xcc"]}, 3')
    a(f's_lshl_b32 {t0}, {t0}, 6')
    a(f's_bfe_u32 {t1}, {S["xcc"]}, 0x10002')
    a(f's_lshl_b32 {t1}, {t1}, 2')
    a(f's_add_u32 {t0}, {t0}, {t1}')
    a(f'v_mov_b32 v1, {t0}')
    a('v_mov_b32 v2, 1')
    a('s_mov_b64 exec, 1')
    a('s_waitcnt vmcnt(0)')
    a(f'global_atomic_add v3, v1, v2, {S["dbg"]} sc0')
    a('v_mov_b32 v1, 0')
    a('s_waitcnt vmcnt(0)')
    a('ds_write_b32 v1, v3')
    a('s_waitcnt lgkmcnt(0)')
    a('s_mov_b64 exec, -1')
    a.label('L_tk')
    a('s_barrier')
    a('v_mov_b32 v1, 0')
    a('ds_read_b32 v2, v1')
    a('s_waitcnt lgkmcnt(0)')
    a(f'v_readfirstlane_b32 {S["h"]}, v2')
    a('s_barrier')
    a(f's_and_b32 {S["j"]}, {S["xcc"]}, 7')
    a(f's_cmp_ge_u32 {S["h"]}, 32')
    a('s_cbranch_scc1 L_norole')
    a.label('L_dispatch')
    tl(0, 'v1', 'v2')
    h, j = S['h'], S['j']
    a(f's_cmp_lt_u32 {j}, 2')
    a('s_cbranch_scc1 L_R')
    a(f's_load_dwordx8 {ffn}, s[100:101], 64')
    a('s_waitcnt lgkmcnt(0)')
    a(f's_cmp_eq_u32 {j}, 4\ns_cbranch_scc1 L_KV')
    a(f's_cmp_eq_u32 {j}, 2\ns_cbranch_scc1 L_QA')
    a(f's_cmp_eq_u32 {j}, 5\ns_cbranch_scc0 L_d5')
    a(f's_add_u32 {h}, {h}, 32\ns_branch L_KV')
    a.label('L_d5')
    a(f's_cmp_eq_u32 {j}, 3\ns_cbranch_scc0 L_d6')
    a(f's_cmp_lt_u32 {h}, 27\ns_cbranch_scc1 L_G2')
    a(f's_sub_u32 {h}, {h}, 27\ns_branch L_F')
    a.label('L_d6')
    a(f's_cmp_eq_u32 {j}, 6\ns_cbranch_scc0 L_d7')
    a(f's_cmp_lt_u32 {h}, 30\ns_cbranch_scc1 L_G4')
    a(f's_sub_u32 {h}, {h}, 25\ns_branch L_F')
    a.label('L_d7')
    a(f's_cmp_lt_u32 {h}, 10\ns_cbranch_scc0 L_d7b')
    a(f's_add_u32 {h}, {h}, 30\ns_branch L_G4')
    a.label('L_d7b')
    a(f's_cmp_lt_u32 {h}, 25\ns_cbranch_scc0 L_d7c')
    a(f's_sub_u32 {h}, {h}, 10\ns_branch L_G3')
    a.label('L_d7c')
    a(f's_sub_u32 {h}, {h}, 18\ns_branch L_F')

    def bail(code):
        lab = a.newlabel('ok')
        a(f's_sub_u32 {S["budget"]}, {S["budget"]}, 1')
        a(f's_cbranch_scc0 {lab}')
        a(f's_mov_b32 {t0}, {code}')
        a('s_branch L_bail')
        a.label(lab)

    def count(va, vb):
        lab = a.newlabel('cen')
        a(f'v_mbcnt_lo_u32_b32 {va}, -1, 0')
        a(f'v_bfe_u32 {vb}, {va}, 2, 1')
        a(f'v_and_b32 {va}, 3, {va}')
        a(f'v_lshlrev_b32 {va}, 6, {va}')
        a(f'v_lshl_add_u32 {va}, {vb}, 2, {va}')
        a.label(lab)
        a(f'global_load_dword {vb}, {va}, {S["dbg"]} sc1')
        bail(10)
        a('s_waitcnt vmcnt(0)')
        a(f's_mov_b32 {t1}, 0')
        for i in range(8):
            a(f'v_readlane_b32 {t2}, {vb}, {i}')
            a(f's_add_u32 {t1}, {t1}, {t2}')
        a(f's_cmp_lt_u32 {t1}, 256')
        a(f's_cbranch_scc1 {lab}')
        a(f'v_cmp_ne_u32 vcc, {33 if cfg.get("force_fb") else 32}, {vb}')
        a('s_cbranch_vccnz L_fallback')

    def census(va, vb):
        lab = a.newlabel('cs')
        tl(1, va, vb)
        a(f's_cmp_eq_u32 {S["mode"]}, 1')
        a(f's_cbranch_scc1 {lab}')
        count(va, vb)
        a.label(lab)
        tl(2, va, vb)

    a.label('L_norole')
    count('v1', 'v2')
    a.label('L_fallback')
    a('s_waitcnt vmcnt(0) lgkmcnt(0)')
    a('s_barrier')
    a(f's_mov_b32 {S["mode"]}, 1')
    a('v_mbcnt_lo_u32_b32 v0, -1, 0')
    a('v_mbcnt_hi_u32_b32 v0, -1, v0')
    a(f's_lshl_b32 {t0}, {S["w"]}, 6')
    a(f'v_add_u32 v0, {t0}, v0')
    a(f's_lshr_b32 {j}, s2, 5')
    a(f's_and_b32 {h}, s2, 31')
    a('s_branch L_dispatch')
    for lab, fn in (('L_F', T.gen_F), ('L_KV', T.gen_KV), ('L_QA', T.gen_QA), ('L_G2', T.gen_G2), ('L_G3', T.gen_G3), ('L_G4', T.gen_G4)):
        a.label(lab)
        fn(a, S, cfg, census)
    a.label('L_bail')
    a(f'v_mov_b32 v1, {t0}')
    a('v_mov_b32 v2, 0')
    a(f'global_store_dword v2, v1, {S["dbg"]} offset:{4 * D_BAIL}')
    a.label('L_exit')
    a('s_endpgm')
    a.label('L_R')
    a(f's_cmp_eq_u32 {S["mode"]}, 1')
    a('s_cbranch_scc1 L_R1')
    for fb in range(2):
        if fb:
            a.label('L_R1')
        S['alloc'] = Regs('s', rfree, 100)
        c2 = dict(cfg)
        c2['fast'] = not fb
        if fb:
            c2.pop('prof', None)
        gen_R(a, S, c2, census)
    a.fix_hazards(verbose=cfg.get('verbose', False))
    head = HEAD + f'''; one persistent launch, 256 workgroups = one per CU; roles are listed in the generator notes below
; @launch grid=(256,1,1) block=(256,1,1) lds=163840
.amdgcn_target "amdgcn-amd-amdhsa--gfx950"
.text
.globl {NAME}
.p2align 8
.type {NAME},@function
{NAME}:
'''
    tail = f'''.section .rodata,"a"
.p2align 6
.amdhsa_kernel {NAME}
  .amdhsa_next_free_vgpr 512
  .amdhsa_next_free_sgpr 102
  .amdhsa_accum_offset 256
  .amdhsa_group_segment_fixed_size 0
  .amdhsa_kernarg_size 112
  .amdhsa_user_sgpr_count 2
  .amdhsa_user_sgpr_kernarg_segment_ptr 1
  .amdhsa_system_sgpr_workgroup_id_x 1
.end_amdhsa_kernel
'''
    return head + a.text() + tail


if __name__ == '__main__':
    cfg = json.loads(sys.argv[2]) if len(sys.argv) > 2 else {}
    open(sys.argv[1], 'w').write(build(cfg))
```

```python
import sys, json
from dsl import Asm, Regs, R, Ins
from layout import *
from role_r2 import gen_R
import roles_tok as T

NAME = 'parallel_sum__memory_aug_recurrent_mem_tr__glu_gated_glu__prompt_kernel'
HEAD = open('ref_head.txt').read().split('; Override')[0]


def build(cfg):
    a = Asm()
    sr = Regs('s', 4, 102)
    S = {}
    S['ws'] = sr.alloc('ws', 4)
    S['ptrs'] = sr.alloc('ptrs', 8, align=4)
    ld0 = sr.alloc('x_mem0', 4)
    S['x'], S['mem0'] = ld0[0:2], ld0[2:4]
    ld1 = sr.alloc('dbg_ws', 4)
    S['dbg'] = ld1[0:2]
    for nme in ('h', 'j', 'w', 'budget', 't0', 't1', 't2', 't3', 'xcc', 'mode'):
        S[nme] = sr.alloc(nme)
    S['idx'] = S['h']
    rfree = sr.next
    ffn = sr.alloc('ffn', 8, align=4)
    S['ffn'], S['out'] = ffn[0:6], ffn[6:8]
    S['free'] = sr.next
    t0, t1, t2 = S['t0'], S['t1'], S['t2']

    def tl(i, va, vb):
        if cfg.get('tld'):
            a('s_memrealtime vcc')
            a('s_waitcnt lgkmcnt(0)')
            a(f's_cmp_lt_u32 {S["j"]}, 2')
            a(f's_cselect_b32 {t0}, {4 * (2, 3, 3, 4, 5)[i]}, {4 * (6, 7, 7, 10, 11)[i]}')
            a(f'v_mov_b32 {va}, vcc_lo')
            a(f'v_mov_b32 {vb}, {t0}')
            a(f'global_atomic_umax {vb}, {va}, {S["dbg"]}')
            if i == 0:
                a(f'v_not_b32 {va}, {va}')
                a(f'v_mov_b32 {vb}, 52')
                a(f'global_atomic_umax {vb}, {va}, {S["dbg"]}')
            a('s_waitcnt vmcnt(0)')
            return
        if not cfg.get('tl'):
            return
        a('s_memrealtime vcc')
        a('s_waitcnt lgkmcnt(0)')
        a(f's_lshl_b32 {t0}, s2, 6')
        a(f's_add_u32 {t0}, {t0}, {TIM + 65536 + 4 * i}')
        a(f'v_mov_b32 {va}, vcc_lo')
        a(f'v_mov_b32 {vb}, 0')
        a(f'buffer_store_dword {va}, {vb}, {S["ws"]}, {t0} offen')
        if i == 0:
            a(f's_lshl_b32 {t1}, {S["j"]}, 8')
            a(f's_or_b32 {t1}, {t1}, {S["h"]}')
            a(f'v_mov_b32 {va}, {t1}')
            a(f'buffer_store_dword {va}, {vb}, {S["ws"]}, {t0} offen offset:60')
        a('s_waitcnt vmcnt(0)')
    S['tl'] = tl
    a('s_cmp_ge_u32 s2, 256')
    a('s_cbranch_scc1 L_exit')
    a(f's_load_dwordx4 {ld0}, s[0:1], 0')
    a(f's_load_dwordx8 {S["ptrs"]}, s[0:1], 16')
    a(f's_load_dwordx4 {ld1}, s[0:1], 96')
    a(f's_mov_b64 {R("s", 100, 2)}, s[0:1]')
    a(f's_getreg_b32 {S["xcc"]}, hwreg(HW_REG_XCC_ID, 0, 4)')
    a('v_lshrrev_b32 v1, 6, v0')
    a(f'v_readfirstlane_b32 {S["w"]}, v1')
    a(f's_mov_b32 {S["budget"]}, {cfg.get("budget", 400000)}')
    a(f's_mov_b32 {S["mode"]}, 0')
    a('s_waitcnt lgkmcnt(0)')
    a(f's_mov_b32 {S["ws"][0]}, {ld1[2]}')
    a(f's_and_b32 {S["ws"][1]}, {ld1[3]}, 0xffff')
    a(f's_mov_b32 {S["ws"][2]}, 0x10000000')
    a(f's_mov_b32 {S["ws"][3]}, 0x20000')
    a(f's_cmp_lg_u32 {S["w"]}, 0')
    a('s_cbranch_scc1 L_tk')
    a('s_mov_b64 exec, 3')
    a(f's_lshl_b32 {t0}, s2, 8')
    a(f's_add_u32 {t0}, {t0}, {FLG}')
    a('v_lshlrev_b32 v1, 7, v0')
    a('v_mov_b32 v2, 0')
    a(f'buffer_store_dword v2, v1, {S["ws"]}, {t0} offen sc1')
    a(f's_and_b32 {t0}, {S["xcc"]}, 3')
    a(f's_lshl_b32 {t0}, {t0}, 6')
    a(f's_bfe_u32 {t1}, {S["xcc"]}, 0x10002')
    a(f's_lshl_b32 {t1}, {t1}, 2')
    a(f's_add_u32 {t0}, {t0}, {t1}')
    a(f'v_mov_b32 v1, {t0}')
    a('v_mov_b32 v2, 1')
    a('s_mov_b64 exec, 1')
    a('s_waitcnt vmcnt(0)')
    a(f'global_atomic_add v3, v1, v2, {S["dbg"]} sc0')
    a('v_mov_b32 v1, 0')
    a('s_waitcnt vmcnt(0)')
    a('ds_write_b32 v1, v3')
    a('s_waitcnt lgkmcnt(0)')
    a('s_mov_b64 exec, -1')
    a.label('L_tk')
    a('s_barrier')
    a('v_mov_b32 v1, 0')
    a('ds_read_b32 v2, v1')
    a('s_waitcnt lgkmcnt(0)')
    a(f'v_readfirstlane_b32 {S["h"]}, v2')
    a('s_barrier')
    a(f's_and_b32 {S["j"]}, {S["xcc"]}, 7')
    a(f's_cmp_ge_u32 {S["h"]}, 32')
    a('s_cbranch_scc1 L_norole')
    a.label('L_dispatch')
    tl(0, 'v1', 'v2')
    h, j = S['h'], S['j']
    a(f's_cmp_lt_u32 {j}, 2')
    a('s_cbranch_scc1 L_R')
    a(f's_load_dwordx8 {ffn}, s[100:101], 64')
    a('s_waitcnt lgkmcnt(0)')
    a(f's_cmp_eq_u32 {j}, 4\ns_cbranch_scc1 L_KV')
    a(f's_cmp_eq_u32 {j}, 2\ns_cbranch_scc1 L_QA')
    a(f's_cmp_eq_u32 {j}, 5\ns_cbranch_scc0 L_d5')
    a(f's_add_u32 {h}, {h}, 32\ns_branch L_KV')
    a.label('L_d5')
    a(f's_cmp_eq_u32 {j}, 3\ns_cbranch_scc0 L_d6')
    a(f's_cmp_lt_u32 {h}, 27\ns_cbranch_scc1 L_G2')
    a(f's_sub_u32 {h}, {h}, 27\ns_branch L_F')
    a.label('L_d6')
    a(f's_cmp_eq_u32 {j}, 6\ns_cbranch_scc0 L_d7')
    a(f's_cmp_lt_u32 {h}, 30\ns_cbranch_scc1 L_G4')
    a(f's_sub_u32 {h}, {h}, 25\ns_branch L_F')
    a.label('L_d7')
    a(f's_cmp_lt_u32 {h}, 10\ns_cbranch_scc0 L_d7b')
    a(f's_add_u32 {h}, {h}, 30\ns_branch L_G4')
    a.label('L_d7b')
    a(f's_cmp_lt_u32 {h}, 25\ns_cbranch_scc0 L_d7c')
    a(f's_sub_u32 {h}, {h}, 10\ns_branch L_G3')
    a.label('L_d7c')
    a(f's_sub_u32 {h}, {h}, 18\ns_branch L_F')

    def bail(code):
        lab = a.newlabel('ok')
        a(f's_sub_u32 {S["budget"]}, {S["budget"]}, 1')
        a(f's_cbranch_scc0 {lab}')
        a(f's_mov_b32 {t0}, {code}')
        a('s_branch L_bail')
        a.label(lab)

    def count(va, vb):
        lab = a.newlabel('cen')
        a(f'v_mbcnt_lo_u32_b32 {va}, -1, 0')
        a(f'v_bfe_u32 {vb}, {va}, 2, 1')
        a(f'v_and_b32 {va}, 3, {va}')
        a(f'v_lshlrev_b32 {va}, 6, {va}')
        a(f'v_lshl_add_u32 {va}, {vb}, 2, {va}')
        a.label(lab)
        a(f'global_load_dword {vb}, {va}, {S["dbg"]} sc1')
        bail(10)
        a('s_waitcnt vmcnt(0)')
        a(f's_mov_b32 {t1}, 0')
        for i in range(8):
            a(f'v_readlane_b32 {t2}, {vb}, {i}')
            a(f's_add_u32 {t1}, {t1}, {t2}')
        a(f's_cmp_lt_u32 {t1}, 256')
        a(f's_cbranch_scc1 {lab}')
        a(f'v_cmp_ne_u32 vcc, {33 if cfg.get("force_fb") else 32}, {vb}')
        a('s_cbranch_vccnz L_fallback')

    def census(va, vb):
        lab = a.newlabel('cs')
        tl(1, va, vb)
        a(f's_cmp_eq_u32 {S["mode"]}, 1')
        a(f's_cbranch_scc1 {lab}')
        count(va, vb)
        a.label(lab)
        tl(2, va, vb)

    a.label('L_norole')
    count('v1', 'v2')
    a.label('L_fallback')
    a('s_waitcnt vmcnt(0) lgkmcnt(0)')
    a('s_barrier')
    a(f's_mov_b32 {S["mode"]}, 1')
    a('v_mbcnt_lo_u32_b32 v0, -1, 0')
    a('v_mbcnt_hi_u32_b32 v0, -1, v0')
    a(f's_lshl_b32 {t0}, {S["w"]}, 6')
    a(f'v_add_u32 v0, {t0}, v0')
    a(f's_lshr_b32 {j}, s2, 5')
    a(f's_and_b32 {h}, s2, 31')
    a('s_branch L_dispatch')
    for lab, fn in (('L_F', T.gen_F), ('L_KV', T.gen_KV), ('L_QA', T.gen_QA), ('L_G2', T.gen_G2), ('L_G3', T.gen_G3), ('L_G4', T.gen_G4)):
        a.label(lab)
        fn(a, S, cfg, census)
    a.label('L_bail')
    a(f'v_mov_b32 v1, {t0}')
    a('v_mov_b32 v2, 0')
    a(f'global_store_dword v2, v1, {S["dbg"]} offset:{4 * D_BAIL}')
    a.label('L_exit')
    a('s_endpgm')
    a.label('L_R')
    a(f's_cmp_eq_u32 {S["mode"]}, 1')
    a('s_cbranch_scc1 L_R1')
    for fb in range(2):
        if fb:
            a.label('L_R1')
        S['alloc'] = Regs('s', rfree, 100)
        c2 = dict(cfg)
        c2['fast'] = not fb
        if fb:
            c2.pop('prof', None)
        gen_R(a, S, c2, census)
    a.fix_hazards(verbose=cfg.get('verbose', False))
    head = HEAD + f'''; one persistent launch, 256 workgroups = one per CU; roles are listed in the generator notes below
; @launch grid=(256,1,1) block=(256,1,1) lds=163840
.amdgcn_target "amdgcn-amd-amdhsa--gfx950"
.text
.globl {NAME}
.p2align 8
.type {NAME},@function
{NAME}:
'''
    tail = f'''.section .rodata,"a"
.p2align 6
.amdhsa_kernel {NAME}
  .amdhsa_next_free_vgpr 512
  .amdhsa_next_free_sgpr 102
  .amdhsa_accum_offset 256
  .amdhsa_group_segment_fixed_size 0
  .amdhsa_kernarg_size 112
  .amdhsa_user_sgpr_count 2
  .amdhsa_user_sgpr_kernarg_segment_ptr 1
  .amdhsa_system_sgpr_workgroup_id_x 1
.end_amdhsa_kernel
'''
    return head + a.text() + tail


if __name__ == '__main__':
    cfg = json.loads(sys.argv[2]) if len(sys.argv) > 2 else {}
    open(sys.argv[1], 'w').write(build(cfg))
```

```python
import sys, json
from dsl import Asm, Regs, R, Ins
from layout import *
from role_r2 import gen_R
import roles_tok as T

NAME = 'parallel_sum__memory_aug_recurrent_mem_tr__glu_gated_glu__prompt_kernel'
HEAD = open('ref_head.txt').read().split('; Override')[0]


def build(cfg):
    a = Asm()
    sr = Regs('s', 4, 102)
    S = {}
    S['ws'] = sr.alloc('ws', 4)
    S['ptrs'] = sr.alloc('ptrs', 8, align=4)
    ld0 = sr.alloc('x_mem0', 4)
    S['x'], S['mem0'] = ld0[0:2], ld0[2:4]
    ld1 = sr.alloc('dbg_ws', 4)
    S['dbg'] = ld1[0:2]
    for nme in ('h', 'j', 'w', 'budget', 't0', 't1', 't2', 't3', 'xcc', 'mode'):
        S[nme] = sr.alloc(nme)
    S['idx'] = S['h']
    rfree = sr.next
    ffn = sr.alloc('ffn', 8, align=4)
    S['ffn'], S['out'] = ffn[0:6], ffn[6:8]
    S['free'] = sr.next
    t0, t1, t2 = S['t0'], S['t1'], S['t2']

    def tl(i, va, vb):
        if cfg.get('tld'):
            lab = a.newlabel('tld')
            a(f's_cmp_lg_u32 {S["w"]}, 0')
            a(f's_cbranch_scc1 {lab}')
            a(f's_and_b32 {t0}, {S["h"]}, 7')
            a(f's_cmp_lg_u32 {t0}, 0')
            a(f's_cbranch_scc1 {lab}')
            a('s_mov_b64 exec, 1')
            a('s_memrealtime vcc')
            a('s_waitcnt lgkmcnt(0)')
            a(f's_cmp_lt_u32 {S["j"]}, 2')
            a(f's_cselect_b32 {t0}, {4 * (2, 3, 3, 4, 5)[i]}, {4 * (6, 7, 7, 10, 11)[i]}')
            a(f'v_mov_b32 {va}, vcc_lo')
            a(f'v_mov_b32 {vb}, {t0}')
            a(f'global_atomic_umax {vb}, {va}, {S["dbg"]}')
            if i == 0:
                a(f'v_not_b32 {va}, {va}')
                a(f'v_mov_b32 {vb}, 52')
                a(f'global_atomic_umax {vb}, {va}, {S["dbg"]}')
            a('s_mov_b64 exec, -1')
            a.label(lab)
            return
        if not cfg.get('tl'):
            return
        a('s_memrealtime vcc')
        a('s_waitcnt lgkmcnt(0)')
        a(f's_lshl_b32 {t0}, s2, 6')
        a(f's_add_u32 {t0}, {t0}, {TIM + 65536 + 4 * i}')
        a(f'v_mov_b32 {va}, vcc_lo')
        a(f'v_mov_b32 {vb}, 0')
        a(f'buffer_store_dword {va}, {vb}, {S["ws"]}, {t0} offen')
        if i == 0:
            a(f's_lshl_b32 {t1}, {S["j"]}, 8')
            a(f's_or_b32 {t1}, {t1}, {S["h"]}')
            a(f'v_mov_b32 {va}, {t1}')
            a(f'buffer_store_dword {va}, {vb}, {S["ws"]}, {t0} offen offset:60')
        a('s_waitcnt vmcnt(0)')
    S['tl'] = tl
    a('s_cmp_ge_u32 s2, 256')
    a('s_cbranch_scc1 L_exit')
    a(f's_load_dwordx4 {ld0}, s[0:1], 0')
    a(f's_load_dwordx8 {S["ptrs"]}, s[0:1], 16')
    a(f's_load_dwordx4 {ld1}, s[0:1], 96')
    a(f's_mov_b64 {R("s", 100, 2)}, s[0:1]')
    a(f's_getreg_b32 {S["xcc"]}, hwreg(HW_REG_XCC_ID, 0, 4)')
    a('v_lshrrev_b32 v1, 6, v0')
    a(f'v_readfirstlane_b32 {S["w"]}, v1')
    a(f's_mov_b32 {S["budget"]}, {cfg.get("budget", 400000)}')
    a(f's_mov_b32 {S["mode"]}, 0')
    a('s_waitcnt lgkmcnt(0)')
    a(f's_mov_b32 {S["ws"][0]}, {ld1[2]}')
    a(f's_and_b32 {S["ws"][1]}, {ld1[3]}, 0xffff')
    a(f's_mov_b32 {S["ws"][2]}, 0x10000000')
    a(f's_mov_b32 {S["ws"][3]}, 0x20000')
    a(f's_cmp_lg_u32 {S["w"]}, 0')
    a('s_cbranch_scc1 L_tk')
    a('s_mov_b64 exec, 3')
    a(f's_lshl_b32 {t0}, s2, 8')
    a(f's_add_u32 {t0}, {t0}, {FLG}')
    a('v_lshlrev_b32 v1, 7, v0')
    a('v_mov_b32 v2, 0')
    a(f'buffer_store_dword v2, v1, {S["ws"]}, {t0} offen sc1')
    a(f's_and_b32 {t0}, {S["xcc"]}, 3')
    a(f's_lshl_b32 {t0}, {t0}, 6')
    a(f's_bfe_u32 {t1}, {S["xcc"]}, 0x10002')
    a(f's_lshl_b32 {t1}, {t1}, 2')
    a(f's_add_u32 {t0}, {t0}, {t1}')
    a(f'v_mov_b32 v1, {t0}')
    a('v_mov_b32 v2, 1')
    a('s_mov_b64 exec, 1')
    a('s_waitcnt vmcnt(0)')
    a(f'global_atomic_add v3, v1, v2, {S["dbg"]} sc0')
    a('v_mov_b32 v1, 0')
    a('s_waitcnt vmcnt(0)')
    a('ds_write_b32 v1, v3')
    a('s_waitcnt lgkmcnt(0)')
    a('s_mov_b64 exec, -1')
    a.label('L_tk')
    a('s_barrier')
    a('v_mov_b32 v1, 0')
    a('ds_read_b32 v2, v1')
    a('s_waitcnt lgkmcnt(0)')
    a(f'v_readfirstlane_b32 {S["h"]}, v2')
    a('s_barrier')
    a(f's_and_b32 {S["j"]}, {S["xcc"]}, 7')
    a(f's_cmp_ge_u32 {S["h"]}, 32')
    a('s_cbranch_scc1 L_norole')
    a.label('L_dispatch')
    tl(0, 'v1', 'v2')
    h, j = S['h'], S['j']
    a(f's_cmp_lt_u32 {j}, 2')
    a('s_cbranch_scc1 L_R')
    a(f's_load_dwordx8 {ffn}, s[100:101], 64')
    a('s_waitcnt lgkmcnt(0)')
    a(f's_cmp_eq_u32 {j}, 4\ns_cbranch_scc1 L_KV')
    a(f's_cmp_eq_u32 {j}, 2\ns_cbranch_scc1 L_QA')
    a(f's_cmp_eq_u32 {j}, 5\ns_cbranch_scc0 L_d5')
    a(f's_add_u32 {h}, {h}, 32\ns_branch L_KV')
    a.label('L_d5')
    a(f's_cmp_eq_u32 {j}, 3\ns_cbranch_scc0 L_d6')
    a(f's_cmp_lt_u32 {h}, 27\ns_cbranch_scc1 L_G2')
    a(f's_sub_u32 {h}, {h}, 27\ns_branch L_F')
    a.label('L_d6')
    a(f's_cmp_eq_u32 {j}, 6\ns_cbranch_scc0 L_d7')
    a(f's_cmp_lt_u32 {h}, 30\ns_cbranch_scc1 L_G4')
    a(f's_sub_u32 {h}, {h}, 25\ns_branch L_F')
    a.label('L_d7')
    a(f's_cmp_lt_u32 {h}, 10\ns_cbranch_scc0 L_d7b')
    a(f's_add_u32 {h}, {h}, 30\ns_branch L_G4')
    a.label('L_d7b')
    a(f's_cmp_lt_u32 {h}, 25\ns_cbranch_scc0 L_d7c')
    a(f's_sub_u32 {h}, {h}, 10\ns_branch L_G3')
    a.label('L_d7c')
    a(f's_sub_u32 {h}, {h}, 18\ns_branch L_F')

    def bail(code):
        lab = a.newlabel('ok')
        a(f's_sub_u32 {S["budget"]}, {S["budget"]}, 1')
        a(f's_cbranch_scc0 {lab}')
        a(f's_mov_b32 {t0}, {code}')
        a('s_branch L_bail')
        a.label(lab)

    def count(va, vb):
        lab = a.newlabel('cen')
        a(f'v_mbcnt_lo_u32_b32 {va}, -1, 0')
        a(f'v_bfe_u32 {vb}, {va}, 2, 1')
        a(f'v_and_b32 {va}, 3, {va}')
        a(f'v_lshlrev_b32 {va}, 6, {va}')
        a(f'v_lshl_add_u32 {va}, {vb}, 2, {va}')
        a.label(lab)
        a(f'global_load_dword {vb}, {va}, {S["dbg"]} sc1')
        bail(10)
        a('s_waitcnt vmcnt(0)')
        a(f's_mov_b32 {t1}, 0')
        for i in range(8):
            a(f'v_readlane_b32 {t2}, {vb}, {i}')
            a(f's_add_u32 {t1}, {t1}, {t2}')
        a(f's_cmp_lt_u32 {t1}, 256')
        a(f's_cbranch_scc1 {lab}')
        a(f'v_cmp_ne_u32 vcc, {33 if cfg.get("force_fb") else 32}, {vb}')
        a('s_cbranch_vccnz L_fallback')

    def census(va, vb):
        lab = a.newlabel('cs')
        tl(1, va, vb)
        a(f's_cmp_eq_u32 {S["mode"]}, 1')
        a(f's_cbranch_scc1 {lab}')
        count(va, vb)
        a.label(lab)
        tl(2, va, vb)

    a.label('L_norole')
    count('v1', 'v2')
    a.label('L_fallback')
    a('s_waitcnt vmcnt(0) lgkmcnt(0)')
    a('s_barrier')
    a(f's_mov_b32 {S["mode"]}, 1')
    a('v_mbcnt_lo_u32_b32 v0, -1, 0')
    a('v_mbcnt_hi_u32_b32 v0, -1, v0')
    a(f's_lshl_b32 {t0}, {S["w"]}, 6')
    a(f'v_add_u32 v0, {t0}, v0')
    a(f's_lshr_b32 {j}, s2, 5')
    a(f's_and_b32 {h}, s2, 31')
    a('s_branch L_dispatch')
    for lab, fn in (('L_F', T.gen_F), ('L_KV', T.gen_KV), ('L_QA', T.gen_QA), ('L_G2', T.gen_G2), ('L_G3', T.gen_G3), ('L_G4', T.gen_G4)):
        a.label(lab)
        fn(a, S, cfg, census)
    a.label('L_bail')
    a(f'v_mov_b32 v1, {t0}')
    a('v_mov_b32 v2, 0')
    a(f'global_store_dword v2, v1, {S["dbg"]} offset:{4 * D_BAIL}')
    a.label('L_exit')
    a('s_endpgm')
    a.label('L_R')
    a(f's_cmp_eq_u32 {S["mode"]}, 1')
    a('s_cbranch_scc1 L_R1')
    for fb in range(2):
        if fb:
            a.label('L_R1')
        S['alloc'] = Regs('s', rfree, 100)
        c2 = dict(cfg)
        c2['fast'] = not fb
        if fb:
            c2.pop('prof', None)
        gen_R(a, S, c2, census)
    a.fix_hazards(verbose=cfg.get('verbose', False))
    head = HEAD + f'''; one persistent launch, 256 workgroups = one per CU; roles are listed in the generator notes below
; @launch grid=(256,1,1) block=(256,1,1) lds=163840
.amdgcn_target "amdgcn-amd-amdhsa--gfx950"
.text
.globl {NAME}
.p2align 8
.type {NAME},@function
{NAME}:
'''
    tail = f'''.section .rodata,"a"
.p2align 6
.amdhsa_kernel {NAME}
  .amdhsa_next_free_vgpr 512
  .amdhsa_next_free_sgpr 102
  .amdhsa_accum_offset 256
  .amdhsa_group_segment_fixed_size 0
  .amdhsa_kernarg_size 112
  .amdhsa_user_sgpr_count 2
  .amdhsa_user_sgpr_kernarg_segment_ptr 1
  .amdhsa_system_sgpr_workgroup_id_x 1
.end_amdhsa_kernel
'''
    return head + a.text() + tail


if __name__ == '__main__':
    cfg = json.loads(sys.argv[2]) if len(sys.argv) > 2 else {}
    open(sys.argv[1], 'w').write(build(cfg))
```

```python
import re

REG_RE = re.compile(r'^(-|abs\(|\|)?([vas])(\d+|\[(\d+):(\d+)\])\)?\|?$')


def parse_reg(tok):
    tok = tok.strip()
    if tok in ('vcc', 'exec', 'm0', 'scc', 'vcc_lo', 'vcc_hi', 'exec_lo', 'exec_hi'):
        base = tok.split('_')[0]
        return {(base, 0)}
    m = REG_RE.match(tok)
    if not m:
        return set()
    kind = m.group(2)
    if m.group(4) is not None:
        lo, hi = int(m.group(4)), int(m.group(5))
    else:
        lo = hi = int(m.group(3))
    return {(kind, i) for i in range(lo, hi + 1)}


TRANS = ('v_exp_f32', 'v_log_f32', 'v_rcp_f32', 'v_rsq_f32', 'v_sqrt_f32', 'v_sin_f32', 'v_cos_f32',
         'v_rcp_iflag_f32')


class Ins:
    def __init__(self, text):
        self.text = text
        t = text.split(';')[0].strip()
        self.label = None
        self.op = None
        self.reads = set()
        self.writes = set()
        self.cls = None
        self.target = None
        self.srcC = set()
        self.srcAB = set()
        self.passes = 0
        self.dpp = False
        if not t:
            self.cls = 'empty'
            return
        if t.endswith(':'):
            self.label = t[:-1]
            self.cls = 'label'
            return
        if t.startswith('.'):
            self.cls = 'directive'
            return
        parts = t.split(None, 1)
        op = parts[0]
        self.op = op
        rest = parts[1] if len(parts) > 1 else ''
        ops = []
        depth = 0
        cur = ''
        for ch in rest:
            if ch in '[(':
                depth += 1
            if ch in '])':
                depth -= 1
            if ch == ',' and depth == 0:
                ops.append(cur.strip())
                cur = ''
            else:
                cur += ch
        if cur.strip():
            ops.append(cur.strip())
        mods = ''
        if ops:
            sp = ops[-1].split()
            if len(sp) > 1:
                ops[-1] = sp[0]
                mods = ' '.join(sp[1:])
        self.ops = ops
        self.mods = mods
        R = [parse_reg(o) for o in ops]
        base = re.sub(r'_(e32|e64|dpp|sdwa)$', '', op)
        self.base = base

        def allr(idx):
            s = set()
            for i in idx:
                if i < len(R):
                    s |= R[i]
            return s
        n = len(ops)
        if op.startswith('v_mfma') or op.startswith('v_smfmac'):
            self.cls = 'mfma'
            self.passes = 8 if '32x32' in op else 4
            if '4x4x4' in op:
                self.passes = 2
            self.writes = R[0]
            if op.startswith('v_smfmac'):
                self.srcC = R[0]
                self.srcAB = allr([1, 2, 3])
            else:
                self.srcC = R[3]
                self.srcAB = allr([1, 2])
            self.reads = self.srcC | self.srcAB
        elif op.startswith('v_'):
            self.cls = 'valu'
            self.dpp = ('row_' in mods or 'quad_perm' in mods or 'wave_' in mods or op.endswith('_dpp'))
            if base.startswith('v_cmp'):
                self.writes = R[0]
                self.reads = allr(range(1, n))
                if base.startswith('v_cmpx'):
                    self.writes = self.writes | {('exec', 0)}
            elif base in ('v_permlane32_swap_b32', 'v_permlane16_swap_b32', 'v_swap_b32'):
                self.writes = R[0] | R[1]
                self.reads = R[0] | R[1]
            elif base in ('v_fmac_f32', 'v_pk_fmac_f16', 'v_writelane_b32', 'v_dot2c_f32_bf16'):
                self.writes = R[0]
                self.reads = allr(range(0, n))
            elif base in ('v_add_co_u32', 'v_sub_co_u32', 'v_addc_co_u32', 'v_subb_co_u32', 'v_mad_u64_u32',
                          'v_div_scale_f32'):
                self.writes = R[0] | R[1]
                self.reads = allr(range(2, n))
            elif base == 'v_nop':
                pass
            else:
                self.writes = R[0]
                self.reads = allr(range(1, n))
                if self.dpp:
                    self.reads = self.reads | R[0]
        elif op.startswith('buffer_') or op.startswith('global_'):
            self.cls = 'vmem'
            lds = (' lds' in ' ' + mods) or '_lds_' in op
            self.lds = lds
            self.wide_store = False
            if op.startswith('buffer_wbl2') or op.startswith('buffer_inv'):
                pass
            elif 'store' in op:
                self.reads = allr(range(n))
                self.wide_store = 'x4' in op or 'x3' in op
                self.store_data = R[0] if op.startswith('buffer_') else R[1]
            elif 'atomic' in op:
                ret = 'sc0' in mods
                if op.startswith('buffer_'):
                    self.reads = allr(range(n))
                    if ret:
                        self.writes = R[0]
                else:
                    if ret:
                        self.writes = R[0]
                        self.reads = allr(range(1, n))
                    else:
                        self.reads = allr(range(n))
            elif lds:
                self.reads = allr(range(n)) | {('m0', 0)}
            else:
                self.writes = R[0]
                self.reads = allr(range(1, n))
        elif op.startswith('ds_'):
            self.cls = 'ds'
            if op.startswith('ds_write') or op.startswith('ds_add') or op.startswith('ds_max'):
                self.reads = allr(range(n))
            else:
                self.writes = R[0]
                self.reads = allr(range(1, n))
        elif op.startswith('s_'):
            self.cls = 'salu'
            if op in ('s_branch',) or op.startswith('s_cbranch'):
                self.target = ops[0]
                if 'vcc' in op:
                    self.reads = {('vcc', 0)}
                if 'exec' in op:
                    self.reads = {('exec', 0)}
            elif op in ('s_nop', 's_waitcnt', 's_barrier', 's_endpgm', 's_setprio', 's_sleep'):
                pass
            elif op.startswith('s_cmp') or op.startswith('s_bitcmp'):
                self.reads = allr(range(n))
            elif op.startswith('s_load') or op.startswith('s_memtime') or op.startswith('s_memrealtime') \
                    or op.startswith('s_buffer_load'):
                self.cls = 'smem'
                self.writes = R[0]
                self.reads = allr(range(1, n))
            else:
                self.writes = R[0]
                self.reads = allr(range(1, n))
                if 'saveexec' in op:
                    self.writes = self.writes | {('exec', 0)}
        else:
            raise ValueError('unknown instruction: ' + text)

    def states(self):
        if self.cls in ('label', 'empty', 'directive'):
            return 0
        if self.op == 's_nop':
            return int(self.ops[0], 0) + 1
        return 1


def vregs(s):
    return {r for r in s if r[0] in ('v', 'a')}


def sregs(s):
    return {r for r in s if r[0] in ('s', 'vcc')}


def need(p, c):
    n = 0
    pw = p.writes
    if p.cls == 'valu':
        pv = vregs(pw)
        ps = sregs(pw)
        if c.cls == 'mfma' and pv & c.reads:
            n = max(n, 2)
        if c.cls == 'valu':
            if c.base in ('v_permlane32_swap_b32', 'v_permlane16_swap_b32') and pv & c.reads:
                n = max(n, 2)
            if c.dpp and pv & c.reads:
                n = max(n, 2)
            if c.base in ('v_readfirstlane_b32', 'v_readlane_b32') and pv & c.reads:
                n = max(n, 1)
            if p.base in TRANS and c.base not in TRANS and pv & (c.reads | c.writes):
                n = max(n, 1)
            rd = set(c.reads)
            if c.base == 'v_cndmask_b32' and len(c.ops) == 3 and not c.dpp:
                rd.add(('vcc', 0))
            if ps & rd:
                n = max(n, 2)
                if c.base in ('v_readlane_b32', 'v_writelane_b32'):
                    n = max(n, 4)
            if ('exec', 0) in pw:
                n = max(n, 5 if c.dpp else 4)
            if ('sdwa' in p.op or 'op_sel' in p.mods) and pv & (c.reads | c.writes):
                n = max(n, 1)
        if p.base in TRANS and c.cls in ('vmem', 'ds', 'mfma') and pv & c.reads:
            n = max(n, 2 if c.cls == 'mfma' else 1)
        if c.cls == 'vmem' and ps & c.reads:
            n = max(n, 5)
        if c.cls in ('salu', 'smem') and ps & c.reads and c.target is None:
            n = max(n, 1)
        if c.cls == 'mfma' and ('exec', 0) in pw:
            n = max(n, 4)
    if p.cls == 'mfma':
        tabAB = {2: 5, 4: 8, 8: 12}[p.passes]
        tabC = {2: 4, 4: 6, 8: 10}[p.passes]
        if c.cls == 'mfma':
            if pw & c.srcAB:
                n = max(n, tabAB)
            if pw & c.srcC:
                if pw == c.srcC and p.op == c.op:
                    n = max(n, 2 if p.passes == 2 else 0)
                else:
                    n = max(n, tabC)
            elif pw & c.writes:
                n = max(n, tabC)
        elif c.cls in ('valu', 'vmem', 'ds'):
            if pw & (c.reads | c.writes):
                n = max(n, tabAB)
        if c.cls in ('valu', 'vmem', 'ds') and p.srcC & c.writes:
            n = max(n, {2: 1, 4: 3, 8: 7}[p.passes])
    if p.cls == 'vmem' and getattr(p, 'wide_store', False):
        if c.cls in ('valu', 'mfma') and p.store_data & c.writes:
            n = max(n, 2)
        elif c.cls in ('vmem', 'ds') and p.store_data & c.writes:
            n = max(n, 1)
    if p.cls == 'salu' and ('m0', 0) in pw:
        if c.cls == 'vmem' and getattr(c, 'lds', False):
            n = max(n, 1)
    return n


MAXD = 13


class Asm:
    def __init__(self):
        self.ins = []
        self.uid = 0
        self.pipe_time = True

    def __call__(self, text):
        for line in text.split('\n'):
            line = line.strip()
            if line:
                self.ins.append(Ins(line))

    def label(self, name):
        self.ins.append(Ins(name + ':'))

    def newlabel(self, stem):
        self.uid += 1
        return 'L_%s_%d' % (stem, self.uid)

    def fix_hazards(self, verbose=False):
        total = 0
        start = 0
        while True:
            ins = self.ins
            labels = {x.label: i for i, x in enumerate(ins) if x.label}
            srcs = {}
            for i, x in enumerate(ins):
                if x.target:
                    srcs.setdefault(labels[x.target], []).append(i)

            def preds(i):
                out = []
                if i > 0:
                    p = ins[i - 1]
                    if not (p.op in ('s_branch', 's_endpgm')):
                        out.append(i - 1)
                out += srcs.get(i, [])
                return out
            fixes = []
            for i in range(start, len(ins)):
                c = ins[i]
                if c.cls in ('label', 'empty', 'directive'):
                    continue
                worst = 0
                why = None
                stack = [(p, 0, ()) for p in preds(i)]
                seen = set()
                while stack:
                    j, d, m = stack.pop()
                    if d >= MAXD or (j, d, m) in seen:
                        continue
                    seen.add((j, d, m))
                    p = ins[j]
                    if p.cls not in ('label', 'empty', 'directive'):
                        nn = need(p, c)
                        de = d
                        if nn and p.cls == 'mfma' and self.pipe_time and m:
                            t, prev_d, occ = 0, d + 1, p.passes
                            for dm, pm in reversed(m):
                                t += max(prev_d - (dm + 1), occ)
                                prev_d, occ = dm + 1, pm
                            t += prev_d
                            de = max(d, t - 2)
                        if nn - de > worst:
                            worst = nn - de
                            why = p.text
                    d2 = d + p.states()
                    m2 = m + ((d, p.passes),) if p.cls == 'mfma' else m
                    for q in preds(j):
                        stack.append((q, d2, m2))
                if worst > 0:
                    fixes.append((i, worst, why))
                    break
            if not fixes:
                break
            i, w, why = fixes[0]
            start = i
            if verbose:
                print('hazard: +%d before "%s" (after "%s")' % (w, ins[i].text, why))
            self.ins.insert(i, Ins('s_nop %d' % (w - 1)))
            total += 1
        return total

    def check_vcc(self):
        pend = None
        for x in self.ins:
            if x.cls in ('label', 'empty', 'directive'):
                continue
            rd = ('vcc', 0) in x.reads or (x.cls == 'valu' and x.base == 'v_cndmask_b32')
            if rd:
                pend = None
            if x.op in ('s_branch', 's_endpgm'):
                pend = None
            if ('vcc', 0) in x.writes and not x.op.startswith('s_mov_b32') and not x.op.startswith('s_memreal'):
                assert pend is None, ('vcc overwritten', pend.text, x.text)
                pend = x
            elif ('vcc', 0) in x.writes:
                assert pend is None, ('vcc overwritten', pend.text, x.text)

    def text(self):
        out = []
        for x in self.ins:
            if x.cls == 'label':
                out.append(x.text)
            else:
                out.append('    ' + x.text)
        return '\n'.join(out) + '\n'


class Regs:
    def __init__(self, kind, lo, hi):
        self.kind = kind
        self.next = lo
        self.hi = hi
        self.names = {}

    def alloc(self, name, n=1, align=None):
        if align is None:
            align = 1 if n == 1 else 2
            if self.kind == 's' and n >= 4:
                align = 4
        a = (self.next + align - 1) // align * align
        if a + n > self.hi:
            raise ValueError('out of %s registers allocating %s' % (self.kind, name))
        self.next = a + n
        self.names[name] = (a, n)
        return R(self.kind, a, n)


class R:
    def __init__(self, kind, base, n):
        self.kind = kind
        self.base = base
        self.n = n

    def __getitem__(self, i):
        if isinstance(i, slice):
            lo = i.start or 0
            hi = self.n if i.stop is None else i.stop
            assert 0 <= lo < hi <= self.n, (lo, hi, self.n)
            return R(self.kind, self.base + lo, hi - lo)
        assert 0 <= i < self.n, (i, self.n)
        return R(self.kind, self.base + i, 1)

    def __str__(self):
        if self.n == 1:
            return '%s%d' % (self.kind, self.base)
        return '%s[%d:%d]' % (self.kind, self.base, self.base + self.n - 1)

    __repr__ = __str__

    def __format__(self, spec):
        return str(self)


class Cnt:
    def __init__(self, a, name, maxv):
        self.a = a
        self.name = name
        self.maxv = maxv
        self.ops = []

    def issue(self, text, tag=None):
        self.a(text)
        self.ops.append(tag)

    def note(self, tag=None, n=1):
        self.ops += [tag] * n

    def count_after(self, tag):
        idx = max(i for i, t in enumerate(self.ops) if t == tag)
        return len(self.ops) - 1 - idx

    def wait(self, tag):
        if tag not in self.ops:
            return
        n = self.count_after(tag)
        self.a('s_waitcnt %s(%d)' % (self.name, min(n, self.maxv)))
        self.ops = self.ops[len(self.ops) - n:] if n else []

    def drain(self):
        self.a('s_waitcnt %s(0)' % self.name)
        self.ops = []
```

```python
import math
import struct
from dsl import R, Regs, Cnt
from layout import *

L_KV = 0
L_AG = 32768
L_QX = 37888
L_RM = 41984
L_KX = 41984
L_OX = 47104
L_RING = 49152
NSLOT = 7
SAFE_T = 30.0

SCALE_LOG2E = (128 ** -0.5) * math.log2(math.e)


def f32hex(x):
    return '0x%08x' % struct.unpack('<I', struct.pack('<f', x))[0]


def lane_addr(a, dst, lane, tmp, fields, sterms=(), const=0, stmp=None):
    first = True
    for lo, nb, mul in fields:
        a(f'v_bfe_u32 {tmp}, {lane}, {lo}, {nb}')
        if first:
            a(f'v_mul_u32_u24 {dst}, {mul}, {tmp}')
            first = False
        else:
            a(f'v_mul_u32_u24 {tmp}, {mul}, {tmp}')
            a(f'v_add_u32 {dst}, {dst}, {tmp}')
    if first:
        a(f'v_mov_b32 {dst}, 0')
    for sreg, mul in sterms:
        a(f's_mul_i32 {stmp}, {sreg}, {mul}')
        a(f'v_add_u32 {dst}, {stmp}, {dst}')
    if const:
        a(f'v_add_u32 {dst}, {const}, {dst}')


def gen_R(a, S, cfg, census=None):
    fb = 0 if cfg.get('fast', True) else 1
    LS, LD = 'L_step%d' % fb, 'L_rdone%d' % fb
    rb = fb * RING_FB
    sWS, sH, sJ, sW, sBud = S['ws'], S['h'], S['j'], S['w'], S['budget']
    sr = S['alloc']
    sWt = sr.alloc('wt', 4)
    (sStep, sTag, sXo, sXi, sXp, sRS, sRS1, sRS2, sRSl, sRSl2, sAG, sAGn, sAGp, sRw, sRn, sRi, sMa, sHB, sEx,
     sImp, sImpV, sM0, sFl, sIsRed, sMb, sXb, sRb, sHi, sLo, sExK, sExV) = [sr.alloc('r%d' % i) for i in range(31)]
    sC = sr.alloc('c', 2)
    sChk = sr.alloc('chk', 2)
    sJm = sr.alloc('jm', 2)
    sLow = R('s', 0, 2)
    sEnd = R('s', sRS1.base, 2)
    assert sRS1.base % 2 == 0 and sRS2.base == sRS1.base + 1
    sT0, sT1, sT2, sT3 = S['t0'], S['t1'], S['t2'], S['t3']
    sTm = sr.alloc('tm', 2)
    sTm2 = sr.alloc('tm2', 2)

    stf = '' if cfg.get('fast', True) else ' sc1'
    ntf = ' nt' if cfg.get('nt', True) else ''

    v = Regs('v', 0, 144)
    (vQr1, vIdx, vL16, vX, vD, vXs, vAGst, vRSst, vRSst1, vQw, vQr, vOw, vKV, vKrd, vVrd, vPoS,
     vWl, vWh, vDum, vRSld, vFa, vFl) = [v.alloc('c%d' % i) for i in range(22)]
    vPo = v.alloc('po', 2)
    vCan = vPo[1]
    vT = v.alloc('t', 4)
    rvB = v.alloc('rvB', 2)
    vSp = v.alloc('spare', 2)
    vVm = v.alloc('vm', 4)
    vOne = v.alloc('one', 4)
    vPm = v.alloc('pm', 4)
    assert vOne.base == vVm.base + 4
    vZ = vPm[1]
    vVm1 = R('v', vVm.base + 2, 4)
    mfL = v.alloc('mfL', 20)
    Bt = v.alloc('Bt', 24)
    mfR = v.alloc('mfR', 20)
    aq = v.alloc('aq', 8)
    ak = v.alloc('ak', 8)
    av = v.alloc('av', 8)
    vx = v.alloc('vx', 8)
    rv = v.alloc('rv', 2)
    kp = v.alloc('kp', 2)
    assert Bt.base == mfL.base + 20 and mfR.base == Bt.base + 24
    vSel = vx[4:8]
    kx = R('v', mfL.base, 32)
    rs = kx
    WoT = kx
    qb = R('v', Bt.base + 12, 16)
    ka = R('v', Bt.base + 28, 16)
    wacc = R('v', qb.base, 20)
    Sx = aq
    Sm = ak[4:8]
    kexp = ak[0:4]
    L = ak[0:4]
    P = av[4:8]
    rl = ak[2:4]
    O = aq
    oa = vx
    red = ak[4:8]

    chunks = [('V', b) for b in range(4)] + [('QL', b) for b in range(3)] + [('KL', b) for b in range(3)] + \
             [('QR', b) for b in range(5)] + [('KR', b) for b in range(5)] + [('WO', b) for b in (1, 2, 3)] + \
             [('V', 4), ('QL', 3), ('QL', 4), ('KL', 3), ('KL', 4), ('WO', 4), ('WO', 0)]
    NCH = len(chunks)
    place = {}
    for ci, ch in enumerate(chunks):
        for t in range(2):
            if ci < NCH - NSLOT:
                i = ci * 2 + t
                place[ch + (t,)] = R('a', i * 8, 8) if i < 32 else R('v', 144 + (i - 32) * 8, 8)
            else:
                place[ch + (t,)] = (ci % NSLOT) * 16384 + t * 2048

    def bail(code):
        lab = a.newlabel('ok')
        a(f's_sub_u32 {sBud}, {sBud}, 1')
        a(f's_cbranch_scc0 {lab}')
        a(f's_mov_b32 {sT0}, {code}')
        a('s_branch L_bail')
        a.label(lab)

    lane = aq[0]
    tmp = aq[1]
    t2, t3 = aq[2], aq[3]
    a(f'v_and_b32 {lane}, 63, v0')
    a(f'v_mov_b32 {vZ}, 0')

    def LA(dst, fields, sterms=(), const=0):
        lane_addr(a, dst, lane, tmp, fields, sterms, const, sT0)
    va = [mfR[i] for i in range(4)]
    vb = [mfR[4 + i] for i in range(4)]
    vra = [mfR[8], mfR[9]]
    vrb = mfR[10]
    vr = mfR[11]
    vc = [mfR[12 + i] for i in range(4)]
    stg = R('v', mfL.base, 16)
    for ip in range(4):
        LA(t2, [(4, 1, 2)], [], ip << 2)
        a(f'v_and_b32 {t3}, 15, {lane}')
        a(f'v_xor_b32 {t2}, {t2}, {t3}')
        LA(va[ip], [(4, 2, 8192)], [(sW, 16 * 8192)], 4 * ip * 8192)
        a(f'v_lshl_add_u32 {va[ip]}, {t2}, 4, {va[ip]}')
        LA(vc[ip], [(4, 2, 8192)], [(sW, 16 * 8192)], (64 * (1 + (ip >> 1)) + 4 * (ip & 1)) * 8192)
        a(f'v_lshl_add_u32 {vc[ip]}, {t2}, 4, {vc[ip]}')
        LA(t2, [(5, 1, 2)], [], 4 * (ip & 1))
        a(f'v_and_b32 {t3}, 7, {lane}')
        a(f'v_xor_b32 {t2}, {t2}, {t3}')
        LA(vb[ip], [(3, 3, 1280)], [(sW, 32 * 1280)], 8 * ip * 1280)
        a(f'v_lshl_add_u32 {vb[ip]}, {t2}, 4, {vb[ip]}')
    rowf = lambda m: [(5, 1, 16 * m), (3, 1, 8 * m), (4, 1, 4 * m), (2, 1, m)]
    LA(t2, [(3, 1, 8), (4, 1, 4), (2, 1, 2)])
    LA(t3, [(1, 1, 1)], [(sW, 4)])
    a(f'v_xor_b32 {t2}, {t2}, {t3}')
    LA(vra[0], rowf(256) + [(0, 1, 8)])
    a(f'v_lshl_add_u32 {vra[0]}, {t2}, 4, {vra[0]}')
    a(f'v_xor_b32 {vra[1]}, 32, {vra[0]}')
    LA(t2, [(3, 1, 4), (4, 1, 2)])
    LA(t3, [(1, 1, 1)], [(sW, 2)])
    a(f'v_xor_b32 {t2}, {t2}, {t3}')
    LA(vrb, rowf(128) + [(0, 1, 8)])
    a(f'v_lshl_add_u32 {vrb}, {t2}, 4, {vrb}')
    sPtr = S['ptrs']
    sAL, sAR, sB0 = sRS, sRS1, sRS2
    a(f's_lshl_b32 {sT1}, {sH}, 8')
    a(f's_mul_i32 {sAL}, {sJ}, {320 * 8192}')
    a(f's_sub_u32 {sAR}, {320 * 8192}, {sAL}')
    a(f's_add_u32 {sAL}, {sAL}, {sT1}')
    a(f's_add_u32 {sAR}, {sAR}, {sT1}')
    a(f's_mul_i32 {sB0}, {sH}, {128 * 1280}')
    a(f's_mul_i32 {sT1}, {sJ}, 640')
    a(f's_add_u32 {sB0}, {sB0}, {sT1}')
    a(f's_lshl_b32 {sM0}, {sW}, 12')
    a(f's_mov_b32 {sWt[2]}, {640 * 4096 * 2}')
    a(f's_mov_b32 {sWt[3]}, 0x20000')
    cur = [None]
    pv = Cnt(a, 'vmcnt', 63)

    def issue(ci):
        kind, b = chunks[ci]
        mi = {'Q': 0, 'K': 1, 'V': 2, 'W': 3}[kind[0]]
        if cur[0] != mi:
            a(f's_mov_b32 {sWt[0]}, {sPtr[2 * mi]}')
            a(f's_and_b32 {sWt[1]}, {sPtr[2 * mi + 1]}, 0xffff')
            cur[0] = mi
        if mi < 3:
            a(f's_add_u32 {sT0}, {sAR if kind[-1] == "R" else sAL}, {(128 * (max(b - 1, 0) >> 1) + 8 * (max(b - 1, 0) & 1)) * 8192}')
        else:
            a(f's_add_u32 {sT0}, {sB0}, {b * 128}')
        for ip in range(4):
            a(f's_add_u32 m0, {sM0}, {L_RING + (ci % NSLOT) * 16384 + ip * 1024}')
            pv.issue(f'buffer_load_dwordx4 {(vb if mi == 3 else vc if b else va)[ip]}, {sWt}, {sT0} offen{ntf} lds', 'c%d' % ci)

    for ci in range(NSLOT - 1):
        issue(ci)
    LA(vL16, [(0, 6, 16)])
    LA(vX, [(0, 6, 16)], [(sW, 1024)])
    LA(vD, [(0, 6, 4)], [(sW, 256)], 4096)
    LA(vXs, [(0, 6, 8)], [(sW, 512)])
    a(f'v_and_b32 {t2}, 2, {lane}')
    a(f'v_cmp_ne_u32 vcc, 0, {t2}')
    a(f'v_mov_b32 {t2}, 0x44444444')
    a(f'v_mov_b32 {t3}, 0xeeeeeeee')
    a(f'v_cndmask_b32 {vIdx}, {t2}, {t3}, vcc')
    a(f's_add_u32 {sT1}, {sH}, 16')
    a(f's_cmp_lt_u32 {sH}, 8')
    a(f's_cselect_b32 {sT1}, {sH}, {sT1}')
    a(f's_lshl_b32 {sT2}, {sH}, 1')
    a(f's_add_u32 {sT2}, {sT2}, {sW}')
    a(f's_sub_u32 {sT2}, {sT2}, 40')
    a(f's_cmp_lt_u32 {sH}, 24')
    a(f's_cselect_b32 {sEx}, {sT1}, {sT2}')
    a(f's_cselect_b32 {sT1}, 1, 2')
    a(f's_cmp_lt_u32 {sW}, {sT1}')
    a(f's_cselect_b32 {sIsRed}, 1, 0')
    a(f's_cselect_b32 {sT1}, 0, {OOB}')
    LA(vAGst, [(2, 1, 64), (1, 1, 32), (0, 1, 16), (4, 1, 8), (5, 1, 4)], [(sEx, 128)])
    LA(t3, [(3, 1, 1)], [])
    a(f'v_lshl_add_u32 {t3}, {t3}, 30, {sT1}')
    a(f'v_add_u32 {vAGst}, {t3}, {vAGst}')
    a(f's_lshl_b32 {sEx}, {sEx}, 12')
    LA(vFa, [(5, 1, (F_V - F_K) * 128)])
    LA(vCan, [(2, 4, 64)], [(sW, 1024)])
    LA(t3, [(2, 2, 64)], [(sW, 256)], 4096)
    a(f'v_and_b32 {t2}, 50, {lane}')
    a(f'v_cmp_eq_u32 vcc, 50, {t2}')
    a(f'v_cndmask_b32 {vCan}, {vCan}, {t3}, vcc')
    LA(vOw, [(2, 2, 64), (5, 1, 32), (0, 1, 16), (4, 1, 8), (1, 1, 256)], [(sW, 512)], L_OX)
    LA(t2, [(1, 1, 32)])
    a(f'v_xor_b32 {vOw}, {vOw}, {t2}')
    LA(t2, [(4, 1, 32)])
    a(f'v_xor_b32 {vSp[1]}, {t2}, {vL16}')
    a(f's_mov_b32 {sLow[0]}, 0x33333333')
    a(f's_mov_b32 {sLow[1]}, 0x33333333')
    for dst, th, rest in ((vRSst1, ([(5, 1, 1)], [(sW, 2)], 0), [(0, 3, 16), (4, 1, 8), (3, 1, 4)]),
                          (vRSst, ([(3, 1, 8), (5, 1, 1)], [(sW, 2)], 8), [(0, 3, 16), (4, 1, 8)])):
        LA(t2, *th)
        a(f'v_add_u32 {t3}, {sH}, {t2}')
        a(f'v_and_b32 {t3}, 31, {t3}')
        LA(dst, rest)
        a(f'v_lshl_add_u32 {dst}, {t2}, 12, {dst}')
        a(f'v_lshl_add_u32 {dst}, {t3}, 7, {dst}')
    LA(t2, [(4, 2, 1)])
    LA(t3, [(2, 2, 1)])
    a(f'v_xor_b32 {t2}, {t2}, {t3}')
    LA(vQw, [(0, 4, 32)], [(sW, 1024)], L_QX)
    a(f'v_lshl_add_u32 {vQw}, {t2}, 3, {vQw}')
    LA(t2, [(0, 2, 1)])
    LA(t3, [(4, 1, 1)])
    a(f'v_xor_b32 {t2}, {t2}, {t3}')
    LA(vQr, [(5, 1, 512), (4, 1, 128), (2, 2, 32)], [], L_QX)
    a(f'v_lshl_add_u32 {vQr}, {t2}, 3, {vQr}')
    a(f'v_xor_b32 {vQr1}, 16, {vQr}')
    LA(vKV, [(0, 6, 16)], [(sW, 2048)])
    LA(vKrd, [(0, 6, 16)])
    LA(vVrd, [(4, 2, 64), (2, 2, 16), (0, 1, 256), (1, 1, 8)], [(sW, 1024)], 8192)
    LA(vWl, [(0, 6, 16)], [(sW, 4096)], L_RING)
    a(f'v_add_u32 {vWh}, 65536, {vWl}')
    LA(t2, [(0, 6, 16)], [(sW, 1024)], L_QX)
    for i in range(4):
        a(f'v_mov_b32 {ak[i]}, 0')
    a(f'ds_write_b128 {t2}, {ak[0:4]}')
    a('s_waitcnt lgkmcnt(0)')
    a(f's_lshl_b32 {sMa}, {sW}, 10')
    a(f's_lshl_b32 {sMb}, {sW}, 8')
    a(f's_add_u32 {sMb}, {sMb}, 4096')
    for i in range(4):
        a(f'v_mov_b32 {vOne[i]}, 0x3f803f80')
        a(f'v_mov_b32 {vVm[i]}, 0')
        a(f'v_mov_b32 {vPm[i]}, 0')
    a(f'v_mov_b32 {vPo[0]}, {POISON}')
    a(f'v_and_b32 {t2}, 1, {lane}')
    a(f'v_lshlrev_b32 {t2}, 4, {t2}')
    a(f'v_mov_b32 {tmp}, 0x3f80')
    a(f'v_lshlrev_b32 {vSp[0]}, {t2}, {tmp}')
    a(f's_mov_b32 {sC[0]}, {f32hex(SCALE_LOG2E)}')
    a(f's_mov_b32 {sC[1]}, {f32hex(SCALE_LOG2E)}')
    a(f's_mov_b32 {sHi}, {f32hex(2.0 ** cfg.get("safe", SAFE_T))}')
    a(f's_mov_b32 {sLo}, {f32hex(2.0 ** -cfg.get("safe", SAFE_T))}')
    a(f's_lshl_b32 {sHB}, {sH}, 21')
    a(f's_add_u32 {sHB}, {sHB}, {HR}')
    a(f's_lshl_b32 {sFl}, {sH}, 7')
    a(f's_add_u32 {sFl}, {sFl}, {FLG + F_K * 128}')
    a(f's_add_u32 {sXb}, {sHB}, {HR_X + fb * 131072}')
    a(f's_mov_b32 {sRb}, {AGR + rb}')

    m1 = ak[0:4]
    for i in range(4):
        a(f'v_mov_b32 {m1[i]}, -1')
    a(f's_lshl_b32 {sT2}, {sJ}, 19')
    a(f's_add_u32 {sT2}, {sT2}, {RSB + rb}')
    for slot in range(2):
        a(f's_add_u32 {sT1}, {sT2}, {slot * 163840}')
        pv.issue(f'buffer_store_dword {m1[0]}, {vRSst1}, {sWS}, {sT1} offen{stf}')
        pv.issue(f'buffer_store_dwordx2 {m1[0:2]}, {vRSst}, {sWS}, {sT1} offen{stf}')
        a(f's_add_u32 {sT1}, {sT1}, 65536')
        pv.issue(f'buffer_store_dwordx2 {m1[0:2]}, {vRSst}, {sWS}, {sT1} offen{stf}')
    a(f's_lshl_b32 {sT2}, {sJ}, 17')
    for slot in range(4):
        a(f's_add_u32 {sT1}, {sT2}, {AGB + rb + slot * 32768}')
        pv.issue(f'buffer_store_dword {vPo[0]}, {vAGst}, {sWS}, {sT1} offen{stf}')
        for par in range(2):
            a(f's_add_u32 {sT1}, {sT2}, {AGR + rb + slot * 32768 + par * 8192}')
            pv.issue(f'buffer_store_dword {vPo[0]}, {vAGst}, {sWS}, {sT1} offen sc1')
    a(f's_lshl_b32 {sT2}, {sJ}, 12')
    a(f's_add_u32 {sT2}, {sT2}, {sXb}')
    for slot in range(8):
        a(f's_add_u32 {sT1}, {sT2}, {slot * 8192}')
        pv.issue(f'buffer_store_dwordx2 {vPo[0:2]}, {vXs}, {sWS}, {sT1} offen sc1')

    m0L, m0R = mfL, Bt[0:20]
    sMem = R('s', sStep.base, 4)
    assert sStep.base % 4 == 0 and sXi.base == sStep.base + 3
    a(f's_mov_b32 {sMem[0]}, {S["mem0"][0]}')
    a(f's_and_b32 {sMem[1]}, {S["mem0"][1]}, 0xffff')
    a(f's_mov_b32 {sMem[2]}, {8 * 1280}')
    a(f's_mov_b32 {sMem[3]}, 0x20000')
    LA(t2, [(2, 2, 2560), (0, 1, 1280), (1, 1, 16), (4, 2, 32)])
    a(f's_mul_i32 {sT1}, {sJ}, 640')
    a(f's_sub_u32 {sT2}, 640, {sT1}')
    LA(t3, [(2, 2, 2560), (0, 1, 1280), (1, 1, 128), (4, 2, 32)], [], 128)
    for x, so in ((m0L, sT1), (m0R, sT2)):
        pv.issue(f'buffer_load_dwordx4 {x[0:4]}, {t2}, {sMem}, {so} offen')
        for b in range(1, 5):
            pv.issue(f'buffer_load_dwordx4 {x[4 * b:4 * b + 4]}, {t3}, {sMem}, {so} offen offset:{256 * ((b - 1) >> 1) + 16 * ((b - 1) & 1)}')
    vPar, vBar, vBa = av[0], av[1], av[2]

    def spin1(load, test, code):
        lab, ok = a.newlabel('w'), a.newlabel('wok')
        a.label(lab)
        a(test)
        a(f's_cbranch_vccz {ok}')
        a(load)
        bail(code)
        a('s_waitcnt vmcnt(0)')
        a(f's_branch {lab}')
        a.label(ok)
    ldpar = f'global_load_dword {vPar}, {vZ}, {S["dbg"]} offset:{4 * (D_PAR + fb)} sc1'
    ldfl = f'buffer_load_dword {vFl}, {vFa}, {sWS}, {sFl} offen sc1'
    ldbar = f'global_load_dword {vBar}, {vBa}, {S["dbg"]} offset:{4 * (D_RBAR + fb)} sc1'
    LA(vBa, [(5, 1, 4 * (D_QBAR - D_RBAR) if census else 0)])

    def extra(ci):
        if ci == NSLOT - 1:
            lab = a.newlabel('arr')
            a(f's_cmp_lg_u32 {sW}, 0')
            a(f's_cbranch_scc1 {lab}')
            a(f'v_mov_b32 {t2}, 1')
            a('s_mov_b64 exec, 1')
            a(f'global_atomic_add {vZ}, {t2}, {S["dbg"]} offset:{4 * (D_RBAR + fb)}')
            a('s_mov_b64 exec, -1')
            a.label(lab)
            for b in range(5):
                for x in (m0L, m0R):
                    a(f'v_max_i32 {x[4 * b]}, {POISON + 1}, {x[4 * b]}')
                a(f'ds_write_b128 {vL16}, {m0L[4 * b:4 * b + 4]} offset:{L_AG + 1024 * b}')
                a(f'ds_write_b128 {vL16}, {m0R[4 * b:4 * b + 4]} offset:{L_RM + 1024 * b}')
                a(f's_lshl_b32 {sRi}, {sJ}, 15')
                a(f's_add_u32 {sRi}, {sRi}, {sXb}')
                a(f's_add_u32 {sRi}, {sRi}, 65536')
                a(f's_add_u32 {sT3}, {sRi}, {1024 * b}')
                pv.issue(f'buffer_store_dwordx4 {m0R[4 * b:4 * b + 4]}, {vL16}, {sWS}, {sT3} offen')
        if ci == 12 and census:
            census(t2, t3, lambda x: pv.issue(x), 0)
            pv.issue(ldpar)
        if ci == 19:
            if census:
                census(t2, t3, None, 1)
                spin1(ldpar, f'v_cmp_eq_u32 vcc, 0, {vPar}', 8)
                a(f'v_readfirstlane_b32 {sT1}, {vPar}')
                a(f's_and_b32 {sT1}, {sT1}, 1')
            else:
                a(f's_mov_b32 {sT1}, {cfg.get("par", 0)}')
            a(f's_lshl_b32 {sT2}, {sT1}, 13')
            a(f's_add_u32 {sRb}, {sRb}, {sT2}')
            a(f's_xor_b32 {sT1}, {sT1}, {sH}')
            a(f's_and_b32 {sT1}, {sT1}, 1')
            a(f's_lshl_b32 {sT1}, {sT1}, 13')
            a(f's_add_u32 {sXb}, {sXb}, {sT1}')
        if ci == 21:
            pv.issue(ldfl)
        if ci == NCH - NSLOT:
            pv.issue(ldbar, 'bar')
        if ci == 28:
            spin1(ldfl, f'v_cmp_gt_u32 vcc, 1, {vFl}', 1)
            a(f's_lshl_b32 {sM0}, {sW}, 11')
            a(f's_add_u32 {sImpV}, {sHB}, {HR_VX}')
            a(f's_mov_b32 m0, {sM0}')
            pv.issue(f'buffer_load_dwordx4 {vKV}, {sWS}, {sHB} offen sc1 lds')
            pv.issue(f'buffer_load_dwordx4 {vKV}, {sWS}, {sHB} offen offset:1024 sc1 lds')
            a(f's_add_u32 m0, {sM0}, 8192')
            pv.issue(f'buffer_load_dwordx4 {vKV}, {sWS}, {sImpV} offen sc1 lds')
            pv.issue(f'buffer_load_dwordx4 {vKV}, {sWS}, {sImpV} offen offset:1024 sc1 lds')
    for ci in range(NCH):
        pv.wait('c%d' % ci)
        a('s_barrier')
        if ci + NSLOT - 1 < NCH:
            issue(ci + NSLOT - 1)
        extra(ci)
        base = L_RING + (ci % NSLOT) * 16384
        kind, b = chunks[ci]
        res = ci >= NCH - NSLOT
        for t in range(2):
            dst = stg[8 * t:8 * t + 8] if res else place[(kind, b, t)]
            if kind != 'WO':
                a(f'v_add_u32 {vr}, {base}, {vra[t]}')
            elif t == 0:
                a(f'v_add_u32 {vr}, {base}, {vrb}')
            for aa in range(4):
                row = 32 * (aa >> 1) + 2 * (aa & 1)
                off = row * 256 if kind != 'WO' else (64 * t + row) * 128
                a(f'ds_read_b64_tr_b16 {dst[2 * aa:2 * aa + 2]}, {vr} offset:{off}')
        a('s_waitcnt lgkmcnt(0)')
        if res:
            a('s_barrier')
            a(f'v_add_u32 {vr}, {(ci % NSLOT) * 16384}, {vWl}')
            for q in range(4):
                a(f'ds_write_b128 {vr}, {stg[4 * q:4 * q + 4]} offset:{q * 1024}')
            a('s_waitcnt lgkmcnt(0)')
    if 'tl' in S:
        S['tl'](1, vT[0], vT[1])
    a('s_waitcnt vmcnt(0)')
    spin1(ldbar, f'v_cmp_gt_u32 vcc, 64, {vBar}', 2)
    a('s_barrier')
    for i in range(8):
        a(f'v_mov_b32 {aq[i]}, 0')
        a(f'v_mov_b32 {ak[i]}, 0')
        a(f'v_mov_b32 {av[i]}, 0')
    a(f's_mov_b32 {sStep}, 0')
    a(f's_mov_b64 {sChk}, -1')
    a(f's_mov_b32 {sExK}, {OOB}')
    a(f's_cmp_eq_u32 {sJ}, 0')
    a(f's_cselect_b64 {sJm}, 0, -1')

    def step_scalars():
        a(f's_bfe_u32 {sTag}, {sStep}, 0x10001')
        a(f's_and_b32 {sT1}, {sStep}, 3')
        a(f's_lshl_b32 {sT0}, {sJ}, 17')
        a(f's_lshl_b32 {sT3}, {sT1}, 15')
        a(f's_add_u32 {sAG}, {sT0}, {sT3}')
        a(f's_add_u32 {sAG}, {sAG}, {AGB + rb}')
        a(f's_xor_b32 {sAGn}, {sAG}, 65536')
        a(f's_add_u32 {sT0}, {sT0}, {sRb}')
        a(f's_add_u32 {sRw}, {sT0}, {sT3}')
        a(f's_add_u32 {sRn}, {sT3}, 32768')
        a(f's_and_b32 {sRn}, {sRn}, 131071')
        a(f's_add_u32 {sRn}, {sRn}, {sT0}')
        a(f's_lshl_b32 {sT3}, {sT1}, 14')
        a(f's_lshl_b32 {sT0}, {sJ}, 12')
        a(f's_add_u32 {sT0}, {sT0}, {sXb}')
        a(f's_add_u32 {sXo}, {sT0}, {sT3}')
        a(f's_xor_b32 {sXi}, {sXo}, 4096')
        a(f's_xor_b32 {sXp}, {sXo}, 32768')
        a(f's_and_b32 {sT0}, {sStep}, 1')
        a(f's_mul_i32 {sT1}, {sT0}, 163840')
        a(f's_lshl_b32 {sT2}, {sJ}, 19')
        a(f's_add_u32 {sT1}, {sT1}, {sT2}')
        a(f's_add_u32 {sRS}, {sT1}, {RSB + rb}')
        a(f's_add_u32 {sRSl}, {sRS}, {sEx}')
        a(f's_add_u32 {sRSl2}, {sRS}, 65536')
        a(f's_add_u32 {sT1}, {sStep}, 1')
        a(f's_min_u32 {sT1}, {sT1}, 63')
        a(f's_lshl_b32 {sT1}, {sT1}, 13')
        a(f's_add_u32 {sImp}, {sHB}, {sT1}')
        a(f's_add_u32 {sImpV}, {sImp}, {HR_VX}')
        a(f's_lshr_b32 {sT1}, {sStep}, 1')
        a(f's_lshl_b32 {sT1}, {sT1}, 14')
        a(f's_lshl_b32 {sT2}, {sT0}, 12')
        a(f's_add_u32 {sT1}, {sT1}, {sT2}')
        a(f's_lshl_b32 {sT2}, {sJ}, 11')
        a(f's_add_u32 {sT1}, {sT1}, {sT2}')
        a(f's_add_u32 {sT1}, {sT1}, {sXb}')
        a(f's_sub_u32 {sExV}, {sT1}, {HR_X + fb * 131072 - HR_KM}')
        a(f's_cmp_eq_u32 {sStep}, 63')
        a(f's_cselect_b64 {sEnd}, -1, 0')
        a(f's_xor_b32 {sT0}, {sT0}, 1')
        a(f's_lshl_b32 {sT0}, {sT0}, 14')
        a(f's_lshl_b32 {sM0}, {sW}, 11')
        a(f's_add_u32 {sM0}, {sM0}, {sT0}')

    NST = 14
    prof = cfg.get('prof')
    sStm0 = sr.alloc('stm', 2 * (NST - 6), align=2) if prof is not None else None
    stm = [sPtr[2 * i:2 * i + 2] for i in range(4)] + [sWt[0:2], sWt[2:4]] + \
          ([sStm0[2 * i:2 * i + 2] for i in range(NST - 6)] if prof is not None else [])

    S['stm'] = stm

    def stamp(i):
        if prof is not None and not cfg.get('at') and i in cfg.get('only', range(NST)):
            a(f's_memrealtime {stm[i]}' if cfg.get('rt') else f's_memtime {stm[i]}')

    def stamp_out():
        if prof is None:
            return
        lab = a.newlabel('so')
        a(f's_cmp_eq_u32 {sStep}, {prof + 1}')
        a(f's_cbranch_scc0 {lab}')
        a('s_waitcnt lgkmcnt(0)')
        a(f's_lshl_b32 {sT1}, {sJ}, 5')
        a(f's_add_u32 {sT1}, {sT1}, {sH}')
        a(f's_lshl_b32 {sT1}, {sT1}, 2')
        a(f's_add_u32 {sT1}, {sT1}, {sW}')
        a(f's_lshl_b32 {sT1}, {sT1}, 7')
        a(f's_add_u32 {sT1}, {sT1}, {TIM + 32}')
        for i in range(NST):
            a(f'v_mov_b32 {vDum}, {stm[i][0]}')
            a(f'buffer_store_dword {vDum}, {vZ}, {sWS}, {sT1} offen offset:{4 * i}')
        a('s_waitcnt vmcnt(0)')
        a.label(lab)
    sCnt = sr.alloc('cnt', 4, align=1) if cfg.get('timing') else None

    def count(i):
        if cfg.get('timing'):
            a(f's_add_u32 {sCnt[i]}, {sCnt[i]}, 1')
    if 'tl' in S:
        S['tl'](3, vT[0], vT[1])
    step_scalars()
    a(f's_mov_b32 {sAGp}, {OOB}')
    if cfg.get('timing'):
        for i in range(4):
            a(f's_mov_b32 {sCnt[i]}, 0')
        a(f's_memtime {sTm}')
        a('s_waitcnt lgkmcnt(0)')
    late = []

    def w1ops(issue):
        labw, labo = a.newlabel('w1'), a.newlabel('w1ok')
        ops = []
        if not cfg.get('noimp'):
            ops += [lambda: (a(f's_add_u32 {sT1}, {sStep}, 2'), a(f's_min_u32 {sT1}, {sT1}, 64'),
                             a(f'v_cmp_gt_u32 vcc, {sT1}, {vFl}')),
                    lambda: (a(f's_cbranch_vccnz {labw}'), a.label(labo), a(f's_mov_b32 m0, {sM0}'),
                             issue(f'buffer_load_dwordx4 {vKV}, {sWS}, {sImp} offen sc1 lds')),
                    lambda: (a(f's_mov_b32 m0, {sM0}'),
                             issue(f'buffer_load_dwordx4 {vKV}, {sWS}, {sImp} offen offset:1024 sc1 lds')),
                    lambda: (a(f's_add_u32 m0, {sM0}, 8192'),
                             issue(f'buffer_load_dwordx4 {vKV}, {sWS}, {sImpV} offen sc1 lds')),
                    lambda: (a(f's_add_u32 m0, {sM0}, 8192'),
                             issue(f'buffer_load_dwordx4 {vKV}, {sWS}, {sImpV} offen offset:1024 sc1 lds')),
                    lambda: issue(f'buffer_load_dword {vFl}, {vFa}, {sWS}, {sFl} offen sc1')]
            late.append((labw, labo))
        st = [lambda: issue(f'buffer_store_dwordx2 {vPo}, {vXs}, {sWS}, {sXp} offen sc1'),
              lambda: issue(f'buffer_store_dword {vPo[0]}, {vAGst}, {sWS}, {sRn} offen sc1')]
        ops = st + ops if cfg.get('stfirst', 0) else ops + st
        return ops

    def image(src, dst, can, issue=None, half=None):
        issue = issue or a
        if half != 1:
            issue(f'buffer_load_dword {can}, {vCan}, {sWS}, {src} offen sc1')
            a(f's_add_u32 m0, {sMa}, {dst}')
            issue(f'buffer_load_dwordx4 {vX}, {sWS}, {src} offen sc1 lds')
        if half != 0:
            a(f's_add_u32 m0, {sMb}, {dst}')
            issue(f'buffer_load_dword {vD}, {sWS}, {src} offen sc1 lds')
    a('s_waitcnt vmcnt(0)')
    for b in range(5):
        a(f'ds_read_b128 {mfL[4 * b:4 * b + 4]}, {vL16} offset:{L_AG + 1024 * b}')
    if cfg.get('early', 0) or cfg.get('r0pos') is None:
        image(sRi, L_RM, rv[0], None, None if cfg.get('early', 0) else 0)

    a.label(LS)
    stamp(0)
    vm = Cnt(a, 'vmcnt', 63)
    ds = Cnt(a, 'lgkmcnt', 15)
    EARLY = cfg.get('early', 0)
    R0 = cfg.get('r0pos')
    if EARLY or R0 is None:
        vm.note('R', 3 if EARLY else 2)
    for b in range(5):
        ds.note('L%d' % b)

    def emit(x):
        if callable(x):
            x()
        else:
            a(x)

    def warm(n):
        for _ in range(n):
            a(f'v_mov_b32 {vDum}, 0')

    def wl(off):
        return (vWl, off) if off < 65536 else (vWh, off - 65536)

    def fold(x, t):
        return f'v_pk_add_f32 {x[4 * t:4 * t + 2]}, {x[4 * t:4 * t + 2]}, {x[4 * t + 2:4 * t + 4]}'

    def fold2(x, t, d=None):
        d = x[4 * t:4 * t + 2] if d is None else d
        return [f'v_add_f32 {d[i]}, {x[4 * t + i]}, {x[4 * t + 2 + i]}' for i in range(2)]

    acc = {'V': av, 'QL': aq, 'KL': ak, 'QR': aq, 'KR': ak}
    seq = []
    for kind, order in (('V', [(0, 0), (0, 1), (1, 0), (1, 1), (2, 0), (2, 1), (3, 0), (4, 0), (3, 1), (4, 1)]),
                        ('QL', [(0, 0), (0, 1), (3, 0), (1, 0), (3, 1), (1, 1), (4, 0), (2, 0), (2, 1), (4, 1)]),
                        ('KL', [(0, 0), (3, 0), (0, 1), (1, 0), (3, 1), (1, 1), (4, 0), (2, 0), (4, 1), (2, 1)])):
        seq += [(kind, b, t) for b, t in order]
    ldsops = [i for i, o in enumerate(seq) if isinstance(place[o], int)]
    buf = {i: Bt[8 * (k % 3):8 * (k % 3) + 8] for k, i in enumerate(ldsops)}

    def btload(k, half):
        i = ldsops[k]
        base, off = wl(place[seq[i]] + half * 1024)
        ds.issue(f'ds_read_b128 {buf[i][4 * half:4 * half + 4]}, {base} offset:{off}', 'B%d' % i)
    fill = {i: [] for i in range(len(seq))}
    for k in range(3):
        fill[2 * k] += [lambda k=k: btload(k, 0)]
        fill[2 * k + 1] += [lambda k=k: btload(k, 1)]
    for k in range(3, len(ldsops)):
        p = ldsops[k - 3]
        fill[p] += [lambda k=k: btload(k, 0)]
        fill[p + 1] += [lambda k=k: btload(k, 1)]

    def put(lst, start, per):
        for i, x in enumerate(lst):
            fill[start + i // per].append(x)
    put(fold2(av, 0) + fold2(av, 1, av[2:4]) + [f'v_cvt_pk_bf16_f32 {av[4]}, {av[0]}, {av[1]}',
        f'v_cvt_pk_bf16_f32 {av[5]}, {av[2]}, {av[3]}', f'v_max_i32 {av[4]}, {POISON + 1}, {av[4]}',
        lambda: vm.issue(f'buffer_store_dwordx2 {av[4:6]}, {vXs}, {sWS}, {sXo} offen sc1', 'stv')], cfg.get('vpos', 11), cfg.get('vper', 4))
    if not EARLY and R0 is not None:
        fill[R0].append(lambda: image(sRi, L_RM, rv[0], lambda x: vm.issue(x, 'R'), 0))
    if not EARLY:
        fill[1 if R0 is None else R0 + 2].append(lambda: image(sRi, L_RM, None, lambda x: vm.issue(x, 'R'), 1))
    for p in cfg.get('rextra', []):
        fill[p].append(lambda: image(sRi, L_RM, rv[1], lambda x: vm.issue(x, 'R3'), 0))
        fill[p + 2].append(lambda: image(sRi, L_RM, None, lambda x: vm.issue(x, 'R3'), 1))
    rpos = cfg.get('rpos', 27)
    labr, labrj = a.newlabel('rretry'), a.newlabel('rjoin')
    fill[rpos - 2].append(lambda: (vm.wait('R'), a(f'v_cmp_eq_u32 vcc, {vPo[0]}, {rv[0]}')))

    nr3 = []

    def rstage():
        nr3.append(vm.count_after('R3') if 'R3' in vm.ops else None)
        a(f's_cbranch_vccnz {labr}')
        a.label(labrj)
        a('s_barrier')
        stamp(4)
        for b in range(5):
            ds.issue(f'ds_read_b128 {mfR[4 * b:4 * b + 4]}, {vL16} offset:{L_RM + 1024 * b}', 'R%d' % b)
    fill[rpos].append(rstage)
    EXI = cfg.get('exi', 1) and not cfg.get('noexp')
    expo = [f'v_cndmask_b32 {vT[0]}, {kp[0]}, {vVm[0]}, {sJm}', f'v_cndmask_b32 {vT[1]}, {kp[1]}, {vVm[2]}, {sJm}',
            f'v_max_i32 {vT[0]}, {POISON + 1}, {vT[0]}']
    if not EXI:
        for i, x in enumerate(expo):
            fill[20 + i].append(x)
    late_w1 = w1ops(vm.issue)
    for p in cfg.get('w1at', [2, 4, 7, 10, 14, 15]):
        if late_w1:
            fill[p].append(late_w1.pop(0))
    for i, o in enumerate(seq):
        kind, b, t = o
        if kind == 'V':
            ds.wait('L%d' % b)
        if i in buf:
            ds.wait('B%d' % i)
        a(f'v_smfmac_f32_16x16x64_bf16 {acc[kind][4 * t:4 * t + 4]}, {mfL[4 * b:4 * b + 4]}, {buf.get(i, place[o])}, {vIdx}')
        for x in fill[i]:
            emit(x)
        if i == 9:
            stamp(1)
        if i == 19:
            stamp(2)
    stamp(3)
    kq = [('KR', b, t) for b in range(5) for t in range(2)]

    def smf(o, src=mfR):
        kind, b, t = o
        a(f'v_smfmac_f32_16x16x64_bf16 {acc[kind][4 * t:4 * t + 4]}, {src[4 * b:4 * b + 4]}, {place[o]}, {vIdx}')
    ldv = f'buffer_load_dwordx2 {rv}, {vXs}, {sWS}, {sXi} offen sc1'
    ldv2 = f'buffer_load_dwordx2 {rvB}, {vXs}, {sWS}, {sXi} offen sc1'
    kfill = [lambda i=i: ds.issue(f'ds_read_b128 {kx[4 * i:4 * i + 4]}, {vKrd} offset:{1024 * i}', 'kx') for i in range(8)] + \
            [lambda t=t: [ds.issue(f'ds_read_b64_tr_b16 {vx[4 * t + 2 * T:4 * t + 2 * T + 2]}, {vVrd} offset:{4096 * T + 512 * t}', 'vx')
                          for T in range(2)] for t in range(2)]
    for b in range(5):
        ds.wait('R%d' % b)
        smf(('QR', b, 0))
        emit(kfill.pop(0))
        smf(('QR', b, 1))
        emit(kfill.pop(0))
        if b < 4:
            for _ in range(cfg.get('kint', 0)):
                if kq[0][1] <= b:
                    smf(kq.pop(0))
        if b == cfg.get('ldvpos', 2):
            vm.issue(ldv, 'ldv')
        if b == cfg.get('ldvpos2', 5):
            vm.issue(ldv2, 'ldv2')
        if late_w1 and b in cfg.get('w1q', []):
            emit(late_w1.pop(0))
    stamp(5)
    qep = fold2(aq, 0) + fold2(aq, 1) + [f'v_cvt_pk_bf16_f32 {aq[0]}, {aq[0]}, {aq[1]}', f'v_cvt_pk_bf16_f32 {aq[1]}, {aq[4]}, {aq[5]}']
    kep = fold2(ak, 0) + fold2(ak, 1) + \
        [f'v_cvt_pk_bf16_f32 {kp[0]}, {ak[0]}, {ak[1]}', f'v_cvt_pk_bf16_f32 {kp[1]}, {ak[4]}, {ak[5]}']

    def smx(t, u):
        c = '0' if u == 0 else str(Sx[4 * t:4 * t + 4])
        a(f'v_mfma_f32_16x16x32_bf16 {Sx[4 * t:4 * t + 4]}, {kx[(t * 4 + u) * 4:(t * 4 + u) * 4 + 4]}, {qb[4 * u:4 * u + 4]}, {c}')

    def smm(u):
        c = '0' if u == 0 else str(Sm)
        a(f'v_mfma_f32_16x16x32_bf16 {Sm}, {ka[4 * u:4 * u + 4]}, {qb[4 * u:4 * u + 4]}, {c}')

    def qread(u):
        for aa in range(2):
            ds.issue(f'ds_read_b64_tr_b16 {qb[4 * u + 2 * aa:4 * u + 2 * aa + 2]}, {(vQr, vQr1)[aa]} offset:{u * 1024 + aa * 256}', 'q%d' % u)

    def kread(u):
        for aa in range(2):
            ds.issue(f'ds_read_b64_tr_b16 {ka[4 * u + 2 * aa:4 * u + 2 * aa + 2]}, {(vQr, vQr1)[aa]} offset:{4096 + u * 1024 + aa * 256}', 'k%d' % u)

    def wot1(i):
        b, bb = ((4, 0), (4, 1), (0, 0), (0, 1))[i // 2]
        base, off = wl(place[('WO', b, bb)] + (i & 1) * 1024)
        ds.issue(f'ds_read_b128 {WoT[4 * i:4 * i + 4]}, {base} offset:{off}', 'wo%d' % (i // 2))

    def knext(pad=None):
        if kq:
            smf(kq.pop(0))
        elif pad:
            warm(pad)
    knext()
    if late_w1:
        emit(late_w1.pop(0))
    knext()
    for x in qep:
        a(x)
    ds.issue(f'ds_write2_b32 {vQw}, {aq[0]}, {aq[1]} offset0:0 offset1:128', 'qw')
    knext(4)
    if cfg.get('ldvpos2', 5) == 5:
        vm.issue(ldv2, 'ldv2')
    knext(4)
    if not cfg.get('noimp'):
        a(f'v_xor_b32 {vKrd}, 16384, {vKrd}')
    if not EXI and not cfg.get('noexp'):
        vm.issue(f'buffer_store_dwordx2 {vT[0:2]}, {vXs}, {sWS}, {sExK} offen sc1')
    knext(4)
    if late_w1:
        emit(late_w1.pop(0))
    knext(4)
    if not cfg.get('noimp'):
        a(f'v_xor_b32 {vVrd}, 16384, {vVrd}')
    while len(kq) > cfg.get('kleft', 4):
        knext()
    vm.wait('R3')
    ds.wait('qw')
    a('s_barrier')
    assert not any(o[1] == 0 for o in kq)
    for u in range(4):
        qread(u)
        knext(3)
        if u == 2 and late_w1:
            emit(late_w1.pop(0))
    assert not kq
    stamp(6)
    e0 = [f'v_exp_f32 {Sx[i]}, {Sx[i]}' for i in range(4)] + \
         [f'v_cvt_pk_bf16_f32 {P[0]}, {Sx[0]}, {Sx[1]}', f'v_cvt_pk_bf16_f32 {P[1]}, {Sx[2]}, {Sx[3]}']
    e1 = [f'v_exp_f32 {Sx[i]}, {Sx[i]}' for i in range(4, 8)] + \
         [f'v_cvt_pk_bf16_f32 {P[2]}, {Sx[4]}, {Sx[5]}', f'v_cvt_pk_bf16_f32 {P[3]}, {Sx[6]}, {Sx[7]}']
    for u in range(4):
        if u in (0, 2):
            ds.wait('q%d' % (u + 1))
        smx(0, u)
        if u == 1 and late_w1:
            emit(late_w1.pop(0))
        if u >= 2:
            for x in kep[3 * u - 6:3 * u - 3]:
                a(x)
    ds.issue(f'ds_write2st64_b32 {vQw}, {kp[0]}, {kp[1]} offset0:16 offset1:18', 'kw')
    NX = cfg.get('nx1', 1)
    for u in range(NX):
        smx(1, u)
    while late_w1:
        emit(late_w1.pop(0))
    for x in e0:
        a(x)
    ds.wait('kw')
    a('s_barrier')
    for u in range(4):
        kread(u)
        if u + NX < 4:
            smx(1, u + NX)
    labv, labvr = a.newlabel('v'), a.newlabel('vretry')
    nv2 = vm.count_after('ldv2')

    def vtake():
        vm.wait('ldv')
        a.label(labv)
        a(f'v_cmp_eq_u32 vcc, {vPo[0]}, {rv[0]}')
        a(f'v_lshlrev_b32 {vT[0]}, 16, {rv[0]}')
        a(f'v_and_b32 {vT[1]}, 0xffff0000, {rv[0]}')
        a(f'v_lshlrev_b32 {vT[2]}, 16, {rv[1]}')
        a(f'v_and_b32 {vT[3]}, 0xffff0000, {rv[1]}')
        a(f's_cbranch_vccnz {labvr}')
        stamp(8)
    vfin = [f'v_add_f32 {vT[i]}, {vT[i]}, {av[i]}' for i in range(4)] + \
        [f'v_cvt_pk_bf16_f32 {vVm[0]}, {vT[0]}, {vT[1]}', f'v_cvt_pk_bf16_f32 {vVm[2]}, {vT[2]}, {vT[3]}']
    VE = cfg.get('vearly', 1)
    for u in range(4):
        if u in (0, 2):
            ds.wait('k%d' % (u + 1))
        smm(u)
        if u:
            a(e1[u - 1])
    a(e1[3])
    a(e1[4])
    a(e1[5])
    stamp(7)
    if VE:
        vtake()
    a(f'v_mfma_f32_16x16x32_bf16 {O[0:4]}, {vx[0:4]}, {P}, 0')
    sm = [f'v_mul_f32 {Sm[0]}, {sC[0]}, {Sm[0]}', f'v_mul_f32 {Sm[1]}, {sC[0]}, {Sm[1]}', f'v_exp_f32 {Sm[0]}, {Sm[0]}',
          f'v_exp_f32 {Sm[1]}, {Sm[1]}', f'v_cvt_pk_bf16_f32 {vPm[0]}, {Sm[0]}, {Sm[1]}']
    if VE:
        a(sm[0])
        a(sm[1])
        a(f'v_mfma_f32_16x16x32_bf16 {O[4:8]}, {vx[4:8]}, {P}, 0')
        a(sm[2])
        a(f'v_mfma_f32_16x16x32_bf16 {L}, {P}, {vOne}, 0')
        for x in sm[3:4] + [vfin[0], vfin[1], vfin[4], sm[4], vfin[2], vfin[3], vfin[5]]:
            a(x)
    else:
        a(f'v_mfma_f32_16x16x32_bf16 {O[4:8]}, {vx[4:8]}, {P}, 0')
        a(f'v_mfma_f32_16x16x32_bf16 {L}, {P}, {vOne}, 0')
        vtake()
        for x in sm[:4] + vfin[:4] + sm[4:] + vfin[4:]:
            a(x)
    labs, labj = a.newlabel('slowsm'), a.newlabel('smjoin')
    a.label(labj)
    zB = R('v', vPm.base + 2, 4)
    a(f'v_mfma_f32_16x16x32_bf16 {O[0:4]}, {vVm}, {vPm}, {O[0:4]}')
    a(f's_mov_b64 vcc, {sLow}')
    a(f'v_mfma_f32_16x16x32_bf16 {O[4:8]}, {vVm1}, {vPm}, {O[4:8]}')
    a(f'v_mfma_f32_16x16x32_bf16 {L}, {vPm}, {vOne}, {L}')
    if EXI:
        for x in expo[:2]:
            a(x)
    a(f'v_cvt_pk_bf16_f32 {O[0]}, {O[0]}, {O[1]}')
    a(f'v_cvt_pk_bf16_f32 {O[1]}, {O[2]}, {O[3]}')
    a(f'v_cvt_pk_bf16_f32 {O[2]}, {O[4]}, {O[5]}')
    a(f'v_cvt_pk_bf16_f32 {O[3]}, {O[6]}, {O[7]}')
    a(f'v_mfma_f32_16x16x32_bf16 {wacc[16:20]}, {vPm}, {zB}, 0')
    for i in range(2):
        a(f'v_cndmask_b32_dpp {O[i]}, {O[2 + i]}, {O[i]}, vcc quad_perm:[0,1,0,1] row_mask:0xf bank_mask:0xf')
    ds.issue(f'ds_write_b64 {vOw}, {O[0:2]}', 'ow')
    stamp(9)
    a(f'v_mfma_f32_32x32x16_bf16 {wacc[0:16]}, {vPm}, {zB}, 0')
    if EXI:
        a(expo[2])
        a(f'buffer_store_dwordx2 {vT[0:2]}, {vXs}, {sWS}, {sExV} offen sc1')
    a(f'v_max_f32 {vT[2]}, {L[0]}, {L[1]}')
    a(f'v_min_f32 {vT[3]}, {L[0]}, {L[1]}')
    a(f'v_cmp_nge_f32 vcc, {sHi}, {vT[2]}')
    a(f'v_cmp_nle_f32 {sTm2}, {sLo}, {vT[3]}')

    def idle():
        a(f'v_mfma_f32_16x16x32_bf16 {Sm}, {vOne}, {vOne}, {Sm}')
    for _ in range(cfg.get('idle1', 1)):
        idle()
    ds.wait('ow')
    a('s_barrier')
    ds.issue(f'ds_read_b128 {oa[0:4]}, {vSp[1]} offset:{L_OX}', 'o0')
    ds.issue(f'ds_read_b128 {oa[4:8]}, {vSp[1]} offset:{L_OX + 1024}', 'o1')
    a(f'v_rcp_f32 {rl[0]}, {L[0]}')
    a(f's_or_b64 vcc, vcc, {sTm2}')
    a(f's_and_b64 vcc, vcc, {sChk}')
    a(f'v_rcp_f32 {rl[1]}, {L[1]}')
    a(f's_or_b64 vcc, vcc, {sEnd}')
    idle()
    a(f's_cbranch_vccnz {labs}')
    wn = cfg.get('idle2', 2)
    for i in range(wn):
        if i < cfg.get('idle3', 1):
            idle()
        wot1(i)
    a(f's_mov_b64 {sChk}, -1')
    stamp(10)

    W = [wacc[4 * b:4 * b + 4] for b in range(5)]

    def fin(b, dst, packed=False):
        if packed:
            return [fold(W[b], 0), f'v_pk_mul_f32 {W[b][0:2]}, {W[b][0:2]}, {rl}', f'v_cvt_pk_bf16_f32 {dst}, {W[b][0]}, {W[b][1]}']
        return fold2(W[b], 0) + [f'v_mul_f32 {W[b][i]}, {W[b][i]}, {rl[i]}' for i in range(2)] + \
            [f'v_cvt_pk_bf16_f32 {dst}, {W[b][0]}, {W[b][1]}']

    def tag(x):
        return f'v_and_or_b32 {x}, {x}, -2, {sTag}'
    fw = {k: [] for k in range(10)}
    e = fin(1, vT[0]) + [tag(vT[0])] + fin(2, vT[1]) + [f'buffer_store_dwordx2 {vT[0:2]}, {vRSst}, {sWS}, {sRS} offen{stf}'] + \
        fin(3, vT[2]) + [tag(vT[2])]
    rest = [lambda i=i: wot1(i) for i in range(wn, 8)]
    for k in range(4):
        fw[k] = rest[:2 if k >= 2 else 1]
        rest = rest[len(fw[k]):]
    assert not rest
    for k, n in ((3, 1), (4, 2), (5, 3), (6, 3), (7, 3), (8, 3), (9, 3)):
        fw[k] += e[:n]
        e = e[n:]
    tail = e + fin(4, vT[3]) + [f'buffer_store_dwordx2 {vT[2:4]}, {vRSst}, {sWS}, {sRSl2} offen{stf}'] + \
        fin(0, vT[0], True) + [tag(vT[0]), f'buffer_store_dword {vT[0]}, {vRSst1}, {sWS}, {sRS} offen{stf}']
    k = 0
    for b in (1, 2, 3, 4, 0):
        for bb in range(2):
            ds.wait('o%d' % bb)
            wop = place[('WO', b, bb)] if b in (1, 2, 3) else WoT[8 * (2 * (b == 0) + bb):8 * (2 * (b == 0) + bb) + 8]
            if b in (4, 0):
                ds.wait('wo%d' % (2 * (b == 0) + bb))
            a(f'v_smfmac_f32_16x16x64_bf16 {W[b]}, {oa[4 * bb:4 * bb + 4]}, {wop}, {vIdx}')
            for x in fw[k]:
                emit(x)
            k += 1
    for x in tail:
        a(x)
    stamp(11)
    ND = cfg.get('rsdepth', 2)
    labl, labd, labn = a.newlabel('rsl'), a.newlabel('rsd'), a.newlabel('nored')
    a(f's_mov_b32 {sAGp}, {sAG}')
    a(f's_xor_b32 {sRi}, {sRw}, 0x20000')
    zs = [f'v_mov_b32 {x[i]}, 0' for x in (av, aq) for i in range(8)] + [f'v_mov_b32 {ak[i]}, 0' for i in range(4)]

    big = R('v', mfL.base, 64)
    sets = [big[16 * i:16 * i + 16] for i in range(ND)]
    cans = [vx[0], vx[1], vx[2], vx[3]]
    mk = []
    for i in range(4):
        m8 = 3 << (2 * i)
        m32 = m8 * 0x01010101
        mk += [f's_mov_b32 vcc_lo, {m32:#x}', f's_mov_b32 vcc_hi, {m32:#x}', f'v_cndmask_b32 {vSel[i]}, {vZ}, {vSp[0]}, vcc']

    def rsload(i):
        for jj in range(4):
            a(f'buffer_load_dwordx4 {sets[i][4 * jj:4 * jj + 4]}, {vL16}, {sWS}, {sRSl} offen offset:{jj * 1024} sc1')
    nz0 = cfg.get('rsdelay', 32)
    for x in zs[:nz0]:
        a(x)
    labz = a.newlabel('zrest')
    a(f's_cmp_eq_u32 {sIsRed}, 0')
    a(f's_cbranch_scc1 {labz}')
    for x in mk:
        a(x)
    warm(max(0, nz0 - len(zs) - len(mk)))
    for i in range(ND - 1):
        rsload(i)
        g = cfg.get('rsgap', 8)
        for x in zs[nz0:][:g]:
            a(x)
        warm(g - len(zs[nz0:][:g]))
        nz0 += g
    for x in zs[nz0:]:
        a(x)

    def fin_red():
        a(f'v_permlane32_swap_b32 {red[0]}, {red[2]}')
        a(f'v_permlane32_swap_b32 {red[1]}, {red[3]}')
        a(f'v_pk_add_f32 {red[0:2]}, {red[0:2]}, {red[2:4]}')
        a(f'v_cvt_pk_bf16_f32 {vT[2]}, {red[0]}, {red[1]}')
        a(f'v_max_i32 {vT[2]}, {POISON + 1}, {vT[2]}')
    a.label(labl)
    for i in range(ND):
        rsload((i + ND - 1) % ND)
        d = sets[i]
        for jj in range(4):
            a(f's_waitcnt vmcnt({4 * ND - 1 - jj})')
            a(f'v_mfma_f32_16x16x32_bf16 {red}, {d[4 * jj:4 * jj + 4]}, {vSel}, {"0" if jj == 0 else red}')
            if jj == 1:
                a(f'v_bitop3_b32 {vT[0]}, {d[0]}, {d[4]}, {sTag} bitop3:0x7e')
            if jj == 3:
                a(f'v_bitop3_b32 {vT[1]}, {d[8]}, {d[12]}, {sTag} bitop3:0x7e')
        a(f'v_bitop3_b32 {vT[0]}, {vT[0]}, {vT[1]}, 1 bitop3:0xa8')
        a(f'v_cmp_ne_u32 vcc, 0, {vT[0]}')
        count(0)
        if cfg.get('rsspec', 0):
            fin_red()
        a(f's_cbranch_vccz {labd}')
    bail(4)
    a(f's_branch {labl}')
    a.label(labd)
    if not cfg.get('rsspec', 0):
        fin_red()
    PUB = cfg.get('pub', 0)
    if not PUB:
        a(f'buffer_store_dword {vT[2]}, {vAGst}, {sWS}, {sRw} offen sc1')
    a(f'buffer_store_dword {vT[2]}, {vAGst}, {sWS}, {sAG} offen{stf}')
    a(f'buffer_store_dword {vPo[0]}, {vAGst}, {sWS}, {sAGn} offen{stf}')
    a.label(labn)
    a('s_barrier')
    stamp(12)
    for i in range(4, 8):
        a(f'v_mov_b32 {ak[i]}, 0')
    marks = []
    n0 = len(a.ins)
    a(f's_add_u32 {sStep}, {sStep}, 1')
    a(f's_mov_b32 {sExK}, {sExV}')
    step_scalars()
    sc = a.ins[n0:]
    del a.ins[n0:]
    k = min(cfg.get('cut', 30), len(sc))
    while k < len(sc) and sc[k].op.startswith('s_cselect'):
        k += 1
    a.ins += sc[:k]
    warm(cfg.get('cutwarm', 12))
    image(sAGp, L_AG, vx[0])
    a.ins += sc[k:]
    nafter = 0
    NATT = cfg.get('natt', 1)
    if NATT == 2:
        warm(cfg.get('attgap', 0))
        image(sAGp, L_AG, vx[1])
        nafter += 3
    if PUB:
        a(f's_xor_b32 {sT3}, {sRi}, 0x20000')
        a('s_barrier')
        a(f'buffer_store_dword {vT[2]}, {vAGst}, {sWS}, {sT3} offen sc1')
        nafter += 1
    if EARLY:
        warm(cfg.get('rwarm', 0))
        a('s_barrier')
        image(sRi, L_RM, rv[0])
        nafter += 3
    labk, labsp = a.newlabel('lok'), a.newlabel('lspin')
    a(f's_waitcnt vmcnt({nafter})')
    a(f'v_cmp_eq_u32 vcc, {vPo[0]}, {vx[0]}')
    a(f's_cbranch_vccnz {labsp}')
    a.label(labk)
    a('s_barrier')
    stamp(13)
    for b in range(5):
        a(f'ds_read_b128 {mfL[4 * b:4 * b + 4]}, {vL16} offset:{L_AG + 1024 * b}')
    if not EARLY and R0 is None:
        image(sRi, L_RM, rv[0], None, 0)
    stamp_out()
    a(f's_branch {LS}')
    a.label(labz)
    for x in zs[cfg.get('rsdelay', 32):]:
        a(x)
    a(f's_branch {labn}')

    def spin(lab, back, src, dst, cans, code, cnt, first, after=None, pre=None):
        a.label(lab)
        lp, out = a.newlabel('sp'), a.newlabel('spo')
        if pre is not None:
            a(f's_waitcnt vmcnt({pre})')
            a(f'v_cmp_eq_u32 vcc, {vPo[0]}, {cans[1]}')
            a(f's_cbranch_vccz {back}')
        if first:
            image(src, dst, cans[1])
        a.label(lp)
        for i in (1, 0):
            count(cnt)
            image(src, dst, cans[1 - i])
            a('s_waitcnt vmcnt(3)')
            a(f'v_cmp_eq_u32 vcc, {vPo[0]}, {cans[i]}')
            a(f's_cbranch_vccz {out}')
        bail(code)
        a(f's_branch {lp}')
        a.label(out)
        if after:
            a(after)
        a(f's_branch {back}')
    NR3 = nr3[0]
    spin(labsp, labk, sAGp, L_AG, [vx[0], vx[1]], 5, 3, True, None, nafter - 3 if NATT == 2 else None)
    spin(labr, labrj, sRi, L_RM, [rv[0], rv[1]], 6, 1, True, 's_waitcnt vmcnt(0)', NR3)

    for labw, labo in late:
        a.label(labw)
        a(f'buffer_load_dword {vFl}, {vFa}, {sWS}, {sFl} offen sc1')
        bail(3)
        a('s_waitcnt vmcnt(0)')
        a(f'v_cmp_gt_u32 vcc, {sT1}, {vFl}')
        a(f's_cbranch_vccnz {labw}')
        a(f's_branch {labo}')
    a.label(labvr)
    labv2 = a.newlabel('vr2')
    a(f's_waitcnt vmcnt({nv2})')
    a(f'v_mov_b32 {rv[0]}, {rvB[0]}')
    a(f'v_mov_b32 {rv[1]}, {rvB[1]}')
    a(f'v_cmp_eq_u32 vcc, {vPo[0]}, {rvB[0]}')
    a(f's_cbranch_vccz {labv}')
    a.label(labv2)
    a(ldv)
    bail(7)
    count(2)
    a('s_waitcnt vmcnt(0)')
    a(f'v_cmp_eq_u32 vcc, {vPo[0]}, {rv[0]}')
    a(f's_cbranch_vccnz {labv2}')
    a(f's_branch {labv}')
    a.label(labs)
    a(f's_cmp_eq_u32 {sStep}, 63')
    a(f's_cbranch_scc1 {LD}')
    count(3)
    a(f's_mov_b64 {sChk}, 0')
    a('s_waitcnt lgkmcnt(0)')
    a('s_barrier')
    a(f'v_xor_b32 {vT[2]}, 16384, {vKrd}' if not cfg.get('noimp') else f'v_mov_b32 {vT[2]}, {vKrd}')
    a(f'v_xor_b32 {vT[3]}, 16384, {vVrd}' if not cfg.get('noimp') else f'v_mov_b32 {vT[3]}, {vVrd}')
    for i in range(8):
        a(f'ds_read_b128 {kx[4 * i:4 * i + 4]}, {vT[2]} offset:{1024 * i}')
    for t in range(2):
        for T in range(2):
            a(f'ds_read_b64_tr_b16 {vx[4 * t + 2 * T:4 * t + 2 * T + 2]}, {vT[3]} offset:{4096 * T + 512 * t}')
    a('s_waitcnt lgkmcnt(0)')
    for u in range(4):
        qread(u)
        kread(u)
        a('s_waitcnt lgkmcnt(0)')
    for t in range(2):
        for u in range(4):
            smx(t, u)
    for u in range(4):
        smm(u)
    vals = [Sx[i] for i in range(8)] + [Sm[0], Sm[1]]
    a(f'v_mul_f32 {Sm[0]}, {sC[0]}, {Sm[0]}')
    a(f'v_mul_f32 {Sm[1]}, {sC[0]}, {Sm[1]}')
    m = vT[2]
    a(f'v_max3_f32 {m}, {vals[0]}, {vals[1]}, {vals[2]}')
    for i in range(3, 9, 2):
        a(f'v_max3_f32 {m}, {m}, {vals[i]}, {vals[i + 1]}')
    a(f'v_max_f32 {m}, {m}, {vals[9]}')
    a(f'v_mov_b32 {vT[3]}, {m}')
    a(f'v_permlane32_swap_b32 {vT[3]}, {m}')
    a(f'v_max_f32 {m}, {m}, {vT[3]}')
    a(f'v_mov_b32 {vT[3]}, {m}')
    a(f'v_permlane16_swap_b32 {vT[3]}, {m}')
    a(f'v_max_f32 {m}, {m}, {vT[3]}')
    for x in vals:
        a(f'v_sub_f32 {x}, {x}, {m}')
        a(f'v_exp_f32 {x}, {x}')
    for k in range(4):
        a(f'v_cvt_pk_bf16_f32 {P[k]}, {Sx[2 * k]}, {Sx[2 * k + 1]}')
    a(f'v_cvt_pk_bf16_f32 {vPm[0]}, {Sm[0]}, {Sm[1]}')
    a(f'v_mfma_f32_16x16x32_bf16 {O[0:4]}, {vx[0:4]}, {P}, 0')
    a(f'v_mfma_f32_16x16x32_bf16 {O[4:8]}, {vx[4:8]}, {P}, 0')
    a(f'v_mfma_f32_16x16x32_bf16 {L}, {P}, {vOne}, 0')
    a(f's_branch {labj}')
    a.label(LD)
    if not EXI and not cfg.get('noexp'):
        for x in expo:
            a(x)
        a(f'buffer_store_dwordx2 {vT[0:2]}, {vXs}, {sWS}, {sExV} offen sc1')
    if cfg.get('timing'):
        a(f's_memtime {sTm2}')
        a('s_waitcnt lgkmcnt(0)')
        a(f's_sub_u32 {sT0}, {sTm2[0]}, {sTm[0]}')
        a(f's_lshl_b32 {sT1}, {sJ}, 5')
        a(f's_add_u32 {sT1}, {sT1}, {sH}')
        a(f's_lshl_b32 {sT1}, {sT1}, 2')
        a(f's_add_u32 {sT1}, {sT1}, {sW}')
        a(f's_lshl_b32 {sT1}, {sT1}, 7')
        a(f's_add_u32 {sT1}, {sT1}, {TIM}')
        outs = [sT0, sBud] + [sCnt[i] for i in range(4)]
        for i, x in enumerate(outs):
            a(f'v_mov_b32 {vT[0]}, {x}')
            a(f'buffer_store_dword {vT[0]}, {vZ}, {sWS}, {sT1} offen offset:{4 * i}')
    if 'tl' in S:
        S['tl'](4, vT[0], vT[1])
    a('s_endpgm')
```

```python
import math
from dsl import R, Regs, Cnt
from layout import *
from role_r2 import lane_addr, f32hex, SCALE_LOG2E

MF32 = 'v_mfma_f32_32x32x16_bf16'
MF16 = 'v_mfma_f32_16x16x32_bf16'
LOG2E = math.log2(math.e)


class Ctx:
    def __init__(self, a, S, cfg, name):
        self.a, self.S, self.cfg, self.name = a, S, cfg, name
        self.sr = Regs('s', S['free'], 102)
        self.v = Regs('v', 1, 256)
        self.lane = self.v.alloc('lane')
        self.tmp = self.v.alloc('tmp')
        self.vZ = self.v.alloc('z')
        self.vLin = self.v.alloc('lin')
        self.t = self.v.alloc('t', 4)
        a(f'v_and_b32 {self.lane}, 63, v0')
        a(f'v_mov_b32 {self.vZ}, 0')
        a(f'v_lshlrev_b32 {self.vLin}, 4, {self.lane}')

    def LA(self, dst, fields, sterms=(), const=0):
        lane_addr(self.a, dst, self.lane, self.tmp, fields, sterms, const, self.S['t0'])

    def bail(self, code):
        a, S = self.a, self.S
        lab = a.newlabel('ok')
        a(f's_sub_u32 {S["budget"]}, {S["budget"]}, 1')
        a(f's_cbranch_scc0 {lab}')
        a(f's_mov_b32 {S["t0"]}, {code}')
        a('s_branch L_bail')
        a.label(lab)

    def srd(self, dst, ptr, nbytes):
        a = self.a
        a(f's_mov_b32 {dst[0]}, {ptr[0]}')
        a(f's_and_b32 {dst[1]}, {ptr[1]}, 0xffff')
        a(f's_mov_b32 {dst[2]}, {nbytes}')
        a(f's_mov_b32 {dst[3]}, 0x20000')

    def own_word(self, dst, line_sreg, base_line):
        a, S = self.a, self.S
        self.LA(dst, [], [(line_sreg, 128)], FLG + base_line * 128)
        a(f'v_mov_b32 {self.t[0]}, {OOB}')
        a('v_cmp_eq_u32 vcc, 0, v0')
        a(f'v_cndmask_b32 {dst}, {self.t[0]}, {dst}, vcc')

    def spin_flags(self, vFl, vFo, sFo, sNeed, code):
        a = self.a
        lab = a.newlabel('fl')
        a.label(lab)
        a(f'buffer_load_dword {vFl}, {vFo}, {self.S["ws"]}, {sFo} offen sc1')
        self.bail(code)
        a('s_waitcnt vmcnt(0)')
        a(f'v_cmp_gt_u32 vcc, {sNeed}, {vFl}')
        a(f's_cbranch_vccnz {lab}')

    def parity(self, dst, sHead):
        a, S = self.a, self.S
        lab = a.newlabel('par')
        a(f's_lshl_b32 {dst}, {S["mode"]}, 2')
        a(f'v_mov_b32 {self.t[2]}, {dst}')
        a.label(lab)
        a(f'global_load_dword {self.t[1]}, {self.t[2]}, {S["dbg"]} offset:{4 * D_PAR} sc1')
        self.bail(32)
        a('s_waitcnt vmcnt(0)')
        a(f'v_readfirstlane_b32 {dst}, {self.t[1]}')
        a(f's_cmp_eq_u32 {dst}, 0')
        a(f's_cbranch_scc1 {lab}')
        a(f's_xor_b32 {dst}, {dst}, {sHead}')
        a(f's_and_b32 {dst}, {dst}, 1')
        a(f's_lshl_b32 {dst}, {dst}, 13')

    def hold(self, census, seg):
        a, S = self.a, self.S
        if census:
            census(self.t[1], self.t[2])
        if seg:
            a(f's_mov_b32 {S["t1"]}, {FLG + F_K * 128}')
            a(f's_mov_b32 {S["t2"]}, {seg}')
            self.spin_flags(self.t[1], self.vZ, S['t1'], S['t2'], 30)

    def load_weights(self, nch, issue, rowbytes, rows, between=None):
        a = self.a
        for ci in range(nch):
            issue(ci)
        nlater = 0
        for ci in range(nch):
            a(f's_waitcnt vmcnt({4 * (nch - 1 - ci) + nlater})')
            a('s_barrier')
            if between:
                nlater += between(ci)
            a(f'v_add_u32 {self.t[0]}, {ci * 16384}, {self.vR}')
            for ks in range(4):
                for aa in range(2):
                    r = 16 * ci + 4 * ks + 2 * aa
                    a(f'ds_read_b64_tr_b16 a[{r}:{r + 1}], {self.t[0]} offset:{rows(ks, aa) * rowbytes}')
            a('s_waitcnt lgkmcnt(0)')
        a('s_barrier')

    def plain_weights(self, ptr, nbytes, pitch, sBase, nch, rows, lanerow, between=None):
        a, S = self.a, self.S
        sWt = self.sr.alloc('wt', 4)
        sM = self.sr.alloc('wm')
        vA = self.v.alloc('wa')
        self.vR = self.v.alloc('wr')
        self.srd(sWt, ptr, nbytes)
        self.LA(self.t[1], [(4, 2, 4)])
        self.LA(self.t[2], [(0, 4, 1)])
        a(f'v_xor_b32 {self.t[1]}, {self.t[1]}, {self.t[2]}')
        self.LA(vA, [(4, 2, pitch)], [(S['w'], 16 * pitch)])
        a(f'v_lshl_add_u32 {vA}, {self.t[1]}, 4, {vA}')
        self.LA(self.t[1], [(2, 2, 4)])
        self.LA(self.t[2], [(4, 1, 2), (1, 1, 1)], [(S['w'], 4)])
        a(f'v_xor_b32 {self.t[1]}, {self.t[1]}, {self.t[2]}')
        self.LA(self.vR, [(2, 2, 256), (5, 1, lanerow * 256), (0, 1, 8)])
        a(f'v_lshl_add_u32 {self.vR}, {self.t[1]}, 4, {self.vR}')
        a(f's_lshl_b32 {sM}, {S["w"]}, 12')
        ntf = ' nt' if self.cfg.get('nt', True) else ''

        def issue(ci):
            for ip in range(4):
                a(f's_add_u32 {S["t1"]}, {sBase}, {(64 * ci + 4 * ip) * pitch}')
                a(f's_add_u32 m0, {sM}, {ci * 16384 + ip * 1024}')
                a(f'buffer_load_dwordx4 {vA}, {sWt}, {S["t1"]} offen{ntf} lds')
        self.load_weights(nch, issue, 256, rows, between)


def tile_dma(c, nk, vSrc, sSrc, sDst):
    a, S = c.a, c.S
    ops = []
    for i in range(nk // 4):
        def op(i=i):
            if i % 4 == 0:
                a(f's_add_u32 {S["t2"]}, {sSrc}, {4096 * (i // 4)}')
            a(f's_add_u32 m0, {sDst}, {4096 * (i // 4)}')
            return f'buffer_load_dwordx4 {vSrc}, {S["ws"]}, {S["t2"]} offen offset:{1024 * (i % 4)} sc1 lds'
        ops.append(op)
    return ops


def mfma_loop(c, nk, acc, xf, vRd, fill, w_is_a=True, ds=None):
    a = c.a
    ds = ds or Cnt(a, 'lgkmcnt', 15)
    D = len(xf)
    for k in range(min(D - 1, nk)):
        ds.issue(f'ds_read_b128 {xf[k % D]}, {vRd} offset:{1024 * k}', 'x%d' % k)
    for k in range(nk):
        if k + D - 1 < nk:
            kk = k + D - 1
            ds.issue(f'ds_read_b128 {xf[kk % D]}, {vRd} offset:{1024 * kk}', 'x%d' % kk)
        ds.wait('x%d' % k)
        w = f'a[{4 * k}:{4 * k + 3}]'
        A, B = (w, xf[k % D]) if w_is_a else (xf[k % D], w)
        a(f'{MF32} {acc}, {A}, {B}, {"0" if k == 0 else acc}')
        for x in fill.get(k, []):
            if callable(x):
                x()
            else:
                a(x)


def spread(fill, ops, start, per=1, step=1):
    for i, x in enumerate(ops):
        fill.setdefault(start + (i // per) * step, []).append(x)


class XnFlags:
    def __init__(self, c):
        self.c = c
        self.sLine = c.sr.alloc('xl')
        self.sNeed = c.sr.alloc('xn')
        self.vFo = c.vZ

    def set(self, seg):
        a = self.c.a
        a(f's_mov_b32 {self.sLine}, {FLG + (F_XN + seg % NF) * 128}')
        a(f's_mov_b32 {self.sNeed}, {seg // NF + 1}')

    def advance(self, sSeg):
        a, S = self.c.a, self.c.S
        a(f's_mul_i32 {S["t3"]}, {sSeg}, 4682')
        a(f's_lshr_b32 {self.sNeed}, {S["t3"]}, 16')
        a(f's_mul_i32 {S["t3"]}, {self.sNeed}, {NF}')
        a(f's_sub_u32 {S["t3"]}, {sSeg}, {S["t3"]}')
        a(f's_lshl_b32 {S["t3"]}, {S["t3"]}, 7')
        a(f's_add_u32 {self.sLine}, {S["t3"]}, {FLG + F_XN * 128}')
        a(f's_add_u32 {self.sNeed}, {self.sNeed}, 1')


class SegFlags:
    def __init__(self, c, vFo):
        self.c = c
        self.sLine = c.sr.alloc('gl')
        self.sNeed = c.sr.alloc('gn')
        self.vFo = vFo
        c.a(f's_mov_b32 {self.sLine}, 0')

    def set(self, seg):
        self.c.a(f's_mov_b32 {self.sNeed}, {seg + 1}')

    def advance(self, sSeg):
        self.c.a(f's_add_u32 {self.sNeed}, {sSeg}, 1')


def stream_gemm(c, nk, flags, src_base, src_stride, sSrcOff, weights, epilogue, vOwn, census, hold=None):
    a, S = c.a, c.S
    sWS = S['ws']
    acc = [c.v.alloc('acc%d' % i, 16) for i in range(2)]
    xf = [c.v.alloc('xf%d' % i, 4) for i in range(4)]
    vRd, vFl, vCnt = c.v.alloc('rd'), c.v.alloc('fl'), c.v.alloc('cnt')
    sSeg, sPre, sBufR, sBufW, sSrc, sDst, sWq = [c.sr.alloc('g%d' % i) for i in range(7)]
    TB = nk * 1024
    nd = nk // 4
    a(f's_mul_i32 {sWq}, {S["w"]}, {TB // 4}')

    def src():
        a(f's_mul_i32 {sSrc}, {sPre}, {src_stride}')
        a(f's_add_u32 {sSrc}, {sSrc}, {src_base}')
        if sSrcOff is not None:
            a(f's_add_u32 {sSrc}, {sSrc}, {sSrcOff}')
        a(f's_add_u32 {sSrc}, {sSrc}, {sWq}')
        a(f's_add_u32 {sDst}, {sBufW}, {sWq}')
    if hold is not None:
        c.hold(census, hold)
    weights(None)
    if hold is None:
        census(c.t[1], c.t[2])
    for s in range(2):
        flags.set(s)
        c.spin_flags(vFl, flags.vFo, flags.sLine, flags.sNeed, 20)
        a(f's_mov_b32 {sPre}, {s}')
        a(f's_mov_b32 {sBufW}, {s * TB}')
        src()
        for op in tile_dma(c, nk, c.vLin, sSrc, sDst):
            a(op())
    flags.set(2)
    a(f'buffer_load_dword {vFl}, {flags.vFo}, {sWS}, {flags.sLine} offen sc1')
    a(f's_mov_b32 {sSeg}, 0')
    a(f's_mov_b32 {sPre}, 2')
    a(f's_mov_b32 {sBufR}, 0')
    a(f's_mov_b32 {sBufW}, {2 * TB}')
    a('s_waitcnt vmcnt(0)')
    top, done = a.newlabel(c.name + 'top'), a.newlabel(c.name + 'end')
    late = []
    S['tl'](3, c.t[0], c.t[1])
    a.label(top)
    for p in range(2):
        a(f's_waitcnt vmcnt({nd})')
        a('s_barrier')
        a(f'v_add_u32 {vRd}, {sBufR}, {c.vLin}')
        fill = {}
        labw, labo = a.newlabel('nf'), a.newlabel('nfok')
        late.append((labw, labo))
        pub = [lambda: (a(f's_sub_u32 {S["t3"]}, {sSeg}, 1'), a(f's_max_i32 {S["t3"]}, {S["t3"]}, 0'),
                        a(f'v_mov_b32 {vCnt}, {S["t3"]}'), a(f'buffer_store_dword {vCnt}, {vOwn}, {sWS}, 0 offen sc1'))]
        spread(fill, pub, 0)
        ep = epilogue(acc[1 - p], sSeg, -1)
        per = -(-len(ep) // (nk - nd * 2 - 6))
        spread(fill, ep, 1, per)
        k0 = 2 + -(-len(ep) // per)
        spread(fill, [lambda: (src(), a(f'v_cmp_gt_u32 vcc, {flags.sNeed}, {vFl}')),
                      lambda: (a(f's_cbranch_vccnz {labw}'), a.label(labo), a(f's_add_u32 {sPre}, {sPre}, 1'),
                               a(f's_min_u32 {sPre}, {sPre}, 63'), flags.advance(sPre),
                               a(f'buffer_load_dword {vFl}, {flags.vFo}, {sWS}, {flags.sLine} offen sc1'))], k0)
        spread(fill, [lambda op=op: a(op()) for op in tile_dma(c, nk, c.vLin, sSrc, sDst)], k0 + 2, 1, 2)
        assert max(fill) < nk, (c.name, max(fill))
        mfma_loop(c, nk, acc[p], xf, vRd, fill)
        for x in (sBufR, sBufW):
            a(f's_add_u32 {x}, {x}, {TB}')
            a(f's_cmp_eq_u32 {x}, {3 * TB}')
            a(f's_cselect_b32 {x}, 0, {x}')
        a(f's_add_u32 {sSeg}, {sSeg}, 1')
    a(f's_cmp_lt_u32 {sSeg}, 64')
    a(f's_cbranch_scc1 {top}')
    for x in epilogue(acc[1], sSeg, -1):
        x() if callable(x) else a(x)
    a('s_waitcnt vmcnt(0)')
    a('s_barrier')
    a(f'v_mov_b32 {vCnt}, 64')
    a(f'buffer_store_dword {vCnt}, {vOwn}, {sWS}, 0 offen sc1')
    S['tl'](4, c.t[0], c.t[1])
    a('s_endpgm')
    for labw, labo in late:
        a.label(labw)
        c.spin_flags(vFl, flags.vFo, flags.sLine, flags.sNeed, 21)
        a(f's_branch {labo}')


def seg_off(c, dst, sSeg, delta, stride, base, sExtra=None):
    a, S = c.a, c.S
    a(f's_mul_i32 {dst}, {sSeg}, {stride}')
    a(f's_add_u32 {dst}, {dst}, {(base + delta * stride) & 0xffffffff}')
    if sExtra is not None:
        a(f's_add_u32 {dst}, {dst}, {sExtra}')
    if delta < 0:
        a(f's_cmp_eq_u32 {sSeg}, 0')
        a(f's_cselect_b32 {dst}, {OOB}, {dst}')


NAT = lambda ks, aa: 16 * ks + 4 * aa


def gen_KV(a, S, cfg, census):
    c = Ctx(a, S, cfg, 'kv')
    sI = S['idx']
    sPtr = c.sr.alloc('p', 2)
    sB, sHB, sE, sSc = [c.sr.alloc('k%d' % i) for i in range(4)]
    a(f's_cmp_lt_u32 {sI}, 32')
    a(f's_cselect_b32 {sPtr[0]}, {S["ptrs"][2]}, {S["ptrs"][4]}')
    a(f's_cselect_b32 {sPtr[1]}, {S["ptrs"][3]}, {S["ptrs"][5]}')
    a(f's_cselect_b32 {sSc}, {f32hex(SCALE_LOG2E)}, 1.0')
    a(f's_cselect_b32 {sHB}, {HR + HR_KX}, {HR + HR_VX}')
    a(f's_and_b32 {S["t1"]}, {sI}, 31')
    a(f's_lshl_b32 {sB}, {S["t1"]}, 8')
    a(f's_lshl_b32 {S["t1"]}, {S["t1"]}, 21')
    a(f's_add_u32 {sHB}, {sHB}, {S["t1"]}')
    vSt, vOwn = c.v.alloc('st'), c.v.alloc('own')
    pk = c.v.alloc('pk', 8)
    c.LA(vSt, [(4, 1, 4096), (0, 4, 16), (5, 1, 256)], [(S['w'], 1024)])
    c.own_word(vOwn, sI, F_K)

    def ep(acc, sSeg, d):
        return [f'v_mul_f32 {acc[i]}, {sSc}, {acc[i]}' for i in range(16)] + \
               [f'v_cvt_pk_bf16_f32 {pk[i]}, {acc[2 * i]}, {acc[2 * i + 1]}' for i in range(8)] + \
               [lambda: seg_off(c, sE, sSeg, d, 8192, 0, sHB)] + \
               [f'buffer_store_dwordx4 {pk[4 * i:4 * i + 4]}, {vSt}, {S["ws"]}, {sE} offen offset:{512 * i} sc1' for i in range(2)]
    stream_gemm(c, 40, XnFlags(c), XN, 40960, None,
                lambda b: c.plain_weights(sPtr, 640 * 4096 * 2, 8192, sB, 10, NAT, 8, b), ep, vOwn, census)


def gen_G2(a, S, cfg, census):
    c = Ctx(a, S, cfg, 'g2')
    sI = S['idx']
    sE, sB, sM, sO = [c.sr.alloc('k%d' % i) for i in range(4)]
    sWt = [c.sr.alloc('wt%d' % i, 4) for i in range(2)]
    vOwn = c.v.alloc('own')
    pk = c.v.alloc('pk', 4)
    vA = [c.v.alloc('wa%d' % i) for i in range(2)]
    c.vR = c.v.alloc('wr')
    c.own_word(vOwn, sI, F_H)
    a(f's_lshl_b32 {sB}, {sI}, 7')
    a(f's_lshl_b32 {sO}, {sI}, 12')
    a(f's_lshl_b32 {S["t1"]}, {S["w"]}, 10')
    a(f's_add_u32 {sO}, {sO}, {S["t1"]}')
    ntf = ' nt' if cfg.get('nt', True) else ''

    def weights(between):
        pitch = 3456
        for part in range(2):
            c.srd(sWt[part], S['ffn'][2 * part:2 * part + 2], 640 * pitch)
            c.LA(c.t[1], [(4, 1, 2)], [], 4 * part)
            c.LA(c.t[2], [(0, 3, 1)])
            a(f'v_xor_b32 {c.t[1]}, {c.t[1]}, {c.t[2]}')
            c.LA(vA[part], [(3, 3, pitch)], [(S['w'], 16 * pitch)])
            a(f'v_lshl_add_u32 {vA[part]}, {c.t[1]}, 4, {vA[part]}')
        c.LA(c.t[1], [(4, 1, 4), (3, 1, 2)])
        c.LA(c.t[2], [(1, 1, 1)], [(S['w'], 2)])
        a(f'v_xor_b32 {c.t[1]}, {c.t[1]}, {c.t[2]}')
        c.LA(c.vR, [(2, 2, 128), (5, 1, 8 * 128), (4, 1, 8192), (0, 1, 8)])
        a(f'v_lshl_add_u32 {c.vR}, {c.t[1]}, 4, {c.vR}')
        a(f's_lshl_b32 {sM}, {S["w"]}, 11')

        def issue(ci):
            for part in range(2):
                for ip in range(2):
                    a(f's_add_u32 {S["t1"]}, {sB}, {(64 * ci + 8 * ip) * pitch}')
                    a(f's_add_u32 m0, {sM}, {ci * 16384 + part * 8192 + ip * 1024}')
                    a(f'buffer_load_dwordx4 {vA[part]}, {sWt[part]}, {S["t1"]} offen{ntf} lds')
        c.load_weights(10, issue, 128, NAT, between)

    def ep(acc, sSeg, d):
        o = []
        for i in range(8):
            o += [f'v_mul_f32 {acc[i]}, {f32hex(-LOG2E)}, {acc[i]}', f'v_exp_f32 {acc[i]}, {acc[i]}']
        for i in range(8):
            o += [f'v_add_f32 {acc[i]}, 1.0, {acc[i]}', f'v_rcp_f32 {acc[i]}, {acc[i]}']
        o += [f'v_mul_f32 {acc[i]}, {acc[i]}, {acc[8 + i]}' for i in range(8)]
        o += [f'v_cvt_pk_bf16_f32 {pk[i]}, {acc[2 * i]}, {acc[2 * i + 1]}' for i in range(4)]
        o += [lambda: seg_off(c, sE, sSeg, d, 110592, HH, sO),
              f'buffer_store_dwordx4 {pk}, {c.vLin}, {S["ws"]}, {sE} offen sc1']
        return o
    stream_gemm(c, 40, XnFlags(c), XN, 40960, None, weights, ep, vOwn, census, cfg.get('hold2', 6))


def partial_epilogue(c, pk, sE, stride, base, sO):
    S = c.S

    def ep(acc, sSeg, d):
        o = [f'v_cvt_pk_bf16_f32 {pk[i]}, {acc[2 * i]}, {acc[2 * i + 1]}' for i in range(8)]
        o += [lambda: seg_off(c, sE, sSeg, d, stride, base, sO)]
        for j in range(2):
            o += [f'v_permlane32_swap_b32 {pk[4 * j + i]}, {pk[4 * j + 2 + i]}' for i in range(2)]
        o += [f'buffer_store_dwordx4 {pk[4 * j:4 * j + 4]}, {c.vLin}, {S["ws"]}, {sE} offen offset:{1024 * j} sc1' for j in range(2)]
        return o
    return ep


def split5(c, sI, sKg, sNg):
    a = c.a
    a(f's_mul_i32 {sKg}, {sI}, 52')
    a(f's_lshr_b32 {sKg}, {sKg}, 8')
    a(f's_mul_i32 {sNg}, {sKg}, 5')
    a(f's_sub_u32 {sNg}, {sI}, {sNg}')


def gen_G3(a, S, cfg, census):
    c = Ctx(a, S, cfg, 'g3')
    sI = S['idx']
    sKg, sNg, sE, sB, sO, sX = [c.sr.alloc('k%d' % i) for i in range(6)]
    split5(c, sI, sKg, sNg)
    vOwn, vFo = c.v.alloc('own'), c.v.alloc('fo')
    pk = c.v.alloc('pk', 8)
    c.own_word(vOwn, sI, F_P3)
    a(f'v_lshrrev_b32 {vFo}, 2, {c.lane}')
    a(f'v_min_u32 {vFo}, 8, {vFo}')
    a(f'v_lshlrev_b32 {vFo}, 7, {vFo}')
    a(f's_mul_i32 {S["t1"]}, {sKg}, {9 * 128}')
    a(f's_add_u32 {S["t1"]}, {S["t1"]}, {FLG + F_H * 128}')
    a(f'v_add_u32 {vFo}, {S["t1"]}, {vFo}')
    a(f's_mul_i32 {sB}, {sKg}, {576 * 1280}')
    a(f's_lshl_b32 {S["t1"]}, {sNg}, 8')
    a(f's_add_u32 {sB}, {sB}, {S["t1"]}')
    a(f's_lshl_b32 {sO}, {sI}, 13')
    a(f's_lshl_b32 {S["t1"]}, {S["w"]}, 11')
    a(f's_add_u32 {sO}, {sO}, {S["t1"]}')
    a(f's_mul_i32 {sX}, {sKg}, {36 * 1024}')
    rows = lambda ks, aa: 16 * ks + 8 * aa
    stream_gemm(c, 36, SegFlags(c, vFo), HH, 110592, sX,
                lambda b: c.plain_weights(S['ffn'][4:6], 1728 * 1280, 1280, sB, 9, rows, 4, b),
                partial_epilogue(c, pk, sE, 15 * 8192, P3, sO), vOwn, census, cfg.get('hold3', 8))


def mark_slots(c, sI, half, pk, sSrc, sE, sCnt):
    a, S = c.a, c.S
    labq, labl = a.newlabel('np'), a.newlabel('pl')
    a(f's_cmp_ge_u32 {sI}, 32')
    a(f's_cbranch_scc1 {labq}')
    for i in range(4):
        a(f'v_mov_b32 {pk[i]}, {POISON}')
    c.parity(sE, sI)
    a(f's_lshl_b32 {sSrc}, {sI}, 21')
    a(f's_add_u32 {sSrc}, {sSrc}, {HR + HR_KM + half * 262144}')
    a(f's_add_u32 {sSrc}, {sSrc}, {sE}')
    a(f's_lshl_b32 {S["t1"]}, {S["w"]}, 16')
    a(f's_add_u32 {sSrc}, {sSrc}, {S["t1"]}')
    a(f's_mov_b32 {sCnt}, 0')
    a.label(labl)
    a(f's_add_u32 {sE}, {sSrc}, 4096')
    for i in range(4):
        a(f'buffer_store_dwordx4 {pk[0:4]}, {c.vLin}, {S["ws"]}, {sSrc} offen offset:{1024 * i} sc1')
        a(f'buffer_store_dwordx4 {pk[0:4]}, {c.vLin}, {S["ws"]}, {sE} offen offset:{1024 * i} sc1')
    a(f's_add_u32 {sSrc}, {sSrc}, 16384')
    a(f's_add_u32 {sCnt}, {sCnt}, 1')
    a(f's_cmp_lt_u32 {sCnt}, 4')
    a(f's_cbranch_scc1 {labl}')
    a('s_waitcnt vmcnt(0)')
    a('s_barrier')
    a(f's_cmp_lg_u32 {S["w"]}, 0')
    a(f's_cbranch_scc1 {labq}')
    a(f's_lshl_b32 {S["t1"]}, {S["mode"]}, 2')
    a(f'v_mov_b32 {c.t[1]}, {S["t1"]}')
    a(f'v_mov_b32 {c.t[2]}, 1')
    a('s_mov_b64 exec, 1')
    a(f'global_atomic_add {c.t[1]}, {c.t[2]}, {S["dbg"]} offset:{4 * D_QBAR}')
    a('s_mov_b64 exec, -1')
    a.label(labq)


def gen_G4(a, S, cfg, census):
    c = Ctx(a, S, cfg, 'g4')
    sI, sWS = S['idx'], S['ws']
    sKg, sNg, sE, sB, sO, sX, sSeg, sNeed, sM, sSrc = [c.sr.alloc('k%d' % i) for i in range(10)]
    split5(c, sI, sKg, sNg)
    vOwn, vFo, vFl, vCnt = [c.v.alloc('v%d' % i) for i in range(4)]
    pk = c.v.alloc('pk', 8)
    acc = c.v.alloc('acc', 16)
    xf = [c.v.alloc('xf%d' % i, 4) for i in range(8)]
    c.own_word(vOwn, sI, F_P4)
    c.LA(vFo, [(4, 2, 128)], [(sKg, 512)], FLG + F_O * 128)
    a(f's_mul_i32 {sB}, {sKg}, {512 * 1280}')
    a(f's_lshl_b32 {S["t1"]}, {sNg}, 8')
    a(f's_add_u32 {sB}, {sB}, {S["t1"]}')
    a(f's_lshl_b32 {sO}, {sI}, 13')
    a(f's_lshl_b32 {S["t1"]}, {S["w"]}, 11')
    a(f's_add_u32 {sO}, {sO}, {S["t1"]}')
    a(f's_lshl_b32 {sX}, {sKg}, 15')
    a(f's_add_u32 {sX}, {sX}, {S["t1"]}')
    a(f's_mov_b32 {sM}, {S["t1"]}')
    rows = lambda ks, aa: 32 * (ks >> 1) + 16 * aa + 8 * (ks & 1)
    census(c.t[1], c.t[2])
    mark_slots(c, sI, 1, pk, sSrc, sE, sSeg)
    c.hold(None, cfg.get('hold4', 6))
    c.plain_weights(S['ptrs'][6:8], 4096 * 1280, 1280, sB, 8, rows, 4)
    ep = partial_epilogue(c, pk, sE, 40 * 8192, P4, sO)
    a(f's_mov_b32 {sSeg}, 0')
    top, labw, labo = a.newlabel('g4top'), a.newlabel('g4w'), a.newlabel('g4ok')
    a.label(top)
    a(f'buffer_load_dword {vFl}, {vFo}, {sWS}, 0 offen sc1')
    a(f's_add_u32 {sNeed}, {sSeg}, 1')
    seg_off(c, sSrc, sSeg, 0, 262144, OO, sX)
    a(f'v_mov_b32 {vCnt}, {sSeg}')
    a('s_waitcnt vmcnt(0)')
    a('s_barrier')
    a(f'v_cmp_gt_u32 vcc, {sNeed}, {vFl}')
    a(f's_cbranch_vccnz {labw}')
    a.label(labo)
    for g in range(4):
        a(f's_add_u32 {S["t2"]}, {sSrc}, {8192 * g}')
        a(f's_add_u32 m0, {sM}, {8192 * g}')
        for i in range(2):
            a(f'buffer_load_dwordx4 {c.vLin}, {sWS}, {S["t2"]} offen offset:{1024 * i} sc1 lds')
    a(f'buffer_store_dword {vCnt}, {vOwn}, {sWS}, 0 offen sc1')
    ds = Cnt(a, 'lgkmcnt', 15)
    for g in range(4):
        a(f's_waitcnt vmcnt({7 - 2 * g})')
        a('s_barrier')
        for k in range(8):
            ds.issue(f'ds_read_b128 {xf[k]}, {c.vLin} offset:{8192 * g + 1024 * k}', 'x%d' % k)
        for k in range(8):
            ds.wait('x%d' % k)
            kk = 8 * g + k
            a(f'{MF32} {acc}, a[{4 * kk}:{4 * kk + 3}], {xf[k]}, {"0" if kk == 0 else acc}')
    for x in ep(acc, sSeg, 0):
        x() if callable(x) else a(x)
    a(f's_add_u32 {sSeg}, {sSeg}, 1')
    a(f's_cmp_lt_u32 {sSeg}, 64')
    a(f's_cbranch_scc1 {top}')
    a('s_waitcnt vmcnt(0)')
    a('s_barrier')
    a(f'v_mov_b32 {vCnt}, 64')
    a(f'buffer_store_dword {vCnt}, {vOwn}, {sWS}, 0 offen sc1')
    S['tl'](4, c.t[0], c.t[1])
    a('s_endpgm')
    a.label(labw)
    a(f'buffer_store_dword {vCnt}, {vOwn}, {sWS}, 0 offen sc1')
    c.spin_flags(vFl, vFo, '0', sNeed, 22)
    a(f's_branch {labo}')


def gen_QA(a, S, cfg, census):
    c = Ctx(a, S, cfg, 'qa')
    sI, sWS, sW = S['idx'], S['ws'], S['w']
    L_X, L_KV, L_Q, L_KM = 0, 81920, 114688, 122880
    sB, sHB, sSeg, sPre, sSrc, sDst, sWq, sKs, sKd, sE, sO, sNeed, sEx, sPar, sC, sN2 = [c.sr.alloc('k%d' % i) for i in range(16)]
    (vOwn, vFx, vFlx, vFe, vFle, vFk, vFlk, vCnt, vRd, vQw, vQr, vKr, vVr, vXs, vVs, vMw, vMr, vMr1, vSt) = [
        c.v.alloc('v%d' % i) for i in range(19)]
    acc = c.v.alloc('acc', 16)
    xf = [c.v.alloc('xf%d' % i, 4) for i in range(4)]
    pk = c.v.alloc('pk', 8)
    qb = c.v.alloc('qb', 16)
    kx = c.v.alloc('kx', 32)
    vt = c.v.alloc('vt', 16)
    ka = c.v.alloc('ka', 16)
    km = c.v.alloc('km', 2)
    vm = c.v.alloc('vm', 4)
    Sx = c.v.alloc('S', 12)
    P = c.v.alloc('P', 4)
    Pa = c.v.alloc('Pa', 8)
    Pb = c.v.alloc('Pb', 6)
    O = c.v.alloc('O', 16)
    L = c.v.alloc('L', 4)
    one = c.v.alloc('one', 4)
    msk = c.v.alloc('msk', 8)
    fx = XnFlags(c)
    c.own_word(vOwn, sI, F_O)
    a(f's_lshl_b32 {sB}, {sI}, 8')
    a(f's_lshl_b32 {sHB}, {sI}, 21')
    a(f's_add_u32 {sHB}, {sHB}, {HR}')
    a(f's_mul_i32 {sWq}, {sW}, 10240')
    a(f's_mov_b32 {sC}, {f32hex(SCALE_LOG2E)}')
    sQh, sEh = S['t1'], S['t2']
    a(f's_and_b32 {sQh}, {sW}, 1')
    a(f's_lshr_b32 {sEh}, {sW}, 1')
    a(f'v_mov_b32 {vFle}, {POISON}')
    c.LA(vFk, [(5, 1, 4096)], [(sI, 128)], FLG + F_K * 128)
    c.LA(vQw, [(4, 1, 4096), (0, 4, 16), (5, 1, 256)], [(sW, 1024)], L_Q)
    c.LA(vQr, [(0, 6, 16)], [(sQh, 4096)], L_Q)
    c.LA(vXs, [(0, 6, 8)], [(sW, 512)])
    c.LA(vVs, [(0, 6, 8)], [(sEh, 1024)], 2048)
    c.LA(vMw, [(0, 4, 32), (4, 2, 8)], [(sW, 1024)], L_KM)
    c.LA(vMr, [(5, 1, 512), (4, 1, 128), (2, 2, 32), (0, 2, 8)], [], L_KM)
    c.LA(vSt, [(5, 1, 1024), (4, 1, 512), (0, 4, 16)], [(sQh, 256), (sEh, 4096), (sI, 8192)])
    c.LA(vVr, [(4, 2, 64), (2, 2, 16), (0, 1, 256), (1, 1, 8)], [(sEh, 2048)], 8192)
    c.LA(c.t[1], [(0, 4, 1)], [(sQh, 16)])
    c.LA(c.t[2], [(4, 2, 4)])
    a(f'v_sub_u32 {c.t[1]}, {c.t[1]}, {c.t[2]}')
    a(f'v_mov_b32 {c.t[2]}, {f32hex(-1e30)}')
    for i in range(8):
        a(f'v_cmp_gt_i32 vcc, {16 * (i >> 2) + (i & 3)}, {c.t[1]}')
        a(f'v_cndmask_b32 {msk[i]}, {c.vZ}, {c.t[2]}, vcc')
    for i in range(4):
        a(f'v_mov_b32 {one[i]}, 0x3f803f80')
    for x in [Pa[i] for i in range(8)] + [Pb[i] for i in range(6)]:
        a(f'v_mov_b32 {x}, 0')
    census(c.t[1], c.t[2])
    mark_slots(c, sI, 0, pk, sSrc, sE, sSeg)
    c.hold(None, cfg.get('holdq', 2))
    c.parity(sO, sI)
    a(f's_add_u32 {sO}, {sO}, {sHB}')
    a(f's_add_u32 {sO}, {sO}, {HR_KM}')
    c.plain_weights(S['ptrs'][0:2], 640 * 4096 * 2, 8192, sB, 10, NAT, 8)

    def src():
        a(f's_mul_i32 {sSrc}, {sPre}, 40960')
        a(f's_add_u32 {sSrc}, {sSrc}, {XN}')
        a(f's_add_u32 {sSrc}, {sSrc}, {sWq}')
        a(f's_and_b32 {sPar}, {sPre}, 1')
        a(f's_mul_i32 {sDst}, {sPar}, 40960')
        a(f's_add_u32 {sDst}, {sDst}, {sWq}')
        a(f's_lshl_b32 {sKs}, {sPre}, 13')
        a(f's_add_u32 {sKs}, {sKs}, {sHB}')
        a(f's_lshl_b32 {S["t3"]}, {sW}, 11')
        a(f's_add_u32 {sKs}, {sKs}, {S["t3"]}')
        a(f's_lshl_b32 {sKd}, {sPar}, 14')
        a(f's_add_u32 {sKd}, {sKd}, {S["t3"]}')
        a(f's_add_u32 {sN2}, {sPre}, 1')

    def kv_dma():
        ops = []
        for i in range(4):
            def op(i=i):
                a(f's_add_u32 {S["t2"]}, {sKs}, {HR_VX * (i >> 1)}')
                a(f's_add_u32 m0, {sKd}, {L_KV + 8192 * (i >> 1)}')
                return f'buffer_load_dwordx4 {c.vLin}, {sWS}, {S["t2"]} offen offset:{1024 * (i & 1)} sc1 lds'
            ops.append(op)
        return ops
    lab = a.newlabel('qbar')
    a(f's_lshl_b32 {S["t3"]}, {S["mode"]}, 2')
    a(f'v_mov_b32 {c.t[1]}, {S["t3"]}')
    a.label(lab)
    a(f'global_load_dword {c.t[2]}, {c.t[1]}, {S["dbg"]} offset:{4 * D_QBAR} sc1')
    c.bail(31)
    a('s_waitcnt vmcnt(0)')
    a(f'v_cmp_gt_u32 vcc, 64, {c.t[2]}')
    a(f's_cbranch_vccnz {lab}')
    a(f's_mov_b32 {sPre}, 0')
    src()
    fx.set(0)
    c.spin_flags(vFlx, c.vZ, fx.sLine, fx.sNeed, 23)
    for op in tile_dma(c, 40, c.vLin, sSrc, sDst):
        a(op())
    c.spin_flags(vFlk, vFk, '0', sN2, 24)
    for op in kv_dma():
        a(op())
    fx.set(1)
    a(f'buffer_load_dword {vFlx}, {c.vZ}, {sWS}, {fx.sLine} offen sc1')
    a(f's_mov_b32 {sSeg}, 0')
    a(f's_mov_b32 {sPre}, 1')
    a('s_waitcnt vmcnt(0)')
    top = a.newlabel('qatop')
    lx, lxo, lk, lko, le, leo = [a.newlabel('qa') for _ in range(6)]
    S['tl'](3, c.t[0], c.t[1])
    a.label(top)
    a('s_waitcnt vmcnt(2)')
    a('s_barrier')
    a(f's_and_b32 {S["t3"]}, {sSeg}, 1')
    a(f's_mul_i32 {S["t1"]}, {S["t3"]}, 40960')
    a(f'v_add_u32 {vRd}, {S["t1"]}, {c.vLin}')
    a(f's_lshl_b32 {S["t3"]}, {S["t3"]}, 14')
    a(f's_add_u32 {S["t3"]}, {S["t3"]}, {L_KV}')
    a(f'v_add_u32 {vKr}, {S["t3"]}, {c.vLin}')
    a(f'v_add_u32 {vMr1}, {S["t3"]}, {vVr}')
    fill = {}
    spread(fill, [lambda: (src(), a(f'v_cmp_gt_u32 vcc, {fx.sNeed}, {vFlx}')),
                  lambda: None,
                  lambda: (a(f's_cbranch_vccnz {lx}'), a.label(lxo), a(f'v_cmp_gt_u32 vcc, {sN2}, {vFlk}')),
                  lambda: None,
                  lambda: (a(f's_cbranch_vccnz {lk}'), a.label(lko))], 0)
    spread(fill, [lambda op=op: a(op()) for op in tile_dma(c, 40, c.vLin, sSrc, sDst) + kv_dma()], 5, 1, 2)
    kp = cfg.get('qapub', 20)
    spread(fill, [lambda: (a(f's_waitcnt vmcnt({(kp - 5) // 2 + 1})'), a('s_barrier'), a(f'v_mov_b32 {vCnt}, {sSeg}'),
                           a(f'buffer_store_dword {vCnt}, {vOwn}, {sWS}, 0 offen sc1'))], kp)
    spread(fill, [lambda: (a(f's_add_u32 {sPre}, {sPre}, 1'), a(f's_min_u32 {sPre}, {sPre}, 63'), fx.advance(sPre),
                           a(f'buffer_load_dword {vFlx}, {c.vZ}, {sWS}, {fx.sLine} offen sc1'),
                           a(f'buffer_load_dword {vFlk}, {vFk}, {sWS}, 0 offen sc1'))], 38)
    assert max(fill) < 40
    ds = Cnt(a, 'lgkmcnt', 15)
    mfma_loop(c, 40, acc, xf, vRd, fill, True, ds)
    for i in range(8):
        ds.issue(f'ds_read_b128 {kx[4 * i:4 * i + 4]}, {vKr} offset:{1024 * i}', 'kx')
    a(f's_add_u32 {sNeed}, {sSeg}, 1')
    a(f's_lshr_b32 {sEx}, {sSeg}, 1')
    a(f's_lshl_b32 {sEx}, {sEx}, 14')
    a(f's_and_b32 {S["t3"]}, {sSeg}, 1')
    a(f's_lshl_b32 {S["t3"]}, {S["t3"]}, 12')
    a(f's_add_u32 {sEx}, {sEx}, {S["t3"]}')
    a(f's_add_u32 {sEx}, {sEx}, {sO}')
    seg_off(c, sE, sSeg, 0, 262144, OO)

    def exload():
        a(f'buffer_load_dwordx2 {km}, {vXs}, {sWS}, {sEx} offen sc1')
        a(f'buffer_load_dwordx2 {vm[0:2]}, {vVs}, {sWS}, {sEx} offen sc1')
        a(f'buffer_load_dwordx2 {vm[2:4]}, {vVs}, {sWS}, {sEx} offen offset:512 sc1')
    exload()
    for i in range(8):
        a(f'v_cvt_pk_bf16_f32 {pk[i]}, {acc[2 * i]}, {acc[2 * i + 1]}')
    for i in range(2):
        ds.issue(f'ds_write_b128 {vQw}, {pk[4 * i:4 * i + 4]} offset:{512 * i}', 'qw')
    ds.drain()
    a('s_barrier')
    for u in range(4):
        ds.issue(f'ds_read_b128 {qb[4 * u:4 * u + 4]}, {vQr} offset:{1024 * u}', 'q%d' % u)
    for E in range(4):
        for T in range(2):
            ds.issue(f'ds_read_b64_tr_b16 {vt[4 * E + 2 * T:4 * E + 2 * T + 2]}, {vMr1} offset:{4096 * T + 1024 * (E >> 1) + 512 * (E & 1)}', 'vt')
    for u in range(4):
        ds.wait('q%d' % u)
        for t in range(2):
            a(f'{MF16} {Sx[4 * t:4 * t + 4]}, {kx[(4 * t + u) * 4:(4 * t + u) * 4 + 4]}, {qb[4 * u:4 * u + 4]}, '
              f'{msk[4 * t:4 * t + 4] if u == 0 else Sx[4 * t:4 * t + 4]}')
    m, t1 = c.t[0], c.t[1]
    a(f'v_max3_f32 {m}, {Sx[0]}, {Sx[1]}, {Sx[2]}')
    a(f'v_max3_f32 {m}, {m}, {Sx[3]}, {Sx[4]}')
    a(f'v_max3_f32 {m}, {m}, {Sx[5]}, {Sx[6]}')
    a(f'v_max_f32 {m}, {m}, {Sx[7]}')
    a(f's_branch {leo}')
    a.label(le)
    c.bail(27)
    if cfg.get('qasleep'):
        a(f's_sleep {cfg["qasleep"]}')
    exload()
    a.label(leo)
    a('s_waitcnt vmcnt(0)')
    a(f'v_min3_i32 {t1}, {km[0]}, {vm[0]}, {vm[2]}')
    a(f'v_cmp_eq_u32 vcc, {vFle}, {t1}')
    a(f's_cbranch_vccnz {le}')
    a(f'ds_write2_b32 {vMw}, {km[0]}, {km[1]} offset0:0 offset1:128')
    ds.drain()
    a('s_barrier')
    for u in range(4):
        for aa in range(2):
            ds.issue(f'ds_read_b64_tr_b16 {ka[4 * u + 2 * aa:4 * u + 2 * aa + 2]}, {vMr} offset:{u * 1024 + aa * 256}', 'k%d' % u)
    for u in range(4):
        ds.wait('k%d' % u)
        a(f'{MF16} {Sx[8:12]}, {ka[4 * u:4 * u + 4]}, {qb[4 * u:4 * u + 4]}, {"0" if u == 0 else Sx[8:12]}')
    a(f'v_mul_f32 {Sx[8]}, {sC}, {Sx[8]}')
    a(f'v_mul_f32 {Sx[9]}, {sC}, {Sx[9]}')
    a(f'v_max3_f32 {m}, {m}, {Sx[8]}, {Sx[9]}')
    for sw in ('32', '16'):
        a(f'v_mov_b32 {t1}, {m}')
        a(f'v_permlane{sw}_swap_b32 {t1}, {m}')
        a(f'v_max_f32 {m}, {m}, {t1}')
    for i in range(10):
        a(f'v_sub_f32 {Sx[i]}, {Sx[i]}, {m}')
        a(f'v_exp_f32 {Sx[i]}, {Sx[i]}')
    for k in range(4):
        a(f'v_cvt_pk_bf16_f32 {P[k]}, {Sx[2 * k]}, {Sx[2 * k + 1]}')
    a(f'v_cvt_pk_bf16_f32 {Pa[3]}, {Sx[8]}, {Sx[9]}')
    a(f'v_cvt_pk_bf16_f32 {Pb[2]}, {Sx[8]}, {Sx[9]}')
    a(f'{MF16} {L}, {one}, {P}, 0')
    a(f'{MF16} {L}, {one}, {Pb[2:6]}, {L}')
    sel = [Pb[2:6], Pa[2:6], Pb[0:4], Pa[0:4]]
    for E in range(4):
        a(f'{MF16} {O[4 * E:4 * E + 4]}, {vt[4 * E:4 * E + 4]}, {P}, 0')
        a(f'{MF16} {O[4 * E:4 * E + 4]}, {vm}, {sel[E]}, {O[4 * E:4 * E + 4]}')
        if E == 1:
            a(f'v_rcp_f32 {m}, {L[0]}')
    for pr in range(2):
        for i in range(8):
            a(f'v_mul_f32 {O[8 * pr + i]}, {O[8 * pr + i]}, {m}')
        for i in range(4):
            a(f'v_cvt_pk_bf16_f32 {pk[4 * pr + i]}, {O[8 * pr + 2 * i]}, {O[8 * pr + 2 * i + 1]}')
        a(f'buffer_store_dwordx4 {pk[4 * pr:4 * pr + 4]}, {vSt}, {sWS}, {sE} offen offset:{2048 * pr} sc1')
    a(f's_add_u32 {sSeg}, {sSeg}, 1')
    a(f's_cmp_lt_u32 {sSeg}, 64')
    a(f's_cbranch_scc1 {top}')
    a('s_waitcnt vmcnt(0)')
    a('s_barrier')
    a(f'v_mov_b32 {vCnt}, 64')
    a(f'buffer_store_dword {vCnt}, {vOwn}, {sWS}, 0 offen sc1')
    S['tl'](4, c.t[0], c.t[1])
    a('s_endpgm')
    for lab, back, args in ((lx, lxo, (vFlx, c.vZ, fx.sLine, fx.sNeed, 25)), (lk, lko, (vFlk, vFk, '0', sN2, 26))):
        a.label(lab)
        c.spin_flags(*args)
        a(f's_branch {back}')


def gen_F(a, S, cfg, census):
    c = Ctx(a, S, cfg, 'f')
    sI, sWS, sW = S['idx'], S['ws'], S['w']
    sX = c.sr.alloc('x', 4)
    sOut = c.sr.alloc('o', 4)
    sSeg, sE, sCnt, sTask, sCg, sO8, sNg, sNeed, sP4, sP3, sRow, sBest = [c.sr.alloc('k%d' % i) for i in range(12)]
    sTm = [c.sr.alloc('tm%d' % i, 2) for i in range(2)]
    sMin = c.sr.alloc('mn', 2)
    vOwn, vA, vB, vF3, vF4, vFl, vCnt, vP = [c.v.alloc('v%d' % i) for i in range(8)]
    xr = c.v.alloc('xr', 48)
    f = c.v.alloc('f', 80)
    c.srd(sX, S['x'], 2048 * 1280)
    c.srd(sOut, S['out'], 2048 * 1280)
    c.own_word(vOwn, sI, F_XN)
    labp = a.newlabel('noprobe')
    a(f's_lshl_b32 {S["t1"]}, {sI}, 2')
    a(f's_add_u32 {sTask}, {S["t1"]}, {sW}')
    a(f's_cmp_lg_u32 {sTask}, {4 * NF - 1}')
    a(f's_cbranch_scc1 {labp}')
    a(f'v_mov_b32 {vP}, {PROBE}')
    a('s_mov_b64 exec, 1')
    a(f's_mov_b32 {sMin[0]}, -1')
    a(f's_mov_b32 {sMin[1]}, -1')
    a('s_waitcnt vmcnt(0)')
    for it in range(3):
        for p in range(2):
            a(f's_mov_b32 {S["t2"]}, {8192 * p + 128 * it}')
            a(f's_memtime {sTm[0]}')
            a('s_waitcnt lgkmcnt(0)')
            a(f'buffer_store_dword {c.vZ}, {vP}, {sWS}, {S["t2"]} offen sc1')
            a('s_waitcnt vmcnt(0)')
            a(f's_memtime {sTm[1]}')
            a('s_waitcnt lgkmcnt(0)')
            a(f's_sub_u32 {S["t2"]}, {sTm[1][0]}, {sTm[0][0]}')
            a(f's_min_u32 {sMin[p]}, {sMin[p]}, {S["t2"]}')
    a(f's_cmp_lt_u32 {sMin[1]}, {sMin[0]}')
    a(f's_cselect_b32 {S["t2"]}, 1, 0')
    a(f's_lshr_b32 {S["t3"]}, {S["xcc"]}, 2')
    a(f's_xor_b32 {S["t2"]}, {S["t2"]}, {S["t3"]}')
    a(f's_or_b32 {S["t2"]}, {S["t2"]}, 2')
    a(f'v_mov_b32 {vP}, {S["t2"]}')
    a(f's_lshl_b32 {S["t2"]}, {S["mode"]}, 2')
    a(f'v_mov_b32 {c.t[0]}, {S["t2"]}')
    a(f'global_store_dword {c.t[0]}, {vP}, {S["dbg"]} offset:{4 * D_PAR} sc1')
    a('s_mov_b64 exec, -1')
    a.label(labp)
    c.LA(vA, [(0, 3, 1280), (3, 3, 16)], [(sW, 8 * 1280)])
    c.LA(vB, [(4, 2, 1024), (3, 1, 512), (0, 3, 16)], [(sW, 128)])
    a(f's_mov_b32 {sSeg}, {sI}')
    a(f's_mov_b32 {sCnt}, 0')

    def xload():
        a(f's_mul_i32 {sE}, {sSeg}, 40960')
        for i in range(10):
            a(f'buffer_load_dwordx4 {xr[4 * i:4 * i + 4]}, {vA}, {sX}, {sE} offen offset:{128 * i}')
    xload()
    top = a.newlabel('ln')
    a.label(top)
    a('s_waitcnt vmcnt(0)')
    for i in range(40):
        a(f'v_lshlrev_b32 {f[2 * i]}, 16, {xr[i]}')
        a(f'v_and_b32 {f[2 * i + 1]}, 0xffff0000, {xr[i]}')
    a(f's_mul_i32 {sRow}, {sSeg}, 40960')
    a(f's_add_u32 {sRow}, {sRow}, {XN}')
    a(f's_add_u32 {sSeg}, {sSeg}, {NF}')
    xload()
    s0, s1 = c.t[0], c.t[1]

    def rowsum():
        a(f'v_add_f32_dpp {s0}, {s0}, {s0} row_ror:8 row_mask:0xf bank_mask:0xf')
        for sw in ('16', '32'):
            a(f'v_mov_b32 {s1}, {s0}')
            a(f'v_permlane{sw}_swap_b32 {s1}, {s0}')
            a(f'v_add_f32 {s0}, {s0}, {s1}')
    t2 = c.t[2:4]
    a(f'v_pk_add_f32 {t2}, {f[0:2]}, {f[2:4]}')
    for i in range(2, 40):
        a(f'v_pk_add_f32 {t2}, {t2}, {f[2 * i:2 * i + 2]}')
    a(f'v_add_f32 {s0}, {t2[0]}, {t2[1]}')
    rowsum()
    a(f'v_mul_f32 {s0}, {f32hex(1.0 / 640)}, {s0}')
    for i in range(80):
        a(f'v_sub_f32 {f[i]}, {f[i]}, {s0}')
    a(f'v_pk_mul_f32 {t2}, {f[0:2]}, {f[0:2]}')
    for i in range(1, 40):
        a(f'v_pk_fma_f32 {t2}, {f[2 * i:2 * i + 2]}, {f[2 * i:2 * i + 2]}, {t2}')
    a(f'v_add_f32 {s0}, {t2[0]}, {t2[1]}')
    rowsum()
    a(f'v_mov_b32 {s1}, {f32hex(1e-5)}')
    a(f'v_fmac_f32 {s1}, {f32hex(1.0 / 640)}, {s0}')
    a(f'v_rsq_f32 {s0}, {s1}')
    for i in range(10):
        for k in range(8):
            a(f'v_mul_f32 {f[8 * i + k]}, {f[8 * i + k]}, {s0}')
        for k in range(4):
            a(f'v_cvt_pk_bf16_f32 {f[8 * i + k]}, {f[8 * i + 2 * k]}, {f[8 * i + 2 * k + 1]}')
        a(f's_add_u32 {S["t2"]}, {sRow}, {4096 * i}')
        a(f'buffer_store_dwordx4 {f[8 * i:8 * i + 4]}, {vB}, {sWS}, {S["t2"]} offen sc1')
    a(f's_add_u32 {sCnt}, {sCnt}, 1')
    a(f'v_mov_b32 {vCnt}, {sCnt}')
    labc = a.newlabel('cdone')
    a(f's_cmp_lg_u32 {sCnt}, 1')
    a(f's_cbranch_scc1 {labc}')
    census(c.t[1], c.t[2])
    a.label(labc)
    a('s_waitcnt vmcnt(0)')
    a('s_barrier')
    a(f'buffer_store_dword {vCnt}, {vOwn}, {sWS}, 0 offen sc1')
    a(f's_cmp_lt_u32 {sSeg}, 64')
    a(f's_cbranch_scc1 {top}')
    S['tl'](3, c.t[0], c.t[1])
    c.LA(vA, [(0, 3, 1280), (3, 3, 16)])
    c.LA(vB, [(5, 1, 2048), (4, 1, 1024), (3, 1, 512), (0, 3, 16)])
    a(f'v_lshrrev_b32 {vF3}, 4, {c.lane}')
    a(f'v_min_u32 {vF3}, 2, {vF3}')
    a(f'v_mul_u32_u24 {vF3}, 640, {vF3}')
    a(f'v_add_u32 {vF3}, {FLG + F_P3 * 128}, {vF3}')
    c.LA(vF4, [(3, 3, 640)], [], FLG + F_P4 * 128)
    top = a.newlabel('fin')
    a.label(top)
    a(f's_mul_i32 {sSeg}, {sTask}, 52429')
    a(f's_lshr_b32 {sSeg}, {sSeg}, 21')
    a(f's_mul_i32 {S["t1"]}, {sSeg}, 40')
    a(f's_sub_u32 {S["t1"]}, {sTask}, {S["t1"]}')
    a(f's_mul_i32 {sO8}, {S["t1"]}, 26')
    a(f's_lshr_b32 {sO8}, {sO8}, 8')
    a(f's_mul_i32 {S["t2"]}, {sO8}, 10')
    a(f's_sub_u32 {sCg}, {S["t1"]}, {S["t2"]}')
    a(f's_lshr_b32 {sNg}, {sCg}, 1')
    a(f's_add_u32 {sNeed}, {sSeg}, 1')
    a(f's_mul_i32 {sRow}, {sSeg}, 40960')
    a(f's_mul_i32 {S["t1"]}, {sO8}, 10240')
    a(f's_add_u32 {sRow}, {sRow}, {S["t1"]}')
    a(f's_lshl_b32 {S["t1"]}, {sCg}, 7')
    a(f's_add_u32 {sRow}, {sRow}, {S["t1"]}')
    a(f's_lshl_b32 {S["t1"]}, {sNg}, 13')
    a(f's_and_b32 {S["t2"]}, {sCg}, 1')
    a(f's_lshl_b32 {S["t2"]}, {S["t2"]}, 12')
    a(f's_add_u32 {S["t1"]}, {S["t1"]}, {S["t2"]}')
    a(f's_lshl_b32 {S["t2"]}, {sO8}, 7')
    a(f's_add_u32 {S["t1"]}, {S["t1"]}, {S["t2"]}')
    seg_off(c, sP4, sSeg, 0, 40 * 8192, P4, S['t1'])
    seg_off(c, sP3, sSeg, 0, 15 * 8192, P3, S['t1'])
    a(f's_lshl_b32 {sNg}, {sNg}, 7')
    a(f'buffer_load_dwordx4 {xr[0:4]}, {vA}, {sX}, {sRow} offen')
    c.spin_flags(vFl, vF3, sNg, sNeed, 28)
    for k in range(3):
        a(f's_add_u32 {S["t2"]}, {sP3}, {k * 40960}')
        a(f'buffer_load_dwordx4 {xr[4 + 4 * k:8 + 4 * k]}, {vB}, {sWS}, {S["t2"]} offen sc1')

    def add(k, first=False):
        for i in range(4):
            d = f[2 * i:2 * i + 2] if first else f[8:10]
            a(f'v_lshlrev_b32 {d[0]}, 16, {xr[4 * k + i]}')
            a(f'v_and_b32 {d[1]}, 0xffff0000, {xr[4 * k + i]}')
            if not first:
                a(f'v_pk_add_f32 {f[2 * i:2 * i + 2]}, {f[2 * i:2 * i + 2]}, {d}')
    c.spin_flags(vFl, vF4, sNg, sNeed, 29)
    for k in range(8):
        a(f's_add_u32 {S["t2"]}, {sP4}, {k * 40960}')
        a(f'buffer_load_dwordx4 {xr[16 + 4 * k:20 + 4 * k]}, {vB}, {sWS}, {S["t2"]} offen sc1')
    for k in range(4):
        add(k, k == 0)
    for k in range(8):
        a(f's_waitcnt vmcnt({7 - k})')
        add(4 + k)
    for i in range(4):
        a(f'v_cvt_pk_bf16_f32 {f[12 + i]}, {f[2 * i]}, {f[2 * i + 1]}')
    a(f'buffer_store_dwordx4 {f[12:16]}, {vA}, {sOut}, {sRow} offen')
    a(f's_add_u32 {sTask}, {sTask}, {4 * NF}')
    a(f's_cmp_lt_u32 {sTask}, {64 * 40}')
    a(f's_cbranch_scc1 {top}')
    S['tl'](4, c.t[0], c.t[1])
    a('s_endpgm')
```

```python
import sys, json
from dsl import Asm, Regs, R, Ins
from layout import *
from role_r2 import gen_R
import roles_tok as T

NAME = 'parallel_sum__memory_aug_recurrent_mem_tr__glu_gated_glu__prompt_kernel'
HEAD = open('ref_head.txt').read().split('; Override')[0]


def build(cfg):
    a = Asm()
    sr = Regs('s', 4, 102)
    S = {}
    S['ws'] = sr.alloc('ws', 4)
    S['ptrs'] = sr.alloc('ptrs', 8, align=4)
    ld0 = sr.alloc('x_mem0', 4)
    S['x'], S['mem0'] = ld0[0:2], ld0[2:4]
    ld1 = sr.alloc('dbg_ws', 4)
    S['dbg'] = ld1[0:2]
    for nme in ('h', 'j', 'w', 'budget', 't0', 't1', 't2', 't3', 'xcc', 'mode'):
        S[nme] = sr.alloc(nme)
    S['idx'] = S['h']
    rfree = sr.next
    ffn = sr.alloc('ffn', 8, align=4)
    S['ffn'], S['out'] = ffn[0:6], ffn[6:8]
    S['free'] = sr.next
    t0, t1, t2 = S['t0'], S['t1'], S['t2']

    def tl(i, va, vb):
        if cfg.get('tld'):
            lab = a.newlabel('tld')
            a(f's_cmp_lg_u32 {S["w"]}, 0')
            a(f's_cbranch_scc1 {lab}')
            a(f's_and_b32 {t0}, {S["h"]}, 7')
            a(f's_cmp_lg_u32 {t0}, 0')
            a(f's_cbranch_scc1 {lab}')
            a('s_mov_b64 exec, 1')
            a('s_memrealtime vcc')
            a('s_waitcnt lgkmcnt(0)')
            a(f's_cmp_lt_u32 {S["j"]}, 2')
            a(f's_cselect_b32 {t0}, {4 * (2, 3, 3, 4, 5)[i]}, {4 * (6, 7, 7, 10, 11)[i]}')
            a(f'v_mov_b32 {va}, vcc_lo')
            a(f'v_mov_b32 {vb}, {t0}')
            a(f'global_atomic_umax {vb}, {va}, {S["dbg"]}')
            if i == 0:
                a(f'v_not_b32 {va}, {va}')
                a(f'v_mov_b32 {vb}, 56')
                a(f'global_atomic_umax {vb}, {va}, {S["dbg"]}')
            a('s_mov_b64 exec, -1')
            a.label(lab)
            return
        if not cfg.get('tl'):
            return
        a('s_memrealtime vcc')
        a('s_waitcnt lgkmcnt(0)')
        a(f's_lshl_b32 {t0}, s2, 6')
        a(f's_add_u32 {t0}, {t0}, {TIM + 65536 + 4 * i}')
        a(f'v_mov_b32 {va}, vcc_lo')
        a(f'v_mov_b32 {vb}, 0')
        a(f'buffer_store_dword {va}, {vb}, {S["ws"]}, {t0} offen')
        if i == 0:
            a(f's_lshl_b32 {t1}, {S["j"]}, 8')
            a(f's_or_b32 {t1}, {t1}, {S["h"]}')
            a(f'v_mov_b32 {va}, {t1}')
            a(f'buffer_store_dword {va}, {vb}, {S["ws"]}, {t0} offen offset:60')
        a('s_waitcnt vmcnt(0)')
    S['tl'] = tl
    a('s_cmp_ge_u32 s2, 256')
    a('s_cbranch_scc1 L_exit')
    a(f's_load_dwordx4 {ld0}, s[0:1], 0')
    a(f's_load_dwordx8 {S["ptrs"]}, s[0:1], 16')
    a(f's_load_dwordx4 {ld1}, s[0:1], 96')
    a(f's_mov_b64 {R("s", 100, 2)}, s[0:1]')
    a(f's_getreg_b32 {S["xcc"]}, hwreg(HW_REG_XCC_ID, 0, 4)')
    a('v_lshrrev_b32 v1, 6, v0')
    a(f'v_readfirstlane_b32 {S["w"]}, v1')
    a(f's_mov_b32 {S["budget"]}, {cfg.get("budget", 400000)}')
    a(f's_mov_b32 {S["mode"]}, 0')
    a('s_waitcnt lgkmcnt(0)')
    a(f's_mov_b32 {S["ws"][0]}, {ld1[2]}')
    a(f's_and_b32 {S["ws"][1]}, {ld1[3]}, 0xffff')
    a(f's_mov_b32 {S["ws"][2]}, 0x10000000')
    a(f's_mov_b32 {S["ws"][3]}, 0x20000')
    a(f's_cmp_lg_u32 {S["w"]}, 0')
    a('s_cbranch_scc1 L_tk')
    a('s_mov_b64 exec, 3')
    a(f's_lshl_b32 {t0}, s2, 8')
    a(f's_add_u32 {t0}, {t0}, {FLG}')
    a('v_lshlrev_b32 v1, 7, v0')
    a('v_mov_b32 v2, 0')
    a(f'buffer_store_dword v2, v1, {S["ws"]}, {t0} offen sc1')
    a(f's_and_b32 {t0}, {S["xcc"]}, 3')
    a(f's_lshl_b32 {t0}, {t0}, 6')
    a(f's_bfe_u32 {t1}, {S["xcc"]}, 0x10002')
    a(f's_lshl_b32 {t1}, {t1}, 2')
    a(f's_add_u32 {t0}, {t0}, {t1}')
    a(f'v_mov_b32 v1, {t0}')
    a('v_mov_b32 v2, 1')
    a('s_mov_b64 exec, 1')
    a('s_waitcnt vmcnt(0)')
    a(f'global_atomic_add v3, v1, v2, {S["dbg"]} sc0')
    a('v_mov_b32 v1, 0')
    a('s_waitcnt vmcnt(0)')
    a('ds_write_b32 v1, v3')
    a('s_waitcnt lgkmcnt(0)')
    a('s_mov_b64 exec, -1')
    a.label('L_tk')
    a('s_barrier')
    a('v_mov_b32 v1, 0')
    a('ds_read_b32 v2, v1')
    a('s_waitcnt lgkmcnt(0)')
    a(f'v_readfirstlane_b32 {S["h"]}, v2')
    a('s_barrier')
    a(f's_and_b32 {S["j"]}, {S["xcc"]}, 7')
    a(f's_cmp_ge_u32 {S["h"]}, 32')
    a('s_cbranch_scc1 L_norole')
    a.label('L_dispatch')
    tl(0, 'v1', 'v2')
    h, j = S['h'], S['j']
    a(f's_cmp_lt_u32 {j}, 2')
    a('s_cbranch_scc1 L_R')
    a(f's_load_dwordx8 {ffn}, s[100:101], 64')
    a('s_waitcnt lgkmcnt(0)')
    a(f's_cmp_eq_u32 {j}, 4\ns_cbranch_scc1 L_KV')
    a(f's_cmp_eq_u32 {j}, 2\ns_cbranch_scc1 L_QA')
    a(f's_cmp_eq_u32 {j}, 5\ns_cbranch_scc0 L_d5')
    a(f's_add_u32 {h}, {h}, 32\ns_branch L_KV')
    a.label('L_d5')
    a(f's_cmp_eq_u32 {j}, 3\ns_cbranch_scc0 L_d6')
    a(f's_cmp_lt_u32 {h}, 27\ns_cbranch_scc1 L_G2')
    a(f's_sub_u32 {h}, {h}, 27\ns_branch L_F')
    a.label('L_d6')
    a(f's_cmp_eq_u32 {j}, 6\ns_cbranch_scc0 L_d7')
    a(f's_cmp_lt_u32 {h}, 30\ns_cbranch_scc1 L_G4')
    a(f's_sub_u32 {h}, {h}, 25\ns_branch L_F')
    a.label('L_d7')
    a(f's_cmp_lt_u32 {h}, 10\ns_cbranch_scc0 L_d7b')
    a(f's_add_u32 {h}, {h}, 30\ns_branch L_G4')
    a.label('L_d7b')
    a(f's_cmp_lt_u32 {h}, 25\ns_cbranch_scc0 L_d7c')
    a(f's_sub_u32 {h}, {h}, 10\ns_branch L_G3')
    a.label('L_d7c')
    a(f's_sub_u32 {h}, {h}, 18\ns_branch L_F')

    def bail(code):
        lab = a.newlabel('ok')
        a(f's_sub_u32 {S["budget"]}, {S["budget"]}, 1')
        a(f's_cbranch_scc0 {lab}')
        a(f's_mov_b32 {t0}, {code}')
        a('s_branch L_bail')
        a.label(lab)

    def count(va, vb, pre=None, phase=None):
        lab, chk = a.newlabel('cen'), a.newlabel('cenc')
        ld = f'global_load_dword {vb}, {va}, {S["dbg"]} sc1'
        if phase != 1:
            a(f'v_mbcnt_lo_u32_b32 {va}, -1, 0')
            a(f'v_bfe_u32 {vb}, {va}, 2, 1')
            a(f'v_and_b32 {va}, 3, {va}')
            a(f'v_lshlrev_b32 {va}, 6, {va}')
            a(f'v_lshl_add_u32 {va}, {vb}, 2, {va}')
        if phase == 0:
            pre(ld)
            return
        if phase == 1:
            a(f's_branch {chk}')
        a.label(lab)
        a(ld)
        bail(10)
        a('s_waitcnt vmcnt(0)')
        a.label(chk)
        a(f's_mov_b32 {t1}, 0')
        for i in range(8):
            a(f'v_readlane_b32 {t2}, {vb}, {i}')
            a(f's_add_u32 {t1}, {t1}, {t2}')
        a(f's_cmp_lt_u32 {t1}, 256')
        a(f's_cbranch_scc1 {lab}')
        a(f'v_cmp_ne_u32 vcc, {33 if cfg.get("force_fb") else 32}, {vb}')
        a('s_cbranch_vccnz L_fallback')

    def census(va, vb, pre=None, phase=None):
        if phase == 0:
            count(va, vb, pre, 0)
            return
        lab = a.newlabel('cs')
        if phase is None:
            tl(1, va, vb)
        a(f's_cmp_eq_u32 {S["mode"]}, 1')
        a(f's_cbranch_scc1 {lab}')
        count(va, vb, None, phase)
        a.label(lab)
        if phase is None:
            tl(2, va, vb)

    a.label('L_norole')
    count('v1', 'v2')
    a.label('L_fallback')
    a('s_waitcnt vmcnt(0) lgkmcnt(0)')
    a('s_barrier')
    a(f's_mov_b32 {S["mode"]}, 1')
    a('v_mbcnt_lo_u32_b32 v0, -1, 0')
    a('v_mbcnt_hi_u32_b32 v0, -1, v0')
    a(f's_lshl_b32 {t0}, {S["w"]}, 6')
    a(f'v_add_u32 v0, {t0}, v0')
    a(f's_lshr_b32 {j}, s2, 5')
    a(f's_and_b32 {h}, s2, 31')
    a('s_branch L_dispatch')
    for lab, fn in (('L_F', T.gen_F), ('L_KV', T.gen_KV), ('L_QA', T.gen_QA), ('L_G2', T.gen_G2), ('L_G3', T.gen_G3), ('L_G4', T.gen_G4)):
        a.label(lab)
        fn(a, S, cfg, census)
    a.label('L_bail')
    a(f'v_mov_b32 v1, {t0}')
    a('v_mov_b32 v2, 0')
    a(f'global_store_dword v2, v1, {S["dbg"]} offset:{4 * D_BAIL}')
    a.label('L_exit')
    a('s_endpgm')
    a.label('L_R')
    a(f's_cmp_eq_u32 {S["mode"]}, 1')
    a('s_cbranch_scc1 L_R1')
    for fb in range(2):
        if fb:
            a.label('L_R1')
            if cfg.get('nofb'):
                a('s_endpgm')
                break
        S['alloc'] = Regs('s', rfree - (1 if cfg.get('prof') is not None else 0), 102 if cfg.get('prof') is not None else 100)
        c2 = dict(cfg)
        c2['fast'] = not fb
        if fb:
            c2.pop('prof', None)
        gen_R(a, S, c2, census)
    a.check_vcc()
    a.fix_hazards(verbose=cfg.get('verbose', False))
    head = HEAD + f'''; one persistent launch, 256 workgroups = one per CU; roles are listed in the generator notes below
; @launch grid=(256,1,1) block=(256,1,1) lds=163840
.amdgcn_target "amdgcn-amd-amdhsa--gfx950"
.text
.globl {NAME}
.p2align 8
.type {NAME},@function
{NAME}:
'''
    tail = f'''.section .rodata,"a"
.p2align 6
.amdhsa_kernel {NAME}
  .amdhsa_next_free_vgpr 512
  .amdhsa_next_free_sgpr 102
  .amdhsa_accum_offset 256
  .amdhsa_group_segment_fixed_size 0
  .amdhsa_kernarg_size 112
  .amdhsa_user_sgpr_count 2
  .amdhsa_user_sgpr_kernarg_segment_ptr 1
  .amdhsa_system_sgpr_workgroup_id_x 1
.end_amdhsa_kernel
'''
    return head + a.text() + tail


if __name__ == '__main__':
    cfg = json.loads(sys.argv[2]) if len(sys.argv) > 2 else {}
    open(sys.argv[1], 'w').write(build(cfg))
```

```python
import math
import struct
from dsl import R, Regs, Cnt
from layout import *

L_KV = 0
L_AG = 32768
L_QX = 37888
L_RM = 41984
L_KX = 41984
L_OX = 47104
L_RING = 49152
NSLOT = 7
SAFE_T = 30.0

SCALE_LOG2E = (128 ** -0.5) * math.log2(math.e)


def f32hex(x):
    return '0x%08x' % struct.unpack('<I', struct.pack('<f', x))[0]


def lane_addr(a, dst, lane, tmp, fields, sterms=(), const=0, stmp=None):
    first = True
    for lo, nb, mul in fields:
        a(f'v_bfe_u32 {tmp}, {lane}, {lo}, {nb}')
        if first:
            a(f'v_mul_u32_u24 {dst}, {mul}, {tmp}')
            first = False
        else:
            a(f'v_mul_u32_u24 {tmp}, {mul}, {tmp}')
            a(f'v_add_u32 {dst}, {dst}, {tmp}')
    if first:
        a(f'v_mov_b32 {dst}, 0')
    for sreg, mul in sterms:
        a(f's_mul_i32 {stmp}, {sreg}, {mul}')
        a(f'v_add_u32 {dst}, {stmp}, {dst}')
    if const:
        a(f'v_add_u32 {dst}, {const}, {dst}')


def gen_R(a, S, cfg, census=None):
    fb = 0 if cfg.get('fast', True) else 1
    LS, LD = 'L_step%d' % fb, 'L_rdone%d' % fb
    rb = fb * RING_FB
    sWS, sH, sJ, sW, sBud = S['ws'], S['h'], S['j'], S['w'], S['budget']
    sr = S['alloc']
    sWt = sr.alloc('wt', 4)
    (sStep, sTag, sXo, sXi, sXp, sRS, sRS1, sRS2, sRSl, sRSl2, sAG, sAGn, sAGp, sRw, sRn, sRi, sMa, sHB, sEx,
     sImp, sImpV, sM0, sFl, sIsRed, sMb, sXb, sRb, sHi, sLo, sExK, sExV) = [sr.alloc('r%d' % i) for i in range(31)]
    sC = sr.alloc('c', 2)
    sChk = sr.alloc('chk', 2)
    sJm = sr.alloc('jm', 2)
    sLow = R('s', 0, 2)
    sEnd = R('s', sRS1.base, 2)
    assert sRS1.base % 2 == 0 and sRS2.base == sRS1.base + 1
    sT0, sT1, sT2, sT3 = S['t0'], S['t1'], S['t2'], S['t3']
    sTm = sr.alloc('tm', 2)
    sTm2 = sr.alloc('tm2', 2)

    stf = '' if cfg.get('fast', True) else ' sc1'
    ntf = ' nt' if cfg.get('nt', True) else ''

    v = Regs('v', 0, 144)
    (vQr1, vIdx, vL16, vX, vD, vXs, vAGst, vRSst, vRSst1, vQw, vQr, vOw, vKV, vKrd, vVrd, vAdj,
     vWl, vWh, vDum, vRSld, vFa, vFl) = [v.alloc('c%d' % i) for i in range(22)]
    vPo = v.alloc('po', 2)
    vCan = vPo[1]
    vT = v.alloc('t', 4)
    rvB = v.alloc('rvB', 2)
    vSp = v.alloc('spare', 2)
    vVm = v.alloc('vm', 4)
    vOne = v.alloc('one', 4)
    vPm = v.alloc('pm', 4)
    assert vOne.base == vVm.base + 4
    vZ = vPm[1]
    vVm1 = R('v', vVm.base + 2, 4)
    mfL = v.alloc('mfL', 20)
    Bt = v.alloc('Bt', 24)
    mfR = v.alloc('mfR', 20)
    aq = v.alloc('aq', 8)
    ak = v.alloc('ak', 8)
    av = v.alloc('av', 8)
    vx = v.alloc('vx', 8)
    rv = v.alloc('rv', 2)
    kp = v.alloc('kp', 2)
    assert Bt.base == mfL.base + 20 and mfR.base == Bt.base + 24
    vSel = vx[4:8]
    kx = R('v', mfL.base, 32)
    rs = kx
    WoT = kx
    qb = R('v', Bt.base + 12, 16)
    ka = R('v', Bt.base + 28, 16)
    wacc = R('v', qb.base, 20)
    Sx = aq
    Sm = ak[4:8]
    kexp = ak[0:4]
    L = ak[0:4]
    P = av[4:8]
    rl = ak[2:4]
    O = aq
    oa = vx
    red = ak[4:8]

    chunks = [('V', b) for b in range(4)] + [('QL', b) for b in range(3)] + [('KL', b) for b in range(3)] + \
             [('QR', b) for b in range(5)] + [('KR', b) for b in range(5)] + [('WO', b) for b in (1, 2, 3)] + \
             [('V', 4), ('QL', 3), ('QL', 4), ('KL', 3), ('KL', 4), ('WO', 4), ('WO', 0)]
    NCH = len(chunks)
    place = {}
    for ci, ch in enumerate(chunks):
        for t in range(2):
            if ci < NCH - NSLOT:
                i = ci * 2 + t
                place[ch + (t,)] = R('a', i * 8, 8) if i < 32 else R('v', 144 + (i - 32) * 8, 8)
            else:
                place[ch + (t,)] = (ci % NSLOT) * 16384 + t * 2048

    def bail(code):
        lab = a.newlabel('ok')
        a(f's_sub_u32 {sBud}, {sBud}, 1')
        a(f's_cbranch_scc0 {lab}')
        a(f's_mov_b32 {sT0}, {code}')
        a('s_branch L_bail')
        a.label(lab)

    lane = aq[0]
    tmp = aq[1]
    t2, t3 = aq[2], aq[3]
    a(f'v_and_b32 {lane}, 63, v0')
    a(f'v_mov_b32 {vZ}, 0')

    def LA(dst, fields, sterms=(), const=0):
        lane_addr(a, dst, lane, tmp, fields, sterms, const, sT0)
    va = [mfR[i] for i in range(4)]
    vb = [mfR[4 + i] for i in range(4)]
    vra = [mfR[8], mfR[9]]
    vrb = mfR[10]
    vr = mfR[11]
    vc = [mfR[12 + i] for i in range(4)]
    stg = R('v', mfL.base, 16)
    for ip in range(4):
        LA(t2, [(4, 1, 2)], [], ip << 2)
        a(f'v_and_b32 {t3}, 15, {lane}')
        a(f'v_xor_b32 {t2}, {t2}, {t3}')
        LA(va[ip], [(4, 2, 8192)], [(sW, 16 * 8192)], 4 * ip * 8192)
        a(f'v_lshl_add_u32 {va[ip]}, {t2}, 4, {va[ip]}')
        LA(vc[ip], [(4, 2, 8192)], [(sW, 16 * 8192)], (64 * (1 + (ip >> 1)) + 4 * (ip & 1)) * 8192)
        a(f'v_lshl_add_u32 {vc[ip]}, {t2}, 4, {vc[ip]}')
        LA(t2, [(5, 1, 2)], [], 4 * (ip & 1))
        a(f'v_and_b32 {t3}, 7, {lane}')
        a(f'v_xor_b32 {t2}, {t2}, {t3}')
        LA(vb[ip], [(3, 3, 1280)], [(sW, 32 * 1280)], 8 * ip * 1280)
        a(f'v_lshl_add_u32 {vb[ip]}, {t2}, 4, {vb[ip]}')
    rowf = lambda m: [(5, 1, 16 * m), (3, 1, 8 * m), (4, 1, 4 * m), (2, 1, m)]
    LA(t2, [(3, 1, 8), (4, 1, 4), (2, 1, 2)])
    LA(t3, [(1, 1, 1)], [(sW, 4)])
    a(f'v_xor_b32 {t2}, {t2}, {t3}')
    LA(vra[0], rowf(256) + [(0, 1, 8)])
    a(f'v_lshl_add_u32 {vra[0]}, {t2}, 4, {vra[0]}')
    a(f'v_xor_b32 {vra[1]}, 32, {vra[0]}')
    LA(t2, [(3, 1, 4), (4, 1, 2)])
    LA(t3, [(1, 1, 1)], [(sW, 2)])
    a(f'v_xor_b32 {t2}, {t2}, {t3}')
    LA(vrb, rowf(128) + [(0, 1, 8)])
    a(f'v_lshl_add_u32 {vrb}, {t2}, 4, {vrb}')
    sPtr = S['ptrs']
    sAL, sAR, sB0 = sRS, sRS1, sRS2
    a(f's_lshl_b32 {sT1}, {sH}, 8')
    a(f's_mul_i32 {sAL}, {sJ}, {320 * 8192}')
    a(f's_sub_u32 {sAR}, {320 * 8192}, {sAL}')
    a(f's_add_u32 {sAL}, {sAL}, {sT1}')
    a(f's_add_u32 {sAR}, {sAR}, {sT1}')
    a(f's_mul_i32 {sB0}, {sH}, {128 * 1280}')
    a(f's_mul_i32 {sT1}, {sJ}, 640')
    a(f's_add_u32 {sB0}, {sB0}, {sT1}')
    a(f's_lshl_b32 {sM0}, {sW}, 12')
    a(f's_mov_b32 {sWt[2]}, {640 * 4096 * 2}')
    a(f's_mov_b32 {sWt[3]}, 0x20000')
    cur = [None]
    pv = Cnt(a, 'vmcnt', 63)

    def issue(ci):
        kind, b = chunks[ci]
        mi = {'Q': 0, 'K': 1, 'V': 2, 'W': 3}[kind[0]]
        if cur[0] != mi:
            a(f's_mov_b32 {sWt[0]}, {sPtr[2 * mi]}')
            a(f's_and_b32 {sWt[1]}, {sPtr[2 * mi + 1]}, 0xffff')
            cur[0] = mi
        if mi < 3:
            a(f's_add_u32 {sT0}, {sAR if kind[-1] == "R" else sAL}, {(128 * (max(b - 1, 0) >> 1) + 8 * (max(b - 1, 0) & 1)) * 8192}')
        else:
            a(f's_add_u32 {sT0}, {sB0}, {b * 128}')
        for ip in range(4):
            a(f's_add_u32 m0, {sM0}, {L_RING + (ci % NSLOT) * 16384 + ip * 1024}')
            pv.issue(f'buffer_load_dwordx4 {(vb if mi == 3 else vc if b else va)[ip]}, {sWt}, {sT0} offen{ntf} lds', 'c%d' % ci)

    for ci in range(NSLOT - 1):
        issue(ci)
    n0 = len(a.ins)
    real_pv = pv

    class Later:
        def issue(self, text, tag=None):
            a(text)
            a.ins[-1].counted = True
    pv = Later()
    LA(vL16, [(0, 6, 16)])
    LA(vX, [(0, 6, 16)], [(sW, 1024)])
    LA(vD, [(0, 6, 4)], [(sW, 256)], 4096)
    LA(vXs, [(0, 6, 8)], [(sW, 512)])
    a(f'v_and_b32 {t2}, 2, {lane}')
    a(f'v_cmp_ne_u32 vcc, 0, {t2}')
    a(f'v_mov_b32 {t2}, 0x44444444')
    a(f'v_mov_b32 {t3}, 0xeeeeeeee')
    a(f'v_cndmask_b32 {vIdx}, {t2}, {t3}, vcc')
    a(f's_add_u32 {sT1}, {sH}, 16')
    a(f's_cmp_lt_u32 {sH}, 8')
    a(f's_cselect_b32 {sT1}, {sH}, {sT1}')
    a(f's_lshl_b32 {sT2}, {sH}, 1')
    a(f's_add_u32 {sT2}, {sT2}, {sW}')
    a(f's_sub_u32 {sT2}, {sT2}, 40')
    a(f's_cmp_lt_u32 {sH}, 24')
    a(f's_cselect_b32 {sEx}, {sT1}, {sT2}')
    a(f's_cselect_b32 {sT1}, 1, 2')
    a(f's_cmp_lt_u32 {sW}, {sT1}')
    a(f's_cselect_b32 {sIsRed}, 1, 0')
    a(f's_cselect_b32 {sT1}, 0, {OOB}')
    LA(vAGst, [(2, 1, 64), (1, 1, 32), (0, 1, 16), (4, 1, 8), (5, 1, 4)], [(sEx, 128)])
    LA(t3, [(3, 1, 1)], [])
    a(f'v_lshl_add_u32 {t3}, {t3}, 30, {sT1}')
    a(f'v_add_u32 {vAGst}, {t3}, {vAGst}')
    a(f's_lshl_b32 {sEx}, {sEx}, 12')
    LA(vFa, [(4, 1, (F_V - F_K) * 128)])
    a(f'v_mov_b32 {t2}, {(F_O - F_K) * 128}')
    a(f'v_cmp_lt_u32 vcc, 31, {lane}')
    a(f'v_cndmask_b32 {vFa}, {vFa}, {t2}, vcc')
    LA(vAdj, [(5, 1, 8 if census else 64)])
    LA(vCan, [(2, 4, 64)], [(sW, 1024)])
    LA(t3, [(2, 2, 64)], [(sW, 256)], 4096)
    a(f'v_and_b32 {t2}, 50, {lane}')
    a(f'v_cmp_eq_u32 vcc, 50, {t2}')
    a(f'v_cndmask_b32 {vCan}, {vCan}, {t3}, vcc')
    LA(vOw, [(2, 2, 64), (5, 1, 32), (0, 1, 16), (4, 1, 8), (1, 1, 256)], [(sW, 512)], L_OX)
    LA(t2, [(1, 1, 32)])
    a(f'v_xor_b32 {vOw}, {vOw}, {t2}')
    LA(t2, [(4, 1, 32)])
    a(f'v_xor_b32 {vSp[1]}, {t2}, {vL16}')
    a(f's_mov_b32 {sLow[0]}, 0x33333333')
    a(f's_mov_b32 {sLow[1]}, 0x33333333')
    for dst, th, rest in ((vRSst1, ([(5, 1, 1)], [(sW, 2)], 0), [(0, 3, 16), (4, 1, 8), (3, 1, 4)]),
                          (vRSst, ([(3, 1, 8), (5, 1, 1)], [(sW, 2)], 8), [(0, 3, 16), (4, 1, 8)])):
        LA(t2, *th)
        a(f'v_add_u32 {t3}, {sH}, {t2}')
        a(f'v_and_b32 {t3}, 31, {t3}')
        LA(dst, rest)
        a(f'v_lshl_add_u32 {dst}, {t2}, 12, {dst}')
        a(f'v_lshl_add_u32 {dst}, {t3}, 7, {dst}')
    LA(t2, [(4, 2, 1)])
    LA(t3, [(2, 2, 1)])
    a(f'v_xor_b32 {t2}, {t2}, {t3}')
    LA(vQw, [(0, 4, 32)], [(sW, 1024)], L_QX)
    a(f'v_lshl_add_u32 {vQw}, {t2}, 3, {vQw}')
    LA(t2, [(0, 2, 1)])
    LA(t3, [(4, 1, 1)])
    a(f'v_xor_b32 {t2}, {t2}, {t3}')
    LA(vQr, [(5, 1, 512), (4, 1, 128), (2, 2, 32)], [], L_QX)
    a(f'v_lshl_add_u32 {vQr}, {t2}, 3, {vQr}')
    a(f'v_xor_b32 {vQr1}, 16, {vQr}')
    LA(vKV, [(0, 6, 16)], [(sW, 2048)])
    LA(vKrd, [(0, 6, 16)])
    LA(vVrd, [(4, 2, 64), (2, 2, 16), (0, 1, 256), (1, 1, 8)], [(sW, 1024)], 8192)
    LA(vWl, [(0, 6, 16)], [(sW, 4096)], L_RING)
    a(f'v_add_u32 {vWh}, 65536, {vWl}')
    LA(t2, [(0, 6, 16)], [(sW, 1024)], L_QX)
    for i in range(4):
        a(f'v_mov_b32 {ak[i]}, 0')
    a(f'ds_write_b128 {t2}, {ak[0:4]}')
    a('s_waitcnt lgkmcnt(0)')
    a(f's_lshl_b32 {sMa}, {sW}, 10')
    a(f's_lshl_b32 {sMb}, {sW}, 8')
    a(f's_add_u32 {sMb}, {sMb}, 4096')
    for i in range(4):
        a(f'v_mov_b32 {vOne[i]}, 0x3f803f80')
        a(f'v_mov_b32 {vVm[i]}, 0')
        a(f'v_mov_b32 {vPm[i]}, 0')
    a(f'v_mov_b32 {vPo[0]}, {POISON}')
    a(f'v_and_b32 {t2}, 1, {lane}')
    a(f'v_lshlrev_b32 {t2}, 4, {t2}')
    a(f'v_mov_b32 {tmp}, 0x3f80')
    a(f'v_lshlrev_b32 {vSp[0]}, {t2}, {tmp}')
    a(f's_mov_b32 {sC[0]}, {f32hex(SCALE_LOG2E)}')
    a(f's_mov_b32 {sC[1]}, {f32hex(SCALE_LOG2E)}')
    a(f's_mov_b32 {sHi}, {f32hex(2.0 ** cfg.get("safe", SAFE_T))}')
    a(f's_mov_b32 {sLo}, {f32hex(2.0 ** -cfg.get("safe", SAFE_T))}')
    a(f's_lshl_b32 {sHB}, {sH}, 21')
    a(f's_add_u32 {sHB}, {sHB}, {HR}')
    a(f's_lshl_b32 {sFl}, {sH}, 7')
    a(f's_add_u32 {sFl}, {sFl}, {FLG + F_K * 128}')
    a(f's_add_u32 {sXb}, {sHB}, {HR_X + fb * 131072}')
    a(f's_mov_b32 {sRb}, {AGR + rb}')

    setup = a.ins[n0:]
    del a.ins[n0:]
    pv = real_pv
    NSET = 6

    def setup_piece(ci):
        k = -(-len(setup) // (NSET - ci))
        while k < len(setup) and (setup[k].op.startswith('s_cselect') or setup[k].op.startswith('v_cndmask')
                                  or setup[k].op.startswith('s_') or any(r[0] == 's' for r in setup[k].reads)):
            k += 1
        for x in setup[:k]:
            a.ins.append(x)
            if getattr(x, 'counted', False):
                pv.note()
        del setup[:k]
    vPar, vBar, vBa = av[0], av[1], av[2]

    def spin1(load, test, code):
        lab, ok = a.newlabel('w'), a.newlabel('wok')
        a.label(lab)
        a(test)
        a(f's_cbranch_vccz {ok}')
        a(load)
        bail(code)
        a('s_waitcnt vmcnt(0)')
        a(f's_branch {lab}')
        a.label(ok)
    ldpar = f'global_load_dword {vPar}, {vZ}, {S["dbg"]} offset:{4 * (D_PAR + fb)} sc1'
    ldfl = f'buffer_load_dword {vFl}, {vFa}, {sWS}, {sFl} offen sc1'
    ldbar = f'global_load_dword {vBar}, {vZ}, {S["dbg"]} offset:{4 * (D_QBAR + fb)} sc1'

    def extra(ci):
        if ci < NSET:
            setup_piece(ci)
        if ci == 13 and census:
            census(t2, t3, lambda x: pv.issue(x), 0)
            pv.issue(ldpar)
        if ci == 20:
            if census:
                census(t2, t3, None, 1)
                spin1(ldpar, f'v_cmp_eq_u32 vcc, 0, {vPar}', 8)
                a(f'v_readfirstlane_b32 {sT1}, {vPar}')
                a(f's_and_b32 {sT1}, {sT1}, 1')
            else:
                a(f's_mov_b32 {sT1}, {cfg.get("par", 0)}')
            a(f's_lshl_b32 {sT2}, {sT1}, 13')
            a(f's_add_u32 {sRb}, {sRb}, {sT2}')
            a(f's_xor_b32 {sT1}, {sT1}, {sH}')
            a(f's_and_b32 {sT1}, {sT1}, 1')
            a(f's_lshl_b32 {sT1}, {sT1}, 13')
            a(f's_add_u32 {sXb}, {sXb}, {sT1}')
        if ci == 21:
            pv.issue(ldfl)
        if ci == NCH - NSLOT:
            pv.issue(ldbar, 'bar')
        if ci == 28:
            spin1(ldfl, f'v_add_u32 {t2}, {vFl}, {vAdj}\nv_cmp_gt_u32 vcc, 1, {t2}', 1)
            a(f's_lshl_b32 {sM0}, {sW}, 11')
            a(f's_add_u32 {sImpV}, {sHB}, {HR_VX}')
            a(f's_mov_b32 m0, {sM0}')
            pv.issue(f'buffer_load_dwordx4 {vKV}, {sWS}, {sHB} offen sc1 lds')
            pv.issue(f'buffer_load_dwordx4 {vKV}, {sWS}, {sHB} offen offset:1024 sc1 lds')
            a(f's_add_u32 m0, {sM0}, 8192')
            pv.issue(f'buffer_load_dwordx4 {vKV}, {sWS}, {sImpV} offen sc1 lds')
            pv.issue(f'buffer_load_dwordx4 {vKV}, {sWS}, {sImpV} offen offset:1024 sc1 lds')
    for ci in range(NCH):
        pv.wait('c%d' % ci)
        a('s_barrier')
        if ci + NSLOT - 1 < NCH:
            issue(ci + NSLOT - 1)
        extra(ci)
        if cfg.get('tl') and ci in (0, 6, 12, 18, 24):
            a('s_memrealtime vcc')
            a('s_waitcnt lgkmcnt(0)')
            a(f's_lshl_b32 {sT0}, s2, 6')
            a(f's_add_u32 {sT0}, {sT0}, {TIM + 65536 + 4 * (5 + ci // 6)}')
            a(f'v_mov_b32 {vT[0]}, vcc_lo')
            pv.issue(f'buffer_store_dword {vT[0]}, {vZ}, {sWS}, {sT0} offen')
        base = L_RING + (ci % NSLOT) * 16384
        kind, b = chunks[ci]
        res = ci >= NCH - NSLOT
        for t in range(2):
            dst = stg[8 * t:8 * t + 8] if res else place[(kind, b, t)]
            if kind != 'WO':
                a(f'v_add_u32 {vr}, {base}, {vra[t]}')
            elif t == 0:
                a(f'v_add_u32 {vr}, {base}, {vrb}')
            for aa in range(4):
                row = 32 * (aa >> 1) + 2 * (aa & 1)
                off = row * 256 if kind != 'WO' else (64 * t + row) * 128
                a(f'ds_read_b64_tr_b16 {dst[2 * aa:2 * aa + 2]}, {vr} offset:{off}')
        a('s_waitcnt lgkmcnt(0)')
        if res:
            a('s_barrier')
            a(f'v_add_u32 {vr}, {(ci % NSLOT) * 16384}, {vWl}')
            for q in range(4):
                a(f'ds_write_b128 {vr}, {stg[4 * q:4 * q + 4]} offset:{q * 1024}')
            a('s_waitcnt lgkmcnt(0)')
    if 'tl' in S:
        S['tl'](1, vT[0], vT[1])
    a('s_waitcnt vmcnt(0)')
    spin1(ldbar, f'v_cmp_gt_u32 vcc, 32, {vBar}', 2)
    a('s_barrier')
    for i in range(8):
        a(f'v_mov_b32 {aq[i]}, 0')
        a(f'v_mov_b32 {ak[i]}, 0')
        a(f'v_mov_b32 {av[i]}, 0')
    a(f's_mov_b32 {sStep}, -1')
    a(f's_mov_b64 {sChk}, -1')
    a(f's_mov_b32 {sExK}, {OOB}')
    a(f's_cmp_eq_u32 {sJ}, 0')
    a(f's_cselect_b64 {sJm}, 0, -1')

    def step_scalars():
        a(f's_bfe_u32 {sTag}, {sStep}, 0x10001')
        a(f's_and_b32 {sT1}, {sStep}, 3')
        a(f's_lshl_b32 {sT0}, {sJ}, 17')
        a(f's_lshl_b32 {sT3}, {sT1}, 15')
        a(f's_add_u32 {sAG}, {sT0}, {sT3}')
        a(f's_add_u32 {sAG}, {sAG}, {AGB + rb}')
        a(f's_xor_b32 {sAGn}, {sAG}, 65536')
        a(f's_add_u32 {sT0}, {sT0}, {sRb}')
        a(f's_add_u32 {sRw}, {sT0}, {sT3}')
        a(f's_add_u32 {sRn}, {sT3}, 32768')
        a(f's_and_b32 {sRn}, {sRn}, 131071')
        a(f's_add_u32 {sRn}, {sRn}, {sT0}')
        a(f's_lshl_b32 {sT3}, {sT1}, 14')
        a(f's_lshl_b32 {sT0}, {sJ}, 12')
        a(f's_add_u32 {sT0}, {sT0}, {sXb}')
        a(f's_add_u32 {sXo}, {sT0}, {sT3}')
        a(f's_xor_b32 {sXi}, {sXo}, 4096')
        a(f's_xor_b32 {sXp}, {sXo}, 32768')
        a(f's_and_b32 {sT0}, {sStep}, 1')
        a(f's_mul_i32 {sT1}, {sT0}, 163840')
        a(f's_lshl_b32 {sT2}, {sJ}, 19')
        a(f's_add_u32 {sT1}, {sT1}, {sT2}')
        a(f's_add_u32 {sRS}, {sT1}, {RSB + rb}')
        a(f's_add_u32 {sRSl}, {sRS}, {sEx}')
        a(f's_add_u32 {sRSl2}, {sRS}, 65536')
        a(f's_add_u32 {sT1}, {sStep}, 1')
        a(f's_min_u32 {sT1}, {sT1}, 63')
        a(f's_lshl_b32 {sT1}, {sT1}, 13')
        a(f's_add_u32 {sImp}, {sHB}, {sT1}')
        a(f's_add_u32 {sImpV}, {sImp}, {HR_VX}')
        a(f's_bfe_u32 {sT1}, {sStep}, 0x20001')
        a(f's_lshl_b32 {sT1}, {sT1}, 14')
        a(f's_lshl_b32 {sT2}, {sT0}, 12')
        a(f's_add_u32 {sT1}, {sT1}, {sT2}')
        a(f's_lshl_b32 {sT2}, {sJ}, 11')
        a(f's_add_u32 {sT1}, {sT1}, {sT2}')
        a(f's_add_u32 {sT1}, {sT1}, {sXb}')
        a(f's_sub_u32 {sExV}, {sT1}, {HR_X + fb * 131072 - HR_KM}')
        a(f's_cmp_eq_u32 {sStep}, 63')
        a(f's_cselect_b64 {sEnd}, -1, 0')
        a(f's_xor_b32 {sT0}, {sT0}, 1')
        a(f's_lshl_b32 {sT0}, {sT0}, 14')
        a(f's_lshl_b32 {sM0}, {sW}, 11')
        a(f's_add_u32 {sM0}, {sM0}, {sT0}')

    NST = 14
    prof = cfg.get('prof')
    sStm0 = sr.alloc('stm', 2 * (NST - 6), align=2) if prof is not None else None
    stm = [sPtr[2 * i:2 * i + 2] for i in range(4)] + [sWt[0:2], sWt[2:4]] + \
          ([sStm0[2 * i:2 * i + 2] for i in range(NST - 6)] if prof is not None else [])

    S['stm'] = stm

    def stamp(i):
        if prof is not None and not cfg.get('at') and i in cfg.get('only', range(NST)):
            a(f's_memrealtime {stm[i]}' if cfg.get('rt') else f's_memtime {stm[i]}')

    def stamp_out():
        if prof is None:
            return
        lab = a.newlabel('so')
        a(f's_cmp_eq_u32 {sStep}, {prof + 1}')
        a(f's_cbranch_scc0 {lab}')
        a('s_waitcnt lgkmcnt(0)')
        a(f's_lshl_b32 {sT1}, {sJ}, 5')
        a(f's_add_u32 {sT1}, {sT1}, {sH}')
        a(f's_lshl_b32 {sT1}, {sT1}, 2')
        a(f's_add_u32 {sT1}, {sT1}, {sW}')
        a(f's_lshl_b32 {sT1}, {sT1}, 7')
        a(f's_add_u32 {sT1}, {sT1}, {TIM + 32}')
        for i in range(NST):
            a(f'v_mov_b32 {vDum}, {stm[i][0]}')
            a(f'buffer_store_dword {vDum}, {vZ}, {sWS}, {sT1} offen offset:{4 * i}')
        a('s_waitcnt vmcnt(0)')
        a.label(lab)
    sCnt = sr.alloc('cnt', 4, align=1) if cfg.get('timing') else None

    def count(i):
        if cfg.get('timing'):
            a(f's_add_u32 {sCnt[i]}, {sCnt[i]}, 1')
    if 'tl' in S:
        S['tl'](3, vT[0], vT[1])
    step_scalars()
    a(f's_mov_b32 {sAGp}, {sAG}')
    a(f's_xor_b32 {sRi}, {sRw}, 0x20000')
    a(f's_mov_b32 {sExV}, {OOB}')
    if cfg.get('timing'):
        for i in range(4):
            a(f's_mov_b32 {sCnt[i]}, 0')
        a(f's_memtime {sTm}')
        a('s_waitcnt lgkmcnt(0)')
    late = []

    def w1ops(issue, only=None):
        labw, labo = a.newlabel('w1'), a.newlabel('w1ok')
        ops = []
        if not cfg.get('noimp') and only != 'st':
            ops += [lambda: (a(f's_add_u32 {sT1}, {sStep}, 2'), a(f's_min_u32 {sT1}, {sT1}, 64'),
                             a(f'v_add_u32 {vFl}, {vFl}, {vAdj}'), a(f'v_cmp_gt_u32 vcc, {sT1}, {vFl}')),
                    lambda: (a(f's_cbranch_vccnz {labw}'), a.label(labo), a(f's_mov_b32 m0, {sM0}'),
                             issue(f'buffer_load_dwordx4 {vKV}, {sWS}, {sImp} offen sc1 lds')),
                    lambda: (a(f's_mov_b32 m0, {sM0}'),
                             issue(f'buffer_load_dwordx4 {vKV}, {sWS}, {sImp} offen offset:1024 sc1 lds')),
                    lambda: (a(f's_add_u32 m0, {sM0}, 8192'),
                             issue(f'buffer_load_dwordx4 {vKV}, {sWS}, {sImpV} offen sc1 lds')),
                    lambda: (a(f's_add_u32 m0, {sM0}, 8192'),
                             issue(f'buffer_load_dwordx4 {vKV}, {sWS}, {sImpV} offen offset:1024 sc1 lds')),
                    lambda: issue(f'buffer_load_dword {vFl}, {vFa}, {sWS}, {sFl} offen sc1')]
            late.append((labw, labo))
        st = [lambda: issue(f'buffer_store_dwordx2 {vPo}, {vXs}, {sWS}, {sXp} offen sc1'),
              lambda: issue(f'buffer_store_dword {vPo[0]}, {vAGst}, {sWS}, {sRn} offen sc1')]
        if only == 'imp':
            return ops[:-1]
        if only == 'st' and not cfg.get('noimp'):
            st += [lambda: issue(f'buffer_load_dword {vFl}, {vFa}, {sWS}, {sFl} offen sc1')]
        if cfg.get('order') and not only and not cfg.get('noimp'):
            allops = ops + st
            return [allops[i] for i in cfg['order']]
        ops = st + ops if cfg.get('stfirst', 0) else ops + st
        return ops

    def image(src, dst, can, issue=None, half=None):
        issue = issue or a
        if half != 1:
            issue(f'buffer_load_dword {can}, {vCan}, {sWS}, {src} offen sc1')
            a(f's_add_u32 m0, {sMa}, {dst}')
            issue(f'buffer_load_dwordx4 {vX}, {sWS}, {src} offen sc1 lds')
        if half != 0:
            a(f's_add_u32 m0, {sMb}, {dst}')
            issue(f'buffer_load_dword {vD}, {sWS}, {src} offen sc1 lds')
    a(f's_branch L_enter{fb}')

    a.label(LS)
    stamp(0)
    vm = Cnt(a, 'vmcnt', 63)
    ds = Cnt(a, 'lgkmcnt', 15)
    EARLY = cfg.get('early', 0)
    R0 = cfg.get('r0pos')
    if EARLY or R0 is None:
        vm.note('R', 3 if EARLY else 2)
        if EARLY and cfg.get('win', 0) == 1 and not cfg.get('noimp'):
            vm.note('imp', 4)
    for b in range(5):
        ds.note('L%d' % b)

    def emit(x):
        if callable(x):
            x()
        else:
            a(x)

    def warm(n):
        for _ in range(n):
            a(f'v_mov_b32 {vDum}, 0')

    def wl(off):
        return (vWl, off) if off < 65536 else (vWh, off - 65536)

    def fold(x, t):
        return f'v_pk_add_f32 {x[4 * t:4 * t + 2]}, {x[4 * t:4 * t + 2]}, {x[4 * t + 2:4 * t + 4]}'

    def fold2(x, t, d=None):
        d = x[4 * t:4 * t + 2] if d is None else d
        return [f'v_add_f32 {d[i]}, {x[4 * t + i]}, {x[4 * t + 2 + i]}' for i in range(2)]

    acc = {'V': av, 'QL': aq, 'KL': ak, 'QR': aq, 'KR': ak}
    seq = []
    for kind, order in (('V', [(0, 0), (0, 1), (1, 0), (1, 1), (2, 0), (2, 1), (3, 0), (4, 0), (3, 1), (4, 1)]),
                        ('QL', [(0, 0), (0, 1), (3, 0), (1, 0), (3, 1), (1, 1), (4, 0), (2, 0), (2, 1), (4, 1)]),
                        ('KL', [(0, 0), (3, 0), (0, 1), (1, 0), (3, 1), (1, 1), (4, 0), (2, 0), (4, 1), (2, 1)])):
        seq += [(kind, b, t) for b, t in order]
    ldsops = [i for i, o in enumerate(seq) if isinstance(place[o], int)]
    buf = {i: Bt[8 * (k % 3):8 * (k % 3) + 8] for k, i in enumerate(ldsops)}

    def btload(k, half):
        i = ldsops[k]
        base, off = wl(place[seq[i]] + half * 1024)
        ds.issue(f'ds_read_b128 {buf[i][4 * half:4 * half + 4]}, {base} offset:{off}', 'B%d' % i)
    fill = {i: [] for i in range(len(seq))}
    for k in range(3):
        fill[2 * k] += [lambda k=k: btload(k, 0)]
        fill[2 * k + 1] += [lambda k=k: btload(k, 1)]
    for k in range(3, len(ldsops)):
        p = ldsops[k - 3]
        fill[p] += [lambda k=k: btload(k, 0)]
        fill[p + 1] += [lambda k=k: btload(k, 1)]

    def put(lst, start, per):
        for i, x in enumerate(lst):
            fill[start + i // per].append(x)
    put(fold2(av, 0) + fold2(av, 1, av[2:4]) + [f'v_cvt_pk_bf16_f32 {av[4]}, {av[0]}, {av[1]}',
        f'v_cvt_pk_bf16_f32 {av[5]}, {av[2]}, {av[3]}', f'v_max_i32 {av[4]}, {POISON + 1}, {av[4]}',
        lambda: vm.issue(f'buffer_store_dwordx2 {av[4:6]}, {vXs}, {sWS}, {sXo} offen sc1', 'stv')], cfg.get('vpos', 11), cfg.get('vper', 4))
    if not EARLY and R0 is not None:
        fill[R0].append(lambda: image(sRi, L_RM, rv[0], lambda x: vm.issue(x, 'R'), 0))
    if not EARLY:
        fill[1 if R0 is None else R0 + 2].append(lambda: image(sRi, L_RM, None, lambda x: vm.issue(x, 'R'), 1))
    for p in cfg.get('rextra', []):
        fill[p].append(lambda: image(sRi, L_RM, rv[1], lambda x: vm.issue(x, 'R3'), 0))
        fill[p + 2].append(lambda: image(sRi, L_RM, None, lambda x: vm.issue(x, 'R3'), 1))
    rpos = cfg.get('rpos', 27)
    labr, labrj = a.newlabel('rretry'), a.newlabel('rjoin')
    fill[rpos - 2].append(lambda: (vm.wait('R'), a(f'v_cmp_eq_u32 vcc, {vPo[0]}, {rv[0]}')))

    nr3 = []

    def rstage():
        nr3.append(vm.count_after('R3') if 'R3' in vm.ops else None)
        a(f's_cbranch_vccnz {labr}')
        a.label(labrj)
        a('s_barrier')
        stamp(4)
        for b in range(5):
            ds.issue(f'ds_read_b128 {mfR[4 * b:4 * b + 4]}, {vL16} offset:{L_RM + 1024 * b}', 'R%d' % b)
    fill[rpos].append(rstage)
    EXI = cfg.get('exi', 1) and not cfg.get('noexp')
    expo = [f'v_cndmask_b32 {vT[0]}, {kp[0]}, {vVm[0]}, {sJm}', f'v_cndmask_b32 {vT[1]}, {kp[1]}, {vVm[2]}, {sJm}',
            f'v_max_i32 {vT[0]}, {POISON + 1}, {vT[0]}']
    if not EXI:
        for i, x in enumerate(expo):
            fill[20 + i].append(x)
    WIN = cfg.get('win', 0)
    late_w1 = w1ops(vm.issue, 'st' if WIN else None)
    for p in cfg.get('w1at', [] if WIN else [2, 4, 8]):
        if late_w1:
            fill[p].append(late_w1.pop(0))
    for i, o in enumerate(seq):
        kind, b, t = o
        if kind == 'V':
            ds.wait('L%d' % b)
        if i in buf:
            ds.wait('B%d' % i)
        a(f'v_smfmac_f32_16x16x64_bf16 {acc[kind][4 * t:4 * t + 4]}, {mfL[4 * b:4 * b + 4]}, {buf.get(i, place[o])}, {vIdx}')
        for x in fill[i]:
            emit(x)
        if i == 9:
            stamp(1)
        if i == 19:
            stamp(2)
    stamp(3)
    kq = [('KR', b, t) for b in range(5) for t in range(2)]

    def smf(o, src=mfR):
        kind, b, t = o
        a(f'v_smfmac_f32_16x16x64_bf16 {acc[kind][4 * t:4 * t + 4]}, {src[4 * b:4 * b + 4]}, {place[o]}, {vIdx}')
    ldv = f'buffer_load_dwordx2 {rv}, {vXs}, {sWS}, {sXi} offen sc1'
    ldv2 = f'buffer_load_dwordx2 {rvB}, {vXs}, {sWS}, {sXi} offen sc1'
    kfill = [lambda i=i: ds.issue(f'ds_read_b128 {kx[4 * i:4 * i + 4]}, {vKrd} offset:{1024 * i}', 'kx') for i in range(8)] + \
            [lambda t=t: [ds.issue(f'ds_read_b64_tr_b16 {vx[4 * t + 2 * T:4 * t + 2 * T + 2]}, {vVrd} offset:{4096 * T + 512 * t}', 'vx')
                          for T in range(2)] for t in range(2)]
    for b in range(5):
        ds.wait('R%d' % b)
        smf(('QR', b, 0))
        emit(kfill.pop(0))
        smf(('QR', b, 1))
        emit(kfill.pop(0))
        if b < 4:
            for _ in range(cfg.get('kint', 0)):
                if kq[0][1] <= b:
                    smf(kq.pop(0))
        if b == cfg.get('ldvpos', 3):
            vm.issue(ldv, 'ldv')
        if b == cfg.get('ldvpos2', 5):
            vm.issue(ldv2, 'ldv2')
        if late_w1 and b in cfg.get('w1q', []):
            emit(late_w1.pop(0))
    stamp(5)
    qep = fold2(aq, 0) + fold2(aq, 1) + [f'v_cvt_pk_bf16_f32 {aq[0]}, {aq[0]}, {aq[1]}', f'v_cvt_pk_bf16_f32 {aq[1]}, {aq[4]}, {aq[5]}']
    kep = fold2(ak, 0) + fold2(ak, 1) + \
        [f'v_cvt_pk_bf16_f32 {kp[0]}, {ak[0]}, {ak[1]}', f'v_cvt_pk_bf16_f32 {kp[1]}, {ak[4]}, {ak[5]}']

    def smx(t, u):
        c = '0' if u == 0 else str(Sx[4 * t:4 * t + 4])
        a(f'v_mfma_f32_16x16x32_bf16 {Sx[4 * t:4 * t + 4]}, {kx[(t * 4 + u) * 4:(t * 4 + u) * 4 + 4]}, {qb[4 * u:4 * u + 4]}, {c}')

    def smm(u):
        c = '0' if u == 0 else str(Sm)
        a(f'v_mfma_f32_16x16x32_bf16 {Sm}, {ka[4 * u:4 * u + 4]}, {qb[4 * u:4 * u + 4]}, {c}')

    def qread(u):
        for aa in range(2):
            ds.issue(f'ds_read_b64_tr_b16 {qb[4 * u + 2 * aa:4 * u + 2 * aa + 2]}, {(vQr, vQr1)[aa]} offset:{u * 1024 + aa * 256}', 'q%d' % u)

    def kread(u):
        for aa in range(2):
            ds.issue(f'ds_read_b64_tr_b16 {ka[4 * u + 2 * aa:4 * u + 2 * aa + 2]}, {(vQr, vQr1)[aa]} offset:{4096 + u * 1024 + aa * 256}', 'k%d' % u)

    def wot1(i):
        b, bb = ((4, 0), (4, 1), (0, 0), (0, 1))[i // 2]
        base, off = wl(place[('WO', b, bb)] + (i & 1) * 1024)
        ds.issue(f'ds_read_b128 {WoT[4 * i:4 * i + 4]}, {base} offset:{off}', 'wo%d' % (i // 2))

    def knext(pad=None):
        if kq:
            smf(kq.pop(0))
        elif pad:
            warm(pad)
    knext()
    if late_w1:
        emit(late_w1.pop(0))
    knext()
    for x in qep:
        a(x)
    ds.issue(f'ds_write2_b32 {vQw}, {aq[0]}, {aq[1]} offset0:0 offset1:128', 'qw')
    knext(4)
    if cfg.get('ldvpos2', 5) == 5:
        vm.issue(ldv2, 'ldv2')
    knext(4)
    if not cfg.get('noimp'):
        a(f'v_xor_b32 {vKrd}, 16384, {vKrd}')
    if not EXI and not cfg.get('noexp'):
        vm.issue(f'buffer_store_dwordx2 {vT[0:2]}, {vXs}, {sWS}, {sExK} offen sc1')
    knext(4)
    if late_w1:
        emit(late_w1.pop(0))
    knext(4)
    if not cfg.get('noimp'):
        a(f'v_xor_b32 {vVrd}, 16384, {vVrd}')
    while len(kq) > cfg.get('kleft', 4):
        knext()
    vm.wait('R3')
    ds.wait('qw')
    a('s_barrier')
    assert not any(o[1] == 0 for o in kq)
    for u in range(4):
        qread(u)
        knext(3)
        if u == 2 and late_w1:
            emit(late_w1.pop(0))
    assert not kq
    stamp(6)
    e0 = [f'v_exp_f32 {Sx[i]}, {Sx[i]}' for i in range(4)] + \
         [f'v_cvt_pk_bf16_f32 {P[0]}, {Sx[0]}, {Sx[1]}', f'v_cvt_pk_bf16_f32 {P[1]}, {Sx[2]}, {Sx[3]}']
    e1 = [f'v_exp_f32 {Sx[i]}, {Sx[i]}' for i in range(4, 8)] + \
         [f'v_cvt_pk_bf16_f32 {P[2]}, {Sx[4]}, {Sx[5]}', f'v_cvt_pk_bf16_f32 {P[3]}, {Sx[6]}, {Sx[7]}']
    for u in range(4):
        if u in (0, 2):
            ds.wait('q%d' % (u + 1))
        smx(0, u)
        if u == 1 and late_w1:
            emit(late_w1.pop(0))
        if u >= 2:
            for x in kep[3 * u - 6:3 * u - 3]:
                a(x)
    ds.issue(f'ds_write2st64_b32 {vQw}, {kp[0]}, {kp[1]} offset0:16 offset1:18', 'kw')
    NX = cfg.get('nx1', 2)
    for u in range(NX):
        smx(1, u)
    while late_w1:
        emit(late_w1.pop(0))
    for x in e0:
        a(x)
    ds.wait('kw')
    a('s_barrier')
    for u in range(4):
        kread(u)
        if u + NX < 4:
            smx(1, u + NX)
    labv, labvr = a.newlabel('v'), a.newlabel('vretry')
    nv2 = vm.count_after('ldv2')

    def vtake():
        vm.wait('ldv')
        a.label(labv)
        a(f'v_cmp_eq_u32 vcc, {vPo[0]}, {rv[0]}')
        a(f'v_lshlrev_b32 {vT[0]}, 16, {rv[0]}')
        a(f'v_and_b32 {vT[1]}, 0xffff0000, {rv[0]}')
        a(f'v_lshlrev_b32 {vT[2]}, 16, {rv[1]}')
        a(f'v_and_b32 {vT[3]}, 0xffff0000, {rv[1]}')
        a(f's_cbranch_vccnz {labvr}')
        stamp(8)
    vfin = [f'v_add_f32 {vT[i]}, {vT[i]}, {av[i]}' for i in range(4)] + \
        [f'v_cvt_pk_bf16_f32 {vVm[0]}, {vT[0]}, {vT[1]}', f'v_cvt_pk_bf16_f32 {vVm[2]}, {vT[2]}, {vT[3]}']
    VE = cfg.get('vearly', 1)
    for u in range(4):
        if u in (0, 2):
            ds.wait('k%d' % (u + 1))
        smm(u)
        if u:
            a(e1[u - 1])
    a(e1[3])
    a(e1[4])
    a(e1[5])
    stamp(7)
    if VE:
        vtake()
    a(f'v_mfma_f32_16x16x32_bf16 {O[0:4]}, {vx[0:4]}, {P}, 0')
    sm = [f'v_mul_f32 {Sm[0]}, {sC[0]}, {Sm[0]}', f'v_mul_f32 {Sm[1]}, {sC[0]}, {Sm[1]}', f'v_exp_f32 {Sm[0]}, {Sm[0]}',
          f'v_exp_f32 {Sm[1]}, {Sm[1]}', f'v_cvt_pk_bf16_f32 {vPm[0]}, {Sm[0]}, {Sm[1]}']
    if VE:
        a(sm[0])
        a(sm[1])
        a(f'v_mfma_f32_16x16x32_bf16 {O[4:8]}, {vx[4:8]}, {P}, 0')
        a(sm[2])
        a(f'v_mfma_f32_16x16x32_bf16 {L}, {P}, {vOne}, 0')
        for x in sm[3:4] + [vfin[0], vfin[1], vfin[4], sm[4], vfin[2], vfin[3], vfin[5]]:
            a(x)
    else:
        a(f'v_mfma_f32_16x16x32_bf16 {O[4:8]}, {vx[4:8]}, {P}, 0')
        a(f'v_mfma_f32_16x16x32_bf16 {L}, {P}, {vOne}, 0')
        vtake()
        for x in sm[:4] + vfin[:4] + sm[4:] + vfin[4:]:
            a(x)
    labs, labj = a.newlabel('slowsm'), a.newlabel('smjoin')
    a.label(labj)
    zB = R('v', vPm.base + 2, 4)
    a(f'v_mfma_f32_16x16x32_bf16 {O[0:4]}, {vVm}, {vPm}, {O[0:4]}')
    a(f's_mov_b64 vcc, {sLow}')
    a(f'v_mfma_f32_16x16x32_bf16 {O[4:8]}, {vVm1}, {vPm}, {O[4:8]}')
    a(f'v_mfma_f32_16x16x32_bf16 {L}, {vPm}, {vOne}, {L}')
    if EXI:
        for x in expo[:2]:
            a(x)
    a(f'v_cvt_pk_bf16_f32 {O[0]}, {O[0]}, {O[1]}')
    a(f'v_cvt_pk_bf16_f32 {O[1]}, {O[2]}, {O[3]}')
    a(f'v_cvt_pk_bf16_f32 {O[2]}, {O[4]}, {O[5]}')
    a(f'v_cvt_pk_bf16_f32 {O[3]}, {O[6]}, {O[7]}')
    a(f'v_mfma_f32_16x16x32_bf16 {wacc[16:20]}, {vPm}, {zB}, 0')
    for i in range(2):
        a(f'v_cndmask_b32_dpp {O[i]}, {O[2 + i]}, {O[i]}, vcc quad_perm:[0,1,0,1] row_mask:0xf bank_mask:0xf')
    ds.issue(f'ds_write_b64 {vOw}, {O[0:2]}', 'ow')
    stamp(9)
    a(f'v_mfma_f32_32x32x16_bf16 {wacc[0:16]}, {vPm}, {zB}, 0')
    if EXI:
        a(expo[2])
        a(f'buffer_store_dwordx2 {vT[0:2]}, {vXs}, {sWS}, {sExV} offen sc1')
    a(f'v_max_f32 {vT[2]}, {L[0]}, {L[1]}')
    a(f'v_min_f32 {vT[3]}, {L[0]}, {L[1]}')
    a(f'v_cmp_nge_f32 vcc, {sHi}, {vT[2]}')
    a(f'v_cmp_nle_f32 {sTm2}, {sLo}, {vT[3]}')

    def idle():
        a(f'v_mfma_f32_16x16x32_bf16 {Sm}, {vOne}, {vOne}, {Sm}')
    for _ in range(cfg.get('idle1', 1)):
        idle()
    ds.wait('ow')
    a('s_barrier')
    ds.issue(f'ds_read_b128 {oa[0:4]}, {vSp[1]} offset:{L_OX}', 'o0')
    ds.issue(f'ds_read_b128 {oa[4:8]}, {vSp[1]} offset:{L_OX + 1024}', 'o1')
    a(f'v_rcp_f32 {rl[0]}, {L[0]}')
    a(f's_or_b64 vcc, vcc, {sTm2}')
    a(f's_and_b64 vcc, vcc, {sChk}')
    a(f'v_rcp_f32 {rl[1]}, {L[1]}')
    a(f's_or_b64 vcc, vcc, {sEnd}')
    idle()
    a(f's_cbranch_vccnz {labs}')
    wn = cfg.get('idle2', 2)
    for i in range(wn):
        if i < cfg.get('idle3', 1):
            idle()
        wot1(i)
    a(f's_mov_b64 {sChk}, -1')
    stamp(10)

    W = [wacc[4 * b:4 * b + 4] for b in range(5)]

    def fin(b, dst, packed=False):
        if packed:
            return [fold(W[b], 0), f'v_pk_mul_f32 {W[b][0:2]}, {W[b][0:2]}, {rl}', f'v_cvt_pk_bf16_f32 {dst}, {W[b][0]}, {W[b][1]}']
        return fold2(W[b], 0) + [f'v_mul_f32 {W[b][i]}, {W[b][i]}, {rl[i]}' for i in range(2)] + \
            [f'v_cvt_pk_bf16_f32 {dst}, {W[b][0]}, {W[b][1]}']

    def tag(x):
        return f'v_and_or_b32 {x}, {x}, -2, {sTag}'
    fw = {k: [] for k in range(10)}
    e = fin(1, vT[0]) + [tag(vT[0])] + fin(2, vT[1]) + [f'buffer_store_dwordx2 {vT[0:2]}, {vRSst}, {sWS}, {sRS} offen{stf}'] + \
        fin(3, vT[2]) + [tag(vT[2])]
    rest = [lambda i=i: wot1(i) for i in range(wn, 8)]
    for k in range(4):
        fw[k] = rest[:2 if k >= 2 else 1]
        rest = rest[len(fw[k]):]
    assert not rest
    for k, n in ((3, 1), (4, 2), (5, 3), (6, 3), (7, 3), (8, 3), (9, 3)):
        fw[k] += e[:n]
        e = e[n:]
    tail = e + fin(4, vT[3]) + [f'buffer_store_dwordx2 {vT[2:4]}, {vRSst}, {sWS}, {sRSl2} offen{stf}'] + \
        fin(0, vT[0], True) + [tag(vT[0]), f'buffer_store_dword {vT[0]}, {vRSst1}, {sWS}, {sRS} offen{stf}']
    k = 0
    for b in (1, 2, 3, 4, 0):
        for bb in range(2):
            ds.wait('o%d' % bb)
            wop = place[('WO', b, bb)] if b in (1, 2, 3) else WoT[8 * (2 * (b == 0) + bb):8 * (2 * (b == 0) + bb) + 8]
            if b in (4, 0):
                ds.wait('wo%d' % (2 * (b == 0) + bb))
            a(f'v_smfmac_f32_16x16x64_bf16 {W[b]}, {oa[4 * bb:4 * bb + 4]}, {wop}, {vIdx}')
            for x in fw[k]:
                emit(x)
            k += 1
    for x in tail:
        a(x)
    stamp(11)
    ND = cfg.get('rsdepth', 2)
    labl, labd, labn = a.newlabel('rsl'), a.newlabel('rsd'), a.newlabel('nored')
    a(f's_mov_b32 {sAGp}, {sAG}')
    a(f's_xor_b32 {sRi}, {sRw}, 0x20000')
    zs = [f'v_mov_b32 {x[i]}, 0' for x in (av, aq) for i in range(8)] + [f'v_mov_b32 {ak[i]}, 0' for i in range(4)]

    big = R('v', mfL.base, 64)
    sets = [big[16 * i:16 * i + 16] for i in range(ND)]
    cans = [vx[0], vx[1], vx[2], vx[3]]
    mk = []
    for i in range(4):
        m8 = 3 << (2 * i)
        m32 = m8 * 0x01010101
        mk += [f's_mov_b32 vcc_lo, {m32:#x}', f's_mov_b32 vcc_hi, {m32:#x}', f'v_cndmask_b32 {vSel[i]}, {vZ}, {vSp[0]}, vcc']

    def rsload(i):
        for jj in range(4):
            a(f'buffer_load_dwordx4 {sets[i][4 * jj:4 * jj + 4]}, {vL16}, {sWS}, {sRSl} offen offset:{jj * 1024} sc1')
    nz0 = cfg.get('rsdelay', 20)
    for x in zs[:nz0]:
        a(x)
    labz = a.newlabel('zrest')
    a(f's_cmp_eq_u32 {sIsRed}, 0')
    a(f's_cbranch_scc1 {labz}')
    for x in mk:
        a(x)
    warm(max(0, nz0 - len(zs) - len(mk)))
    for i in range(ND - 1):
        rsload(i)
        g = cfg.get('rsgap', 12)
        for x in zs[nz0:][:g]:
            a(x)
        warm(g - len(zs[nz0:][:g]))
        nz0 += g
    for x in zs[nz0:]:
        a(x)

    def fin_red():
        a(f'v_permlane32_swap_b32 {red[0]}, {red[2]}')
        a(f'v_permlane32_swap_b32 {red[1]}, {red[3]}')
        a(f'v_pk_add_f32 {red[0:2]}, {red[0:2]}, {red[2:4]}')
        a(f'v_cvt_pk_bf16_f32 {vT[2]}, {red[0]}, {red[1]}')
        a(f'v_max_i32 {vT[2]}, {POISON + 1}, {vT[2]}')
    a.label(labl)
    for i in range(ND):
        rsload((i + ND - 1) % ND)
        d = sets[i]
        for jj in range(4):
            a(f's_waitcnt vmcnt({4 * ND - 1 - jj})')
            a(f'v_mfma_f32_16x16x32_bf16 {red}, {d[4 * jj:4 * jj + 4]}, {vSel}, {"0" if jj == 0 else red}')
            if jj == 1:
                a(f'v_bitop3_b32 {vT[0]}, {d[0]}, {d[4]}, {sTag} bitop3:0x7e')
            if jj == 3:
                a(f'v_bitop3_b32 {vT[1]}, {d[8]}, {d[12]}, {sTag} bitop3:0x7e')
        a(f'v_bitop3_b32 {vT[0]}, {vT[0]}, {vT[1]}, 1 bitop3:0xa8')
        a(f'v_cmp_ne_u32 vcc, 0, {vT[0]}')
        count(0)
        if cfg.get('rsspec', 0):
            fin_red()
        a(f's_cbranch_vccz {labd}')
    bail(4)
    a(f's_branch {labl}')
    a.label(labd)
    if not cfg.get('rsspec', 0):
        fin_red()
    PUB = cfg.get('pub', 0)
    if not PUB:
        a(f'buffer_store_dword {vT[2]}, {vAGst}, {sWS}, {sRw} offen sc1')
    a(f'buffer_store_dword {vT[2]}, {vAGst}, {sWS}, {sAG} offen{stf}')
    a(f'buffer_store_dword {vPo[0]}, {vAGst}, {sWS}, {sAGn} offen{stf}')
    a.label(labn)
    a('s_barrier')
    stamp(12)
    a.label('L_enter%d' % fb)
    for i in range(4, 8):
        a(f'v_mov_b32 {ak[i]}, 0')
    marks = []
    n0 = len(a.ins)
    a(f's_add_u32 {sStep}, {sStep}, 1')
    a(f's_mov_b32 {sExK}, {sExV}')
    step_scalars()
    sc = a.ins[n0:]
    del a.ins[n0:]
    k = min(cfg.get('cut', 40), len(sc))
    while k < len(sc) and sc[k].op.startswith('s_cselect'):
        k += 1
    a.ins += sc[:k]
    warm(cfg.get('cutwarm', 12))
    image(sAGp, L_AG, vx[0])
    a.ins += sc[k:]
    nafter = 0
    NATT = cfg.get('natt', 1)
    if NATT == 2:
        warm(cfg.get('attgap', 0))
        image(sAGp, L_AG, vx[1])
        nafter += 3
    if PUB:
        a(f's_xor_b32 {sT3}, {sRi}, 0x20000')
        a('s_barrier')
        a(f'buffer_store_dword {vT[2]}, {vAGst}, {sWS}, {sT3} offen sc1')
        nafter += 1
    if EARLY or WIN:
        warm(cfg.get('rwarm', 0))
        a('s_barrier')
    if EARLY and WIN != 2:
        image(sRi, L_RM, rv[0])
        nafter += 3
    if WIN and not cfg.get('noimp'):
        for op in w1ops(a, 'imp'):
            op()
        nafter += 4
    if EARLY and WIN == 2:
        image(sRi, L_RM, rv[0])
        nafter += 3
    labk, labsp = a.newlabel('lok'), a.newlabel('lspin')
    a(f's_waitcnt vmcnt({nafter})')
    a(f'v_cmp_eq_u32 vcc, {vPo[0]}, {vx[0]}')
    a(f's_cbranch_vccnz {labsp}')
    a.label(labk)
    a('s_barrier')
    stamp(13)
    for b in range(5):
        a(f'ds_read_b128 {mfL[4 * b:4 * b + 4]}, {vL16} offset:{L_AG + 1024 * b}')
    if not EARLY and R0 is None:
        image(sRi, L_RM, rv[0], None, 0)
    stamp_out()
    a(f's_branch {LS}')
    a.label(labz)
    for x in zs[cfg.get('rsdelay', 20):]:
        a(x)
    a(f's_branch {labn}')

    def spin(lab, back, src, dst, cans, code, cnt, first, after=None, pre=None):
        a.label(lab)
        lp, out = a.newlabel('sp'), a.newlabel('spo')
        if pre is not None:
            a(f's_waitcnt vmcnt({pre})')
            a(f'v_cmp_eq_u32 vcc, {vPo[0]}, {cans[1]}')
            a(f's_cbranch_vccz {back}')
        if first:
            image(src, dst, cans[1])
        a.label(lp)
        for i in (1, 0):
            count(cnt)
            image(src, dst, cans[1 - i])
            a('s_waitcnt vmcnt(3)')
            a(f'v_cmp_eq_u32 vcc, {vPo[0]}, {cans[i]}')
            a(f's_cbranch_vccz {out}')
        bail(code)
        a(f's_branch {lp}')
        a.label(out)
        if after:
            a(after)
        a(f's_branch {back}')
    NR3 = nr3[0]
    spin(labsp, labk, sAGp, L_AG, [vx[0], vx[1]], 5, 3, True, None, nafter - 3 if NATT == 2 else None)
    spin(labr, labrj, sRi, L_RM, [rv[0], rv[1]], 6, 1, True, 's_waitcnt vmcnt(0)', NR3)

    for labw, labo in late:
        a.label(labw)
        a(f'buffer_load_dword {vFl}, {vFa}, {sWS}, {sFl} offen sc1')
        bail(3)
        a('s_waitcnt vmcnt(0)')
        a(f'v_add_u32 {vFl}, {vFl}, {vAdj}')
        a(f'v_cmp_gt_u32 vcc, {sT1}, {vFl}')
        a(f's_cbranch_vccnz {labw}')
        a(f's_branch {labo}')
    a.label(labvr)
    labv2 = a.newlabel('vr2')
    a(f's_waitcnt vmcnt({nv2})')
    a(f'v_mov_b32 {rv[0]}, {rvB[0]}')
    a(f'v_mov_b32 {rv[1]}, {rvB[1]}')
    a(f'v_cmp_eq_u32 vcc, {vPo[0]}, {rvB[0]}')
    a(f's_cbranch_vccz {labv}')
    a.label(labv2)
    a(ldv)
    bail(7)
    count(2)
    a('s_waitcnt vmcnt(0)')
    a(f'v_cmp_eq_u32 vcc, {vPo[0]}, {rv[0]}')
    a(f's_cbranch_vccnz {labv2}')
    a(f's_branch {labv}')
    a.label(labs)
    a(f's_cmp_eq_u32 {sStep}, 63')
    a(f's_cbranch_scc1 {LD}')
    count(3)
    a(f's_mov_b64 {sChk}, 0')
    a('s_waitcnt lgkmcnt(0)')
    a('s_barrier')
    a(f'v_xor_b32 {vT[2]}, 16384, {vKrd}' if not cfg.get('noimp') else f'v_mov_b32 {vT[2]}, {vKrd}')
    a(f'v_xor_b32 {vT[3]}, 16384, {vVrd}' if not cfg.get('noimp') else f'v_mov_b32 {vT[3]}, {vVrd}')
    for i in range(8):
        a(f'ds_read_b128 {kx[4 * i:4 * i + 4]}, {vT[2]} offset:{1024 * i}')
    for t in range(2):
        for T in range(2):
            a(f'ds_read_b64_tr_b16 {vx[4 * t + 2 * T:4 * t + 2 * T + 2]}, {vT[3]} offset:{4096 * T + 512 * t}')
    a('s_waitcnt lgkmcnt(0)')
    for u in range(4):
        qread(u)
        kread(u)
        a('s_waitcnt lgkmcnt(0)')
    for t in range(2):
        for u in range(4):
            smx(t, u)
    for u in range(4):
        smm(u)
    vals = [Sx[i] for i in range(8)] + [Sm[0], Sm[1]]
    a(f'v_mul_f32 {Sm[0]}, {sC[0]}, {Sm[0]}')
    a(f'v_mul_f32 {Sm[1]}, {sC[0]}, {Sm[1]}')
    m = vT[2]
    a(f'v_max3_f32 {m}, {vals[0]}, {vals[1]}, {vals[2]}')
    for i in range(3, 9, 2):
        a(f'v_max3_f32 {m}, {m}, {vals[i]}, {vals[i + 1]}')
    a(f'v_max_f32 {m}, {m}, {vals[9]}')
    a(f'v_mov_b32 {vT[3]}, {m}')
    a(f'v_permlane32_swap_b32 {vT[3]}, {m}')
    a(f'v_max_f32 {m}, {m}, {vT[3]}')
    a(f'v_mov_b32 {vT[3]}, {m}')
    a(f'v_permlane16_swap_b32 {vT[3]}, {m}')
    a(f'v_max_f32 {m}, {m}, {vT[3]}')
    for x in vals:
        a(f'v_sub_f32 {x}, {x}, {m}')
        a(f'v_exp_f32 {x}, {x}')
    for k in range(4):
        a(f'v_cvt_pk_bf16_f32 {P[k]}, {Sx[2 * k]}, {Sx[2 * k + 1]}')
    a(f'v_cvt_pk_bf16_f32 {vPm[0]}, {Sm[0]}, {Sm[1]}')
    a(f'v_mfma_f32_16x16x32_bf16 {O[0:4]}, {vx[0:4]}, {P}, 0')
    a(f'v_mfma_f32_16x16x32_bf16 {O[4:8]}, {vx[4:8]}, {P}, 0')
    a(f'v_mfma_f32_16x16x32_bf16 {L}, {P}, {vOne}, 0')
    a(f's_branch {labj}')
    a.label(LD)
    if not EXI and not cfg.get('noexp'):
        for x in expo:
            a(x)
        a(f'buffer_store_dwordx2 {vT[0:2]}, {vXs}, {sWS}, {sExV} offen sc1')
    if cfg.get('timing'):
        a(f's_memtime {sTm2}')
        a('s_waitcnt lgkmcnt(0)')
        a(f's_sub_u32 {sT0}, {sTm2[0]}, {sTm[0]}')
        a(f's_lshl_b32 {sT1}, {sJ}, 5')
        a(f's_add_u32 {sT1}, {sT1}, {sH}')
        a(f's_lshl_b32 {sT1}, {sT1}, 2')
        a(f's_add_u32 {sT1}, {sT1}, {sW}')
        a(f's_lshl_b32 {sT1}, {sT1}, 7')
        a(f's_add_u32 {sT1}, {sT1}, {TIM}')
        outs = [sT0, sBud] + [sCnt[i] for i in range(4)]
        for i, x in enumerate(outs):
            a(f'v_mov_b32 {vT[0]}, {x}')
            a(f'buffer_store_dword {vT[0]}, {vZ}, {sWS}, {sT1} offen offset:{4 * i}')
    if 'tl' in S:
        S['tl'](4, vT[0], vT[1])
    a('s_endpgm')
```

```python
import math
from dsl import R, Regs, Cnt
from layout import *
from role_r2 import lane_addr, f32hex, SCALE_LOG2E

MF32 = 'v_mfma_f32_32x32x16_bf16'
MF16 = 'v_mfma_f32_16x16x32_bf16'
LOG2E = math.log2(math.e)


class Ctx:
    def __init__(self, a, S, cfg, name):
        self.a, self.S, self.cfg, self.name = a, S, cfg, name
        self.sr = Regs('s', S['free'], 102)
        self.v = Regs('v', 1, 256)
        self.lane = self.v.alloc('lane')
        self.tmp = self.v.alloc('tmp')
        self.vZ = self.v.alloc('z')
        self.vLin = self.v.alloc('lin')
        self.t = self.v.alloc('t', 4)
        a(f'v_and_b32 {self.lane}, 63, v0')
        a(f'v_mov_b32 {self.vZ}, 0')
        a(f'v_lshlrev_b32 {self.vLin}, 4, {self.lane}')

    def LA(self, dst, fields, sterms=(), const=0):
        lane_addr(self.a, dst, self.lane, self.tmp, fields, sterms, const, self.S['t0'])

    def bail(self, code):
        a, S = self.a, self.S
        lab = a.newlabel('ok')
        a(f's_sub_u32 {S["budget"]}, {S["budget"]}, 1')
        a(f's_cbranch_scc0 {lab}')
        a(f's_mov_b32 {S["t0"]}, {code}')
        a('s_branch L_bail')
        a.label(lab)

    def srd(self, dst, ptr, nbytes):
        a = self.a
        a(f's_mov_b32 {dst[0]}, {ptr[0]}')
        a(f's_and_b32 {dst[1]}, {ptr[1]}, 0xffff')
        a(f's_mov_b32 {dst[2]}, {nbytes}')
        a(f's_mov_b32 {dst[3]}, 0x20000')

    def own_word(self, dst, line_sreg, base_line):
        a, S = self.a, self.S
        self.LA(dst, [], [(line_sreg, 128)], FLG + base_line * 128)
        a(f'v_mov_b32 {self.t[0]}, {OOB}')
        a('v_cmp_eq_u32 vcc, 0, v0')
        a(f'v_cndmask_b32 {dst}, {self.t[0]}, {dst}, vcc')

    def spin_flags(self, vFl, vFo, sFo, sNeed, code):
        a = self.a
        lab = a.newlabel('fl')
        a.label(lab)
        a(f'buffer_load_dword {vFl}, {vFo}, {self.S["ws"]}, {sFo} offen sc1')
        self.bail(code)
        a('s_waitcnt vmcnt(0)')
        a(f'v_cmp_gt_u32 vcc, {sNeed}, {vFl}')
        a(f's_cbranch_vccnz {lab}')

    def parity(self, dst, sHead):
        a, S = self.a, self.S
        lab = a.newlabel('par')
        a(f's_lshl_b32 {dst}, {S["mode"]}, 2')
        a(f'v_mov_b32 {self.t[2]}, {dst}')
        a.label(lab)
        a(f'global_load_dword {self.t[1]}, {self.t[2]}, {S["dbg"]} offset:{4 * D_PAR} sc1')
        self.bail(32)
        a('s_waitcnt vmcnt(0)')
        a(f'v_readfirstlane_b32 {dst}, {self.t[1]}')
        a(f's_cmp_eq_u32 {dst}, 0')
        a(f's_cbranch_scc1 {lab}')
        a(f's_xor_b32 {dst}, {dst}, {sHead}')
        a(f's_and_b32 {dst}, {dst}, 1')
        a(f's_lshl_b32 {dst}, {dst}, 13')

    def hold(self, census, seg):
        a, S = self.a, self.S
        if census:
            census(self.t[1], self.t[2])
        if seg == -1:
            a(f's_mov_b32 {S["t1"]}, {FLG + F_XN * 128}')
            a(f's_mov_b32 {S["t2"]}, 3')
            self.spin_flags(self.t[1], self.vZ, S['t1'], S['t2'], 30)
        elif seg:
            a(f's_mov_b32 {S["t1"]}, {FLG + F_K * 128}')
            a(f's_mov_b32 {S["t2"]}, {seg}')
            self.spin_flags(self.t[1], self.vZ, S['t1'], S['t2'], 30)

    def load_weights(self, nch, issue, rowbytes, rows, between=None):
        a = self.a
        for ci in range(nch):
            issue(ci)
        nlater = 0
        for ci in range(nch):
            a(f's_waitcnt vmcnt({4 * (nch - 1 - ci) + nlater})')
            a('s_barrier')
            if between:
                nlater += between(ci)
            a(f'v_add_u32 {self.t[0]}, {ci * 16384}, {self.vR}')
            for ks in range(4):
                for aa in range(2):
                    r = 16 * ci + 4 * ks + 2 * aa
                    a(f'ds_read_b64_tr_b16 a[{r}:{r + 1}], {self.t[0]} offset:{rows(ks, aa) * rowbytes}')
            a('s_waitcnt lgkmcnt(0)')
        a('s_barrier')

    def plain_weights(self, ptr, nbytes, pitch, sBase, nch, rows, lanerow, between=None):
        a, S = self.a, self.S
        sWt = self.sr.alloc('wt', 4)
        sM = self.sr.alloc('wm')
        vA = self.v.alloc('wa')
        self.vR = self.v.alloc('wr')
        self.srd(sWt, ptr, nbytes)
        self.LA(self.t[1], [(4, 2, 4)])
        self.LA(self.t[2], [(0, 4, 1)])
        a(f'v_xor_b32 {self.t[1]}, {self.t[1]}, {self.t[2]}')
        self.LA(vA, [(4, 2, pitch)], [(S['w'], 16 * pitch)])
        a(f'v_lshl_add_u32 {vA}, {self.t[1]}, 4, {vA}')
        self.LA(self.t[1], [(2, 2, 4)])
        self.LA(self.t[2], [(4, 1, 2), (1, 1, 1)], [(S['w'], 4)])
        a(f'v_xor_b32 {self.t[1]}, {self.t[1]}, {self.t[2]}')
        self.LA(self.vR, [(2, 2, 256), (5, 1, lanerow * 256), (0, 1, 8)])
        a(f'v_lshl_add_u32 {self.vR}, {self.t[1]}, 4, {self.vR}')
        a(f's_lshl_b32 {sM}, {S["w"]}, 12')
        ntf = ' nt' if self.cfg.get('nt', True) else ''

        def issue(ci):
            for ip in range(4):
                a(f's_add_u32 {S["t1"]}, {sBase}, {(64 * ci + 4 * ip) * pitch}')
                a(f's_add_u32 m0, {sM}, {ci * 16384 + ip * 1024}')
                a(f'buffer_load_dwordx4 {vA}, {sWt}, {S["t1"]} offen{ntf} lds')
        self.load_weights(nch, issue, 256, rows, between)


def tile_dma(c, nk, vSrc, sSrc, sDst):
    a, S = c.a, c.S
    ops = []
    for i in range(nk // 4):
        def op(i=i):
            if i % 4 == 0:
                a(f's_add_u32 {S["t2"]}, {sSrc}, {4096 * (i // 4)}')
            a(f's_add_u32 m0, {sDst}, {4096 * (i // 4)}')
            return f'buffer_load_dwordx4 {vSrc}, {S["ws"]}, {S["t2"]} offen offset:{1024 * (i % 4)} sc1 lds'
        ops.append(op)
    return ops


def mfma_loop(c, nk, acc, xf, vRd, fill, w_is_a=True, ds=None):
    a = c.a
    ds = ds or Cnt(a, 'lgkmcnt', 15)
    D = len(xf)
    for k in range(min(D - 1, nk)):
        ds.issue(f'ds_read_b128 {xf[k % D]}, {vRd} offset:{1024 * k}', 'x%d' % k)
    for k in range(nk):
        if k + D - 1 < nk:
            kk = k + D - 1
            ds.issue(f'ds_read_b128 {xf[kk % D]}, {vRd} offset:{1024 * kk}', 'x%d' % kk)
        ds.wait('x%d' % k)
        w = f'a[{4 * k}:{4 * k + 3}]'
        A, B = (w, xf[k % D]) if w_is_a else (xf[k % D], w)
        a(f'{MF32} {acc}, {A}, {B}, {"0" if k == 0 else acc}')
        for x in fill.get(k, []):
            if callable(x):
                x()
            else:
                a(x)


def spread(fill, ops, start, per=1, step=1):
    for i, x in enumerate(ops):
        fill.setdefault(start + (i // per) * step, []).append(x)


class XnFlags:
    def __init__(self, c):
        self.c = c
        self.sLine = c.sr.alloc('xl')
        self.sNeed = c.sr.alloc('xn')
        self.vFo = c.vZ

    def set(self, seg):
        a = self.c.a
        a(f's_mov_b32 {self.sLine}, {FLG + (F_XN + seg % NF) * 128}')
        a(f's_mov_b32 {self.sNeed}, {seg // NF + 1}')

    def advance(self, sSeg):
        a, S = self.c.a, self.c.S
        a(f's_mul_i32 {S["t3"]}, {sSeg}, 4682')
        a(f's_lshr_b32 {self.sNeed}, {S["t3"]}, 16')
        a(f's_mul_i32 {S["t3"]}, {self.sNeed}, {NF}')
        a(f's_sub_u32 {S["t3"]}, {sSeg}, {S["t3"]}')
        a(f's_lshl_b32 {S["t3"]}, {S["t3"]}, 7')
        a(f's_add_u32 {self.sLine}, {S["t3"]}, {FLG + F_XN * 128}')
        a(f's_add_u32 {self.sNeed}, {self.sNeed}, 1')


class SegFlags:
    def __init__(self, c, vFo):
        self.c = c
        self.sLine = c.sr.alloc('gl')
        self.sNeed = c.sr.alloc('gn')
        self.vFo = vFo
        c.a(f's_mov_b32 {self.sLine}, 0')

    def set(self, seg):
        self.c.a(f's_mov_b32 {self.sNeed}, {seg + 1}')

    def advance(self, sSeg):
        self.c.a(f's_add_u32 {self.sNeed}, {sSeg}, 1')


def stream_gemm(c, nk, flags, src_base, src_stride, sSrcOff, weights, epilogue, vOwn, census, hold=None):
    a, S = c.a, c.S
    sWS = S['ws']
    acc = [c.v.alloc('acc%d' % i, 16) for i in range(2)]
    xf = [c.v.alloc('xf%d' % i, 4) for i in range(4)]
    vRd, vFl, vCnt = c.v.alloc('rd'), c.v.alloc('fl'), c.v.alloc('cnt')
    sSeg, sPre, sBufR, sBufW, sSrc, sDst, sWq = [c.sr.alloc('g%d' % i) for i in range(7)]
    TB = nk * 1024
    nd = nk // 4
    a(f's_mul_i32 {sWq}, {S["w"]}, {TB // 4}')

    def src():
        a(f's_mul_i32 {sSrc}, {sPre}, {src_stride}')
        a(f's_add_u32 {sSrc}, {sSrc}, {src_base}')
        if sSrcOff is not None:
            a(f's_add_u32 {sSrc}, {sSrc}, {sSrcOff}')
        a(f's_add_u32 {sSrc}, {sSrc}, {sWq}')
        a(f's_add_u32 {sDst}, {sBufW}, {sWq}')
    if hold is not None:
        c.hold(census, hold)
    weights(None)
    if hold is None:
        census(c.t[1], c.t[2])
    for s in range(2):
        flags.set(s)
        c.spin_flags(vFl, flags.vFo, flags.sLine, flags.sNeed, 20)
        a(f's_mov_b32 {sPre}, {s}')
        a(f's_mov_b32 {sBufW}, {s * TB}')
        src()
        for op in tile_dma(c, nk, c.vLin, sSrc, sDst):
            a(op())
    flags.set(2)
    a(f'buffer_load_dword {vFl}, {flags.vFo}, {sWS}, {flags.sLine} offen sc1')
    a(f's_mov_b32 {sSeg}, 0')
    a(f's_mov_b32 {sPre}, 2')
    a(f's_mov_b32 {sBufR}, 0')
    a(f's_mov_b32 {sBufW}, {2 * TB}')
    a('s_waitcnt vmcnt(0)')
    top, done = a.newlabel(c.name + 'top'), a.newlabel(c.name + 'end')
    late = []
    S['tl'](3, c.t[0], c.t[1])
    a.label(top)
    for p in range(2):
        a(f's_waitcnt vmcnt({nd})')
        a('s_barrier')
        a(f'v_add_u32 {vRd}, {sBufR}, {c.vLin}')
        fill = {}
        labw, labo = a.newlabel('nf'), a.newlabel('nfok')
        late.append((labw, labo))
        pub = [lambda: (a(f's_sub_u32 {S["t3"]}, {sSeg}, 1'), a(f's_max_i32 {S["t3"]}, {S["t3"]}, 0'),
                        a(f'v_mov_b32 {vCnt}, {S["t3"]}'), a(f'buffer_store_dword {vCnt}, {vOwn}, {sWS}, 0 offen sc1'))]
        spread(fill, pub, 0)
        ep = epilogue(acc[1 - p], sSeg, -1)
        per = -(-len(ep) // (nk - nd * 2 - 6))
        spread(fill, ep, 1, per)
        k0 = 2 + -(-len(ep) // per)
        spread(fill, [lambda: (src(), a(f'v_cmp_gt_u32 vcc, {flags.sNeed}, {vFl}')),
                      lambda: (a(f's_cbranch_vccnz {labw}'), a.label(labo), a(f's_add_u32 {sPre}, {sPre}, 1'),
                               a(f's_min_u32 {sPre}, {sPre}, 63'), flags.advance(sPre),
                               a(f'buffer_load_dword {vFl}, {flags.vFo}, {sWS}, {flags.sLine} offen sc1'))], k0)
        spread(fill, [lambda op=op: a(op()) for op in tile_dma(c, nk, c.vLin, sSrc, sDst)], k0 + 2, 1, 2)
        assert max(fill) < nk, (c.name, max(fill))
        mfma_loop(c, nk, acc[p], xf, vRd, fill)
        for x in (sBufR, sBufW):
            a(f's_add_u32 {x}, {x}, {TB}')
            a(f's_cmp_eq_u32 {x}, {3 * TB}')
            a(f's_cselect_b32 {x}, 0, {x}')
        a(f's_add_u32 {sSeg}, {sSeg}, 1')
    a(f's_cmp_lt_u32 {sSeg}, 64')
    a(f's_cbranch_scc1 {top}')
    for x in epilogue(acc[1], sSeg, -1):
        x() if callable(x) else a(x)
    a('s_waitcnt vmcnt(0)')
    a('s_barrier')
    a(f'v_mov_b32 {vCnt}, 64')
    a(f'buffer_store_dword {vCnt}, {vOwn}, {sWS}, 0 offen sc1')
    S['tl'](4, c.t[0], c.t[1])
    a('s_endpgm')
    for labw, labo in late:
        a.label(labw)
        c.spin_flags(vFl, flags.vFo, flags.sLine, flags.sNeed, 21)
        a(f's_branch {labo}')


def seg_off(c, dst, sSeg, delta, stride, base, sExtra=None):
    a, S = c.a, c.S
    a(f's_mul_i32 {dst}, {sSeg}, {stride}')
    a(f's_add_u32 {dst}, {dst}, {(base + delta * stride) & 0xffffffff}')
    if sExtra is not None:
        a(f's_add_u32 {dst}, {dst}, {sExtra}')
    if delta < 0:
        a(f's_cmp_eq_u32 {sSeg}, 0')
        a(f's_cselect_b32 {dst}, {OOB}, {dst}')


NAT = lambda ks, aa: 16 * ks + 4 * aa


def gen_KV(a, S, cfg, census):
    c = Ctx(a, S, cfg, 'kv')
    sI = S['idx']
    sPtr = c.sr.alloc('p', 2)
    sB, sHB, sE, sSc = [c.sr.alloc('k%d' % i) for i in range(4)]
    a(f's_cmp_lt_u32 {sI}, 32')
    a(f's_cselect_b32 {sPtr[0]}, {S["ptrs"][2]}, {S["ptrs"][4]}')
    a(f's_cselect_b32 {sPtr[1]}, {S["ptrs"][3]}, {S["ptrs"][5]}')
    a(f's_cselect_b32 {sSc}, {f32hex(SCALE_LOG2E)}, 1.0')
    a(f's_cselect_b32 {sHB}, {HR + HR_KX}, {HR + HR_VX}')
    a(f's_and_b32 {S["t1"]}, {sI}, 31')
    a(f's_lshl_b32 {sB}, {S["t1"]}, 8')
    a(f's_lshl_b32 {S["t1"]}, {S["t1"]}, 21')
    a(f's_add_u32 {sHB}, {sHB}, {S["t1"]}')
    vSt, vOwn = c.v.alloc('st'), c.v.alloc('own')
    pk = c.v.alloc('pk', 8)
    c.LA(vSt, [(4, 1, 4096), (0, 4, 16), (5, 1, 256)], [(S['w'], 1024)])
    c.own_word(vOwn, sI, F_K)
    a(f's_mov_b32 {sE}, {OOB}')

    junk = c.v.alloc('junk', 8)

    def ep(acc, sSeg, d):
        rb = [f'buffer_load_dwordx4 {junk[4 * i:4 * i + 4]}, {vSt}, {S["ws"]}, {sE} offen offset:{512 * i} {cfg.get("rbf", "sc1")}'
              for i in range(2)] if cfg.get('rb', 1) else []
        return rb + [f'v_mul_f32 {acc[i]}, {sSc}, {acc[i]}' for i in range(16)] + \
               [f'v_cvt_pk_bf16_f32 {pk[i]}, {acc[2 * i]}, {acc[2 * i + 1]}' for i in range(8)] + \
               [lambda: seg_off(c, sE, sSeg, d, 8192, 0, sHB)] + \
               [f'buffer_store_dwordx4 {pk[4 * i:4 * i + 4]}, {vSt}, {S["ws"]}, {sE} offen offset:{512 * i} sc1' for i in range(2)]
    stream_gemm(c, 40, XnFlags(c), XN, 40960, None,
                lambda b: c.plain_weights(sPtr, 640 * 4096 * 2, 8192, sB, 10, NAT, 8, b), ep, vOwn, census, cfg.get('holdkv'))


def gen_G2(a, S, cfg, census):
    c = Ctx(a, S, cfg, 'g2')
    sI = S['idx']
    sE, sB, sM, sO = [c.sr.alloc('k%d' % i) for i in range(4)]
    sWt = [c.sr.alloc('wt%d' % i, 4) for i in range(2)]
    vOwn = c.v.alloc('own')
    pk = c.v.alloc('pk', 4)
    vA = [c.v.alloc('wa%d' % i) for i in range(2)]
    c.vR = c.v.alloc('wr')
    c.own_word(vOwn, sI, F_H)
    a(f's_lshl_b32 {sB}, {sI}, 7')
    a(f's_lshl_b32 {sO}, {sI}, 12')
    a(f's_lshl_b32 {S["t1"]}, {S["w"]}, 10')
    a(f's_add_u32 {sO}, {sO}, {S["t1"]}')
    ntf = ' nt' if cfg.get('nt', True) else ''

    def weights(between):
        pitch = 3456
        for part in range(2):
            c.srd(sWt[part], S['ffn'][2 * part:2 * part + 2], 640 * pitch)
            c.LA(c.t[1], [(4, 1, 2)], [], 4 * part)
            c.LA(c.t[2], [(0, 3, 1)])
            a(f'v_xor_b32 {c.t[1]}, {c.t[1]}, {c.t[2]}')
            c.LA(vA[part], [(3, 3, pitch)], [(S['w'], 16 * pitch)])
            a(f'v_lshl_add_u32 {vA[part]}, {c.t[1]}, 4, {vA[part]}')
        c.LA(c.t[1], [(4, 1, 4), (3, 1, 2)])
        c.LA(c.t[2], [(1, 1, 1)], [(S['w'], 2)])
        a(f'v_xor_b32 {c.t[1]}, {c.t[1]}, {c.t[2]}')
        c.LA(c.vR, [(2, 2, 128), (5, 1, 8 * 128), (4, 1, 8192), (0, 1, 8)])
        a(f'v_lshl_add_u32 {c.vR}, {c.t[1]}, 4, {c.vR}')
        a(f's_lshl_b32 {sM}, {S["w"]}, 11')

        def issue(ci):
            for part in range(2):
                for ip in range(2):
                    a(f's_add_u32 {S["t1"]}, {sB}, {(64 * ci + 8 * ip) * pitch}')
                    a(f's_add_u32 m0, {sM}, {ci * 16384 + part * 8192 + ip * 1024}')
                    a(f'buffer_load_dwordx4 {vA[part]}, {sWt[part]}, {S["t1"]} offen{ntf} lds')
        c.load_weights(10, issue, 128, NAT, between)

    def ep(acc, sSeg, d):
        o = []
        for i in range(8):
            o += [f'v_mul_f32 {acc[i]}, {f32hex(-LOG2E)}, {acc[i]}', f'v_exp_f32 {acc[i]}, {acc[i]}']
        for i in range(8):
            o += [f'v_add_f32 {acc[i]}, 1.0, {acc[i]}', f'v_rcp_f32 {acc[i]}, {acc[i]}']
        o += [f'v_mul_f32 {acc[i]}, {acc[i]}, {acc[8 + i]}' for i in range(8)]
        o += [f'v_cvt_pk_bf16_f32 {pk[i]}, {acc[2 * i]}, {acc[2 * i + 1]}' for i in range(4)]
        o += [lambda: seg_off(c, sE, sSeg, d, 110592, HH, sO),
              f'buffer_store_dwordx4 {pk}, {c.vLin}, {S["ws"]}, {sE} offen sc1']
        return o
    stream_gemm(c, 40, XnFlags(c), XN, 40960, None, weights, ep, vOwn, census, cfg.get('hold2', 14))


def partial_epilogue(c, pk, sE, stride, base, sO):
    S = c.S

    def ep(acc, sSeg, d):
        o = [f'v_cvt_pk_bf16_f32 {pk[i]}, {acc[2 * i]}, {acc[2 * i + 1]}' for i in range(8)]
        o += [lambda: seg_off(c, sE, sSeg, d, stride, base, sO)]
        for j in range(2):
            o += [f'v_permlane32_swap_b32 {pk[4 * j + i]}, {pk[4 * j + 2 + i]}' for i in range(2)]
        o += [f'buffer_store_dwordx4 {pk[4 * j:4 * j + 4]}, {c.vLin}, {S["ws"]}, {sE} offen offset:{1024 * j} sc1' for j in range(2)]
        return o
    return ep


def split5(c, sI, sKg, sNg):
    a = c.a
    a(f's_mul_i32 {sKg}, {sI}, 52')
    a(f's_lshr_b32 {sKg}, {sKg}, 8')
    a(f's_mul_i32 {sNg}, {sKg}, 5')
    a(f's_sub_u32 {sNg}, {sI}, {sNg}')


def gen_G3(a, S, cfg, census):
    c = Ctx(a, S, cfg, 'g3')
    sI = S['idx']
    sKg, sNg, sE, sB, sO, sX = [c.sr.alloc('k%d' % i) for i in range(6)]
    split5(c, sI, sKg, sNg)
    vOwn, vFo = c.v.alloc('own'), c.v.alloc('fo')
    pk = c.v.alloc('pk', 8)
    c.own_word(vOwn, sI, F_P3)
    a(f'v_lshrrev_b32 {vFo}, 2, {c.lane}')
    a(f'v_min_u32 {vFo}, 8, {vFo}')
    a(f'v_lshlrev_b32 {vFo}, 7, {vFo}')
    a(f's_mul_i32 {S["t1"]}, {sKg}, {9 * 128}')
    a(f's_add_u32 {S["t1"]}, {S["t1"]}, {FLG + F_H * 128}')
    a(f'v_add_u32 {vFo}, {S["t1"]}, {vFo}')
    a(f's_mul_i32 {sB}, {sKg}, {576 * 1280}')
    a(f's_lshl_b32 {S["t1"]}, {sNg}, 8')
    a(f's_add_u32 {sB}, {sB}, {S["t1"]}')
    a(f's_lshl_b32 {sO}, {sI}, 13')
    a(f's_lshl_b32 {S["t1"]}, {S["w"]}, 11')
    a(f's_add_u32 {sO}, {sO}, {S["t1"]}')
    a(f's_mul_i32 {sX}, {sKg}, {36 * 1024}')
    rows = lambda ks, aa: 16 * ks + 8 * aa
    stream_gemm(c, 36, SegFlags(c, vFo), HH, 110592, sX,
                lambda b: c.plain_weights(S['ffn'][4:6], 1728 * 1280, 1280, sB, 9, rows, 4, b),
                partial_epilogue(c, pk, sE, 15 * 8192, P3, sO), vOwn, census, cfg.get('hold3', 16))


def gen_G4(a, S, cfg, census):
    c = Ctx(a, S, cfg, 'g4')
    sI, sWS = S['idx'], S['ws']
    sKg, sNg, sE, sB, sO, sX, sSeg, sNeed, sM, sSrc = [c.sr.alloc('k%d' % i) for i in range(10)]
    split5(c, sI, sKg, sNg)
    vOwn, vFo, vFl, vCnt = [c.v.alloc('v%d' % i) for i in range(4)]
    pk = c.v.alloc('pk', 8)
    acc = c.v.alloc('acc', 16)
    xf = [c.v.alloc('xf%d' % i, 4) for i in range(8)]
    c.own_word(vOwn, sI, F_P4)
    c.LA(vFo, [(4, 2, 128)], [(sKg, 512)], FLG + F_O * 128)
    a(f's_mul_i32 {sB}, {sKg}, {512 * 1280}')
    a(f's_lshl_b32 {S["t1"]}, {sNg}, 8')
    a(f's_add_u32 {sB}, {sB}, {S["t1"]}')
    a(f's_lshl_b32 {sO}, {sI}, 13')
    a(f's_lshl_b32 {S["t1"]}, {S["w"]}, 11')
    a(f's_add_u32 {sO}, {sO}, {S["t1"]}')
    a(f's_lshl_b32 {sX}, {sKg}, 15')
    a(f's_add_u32 {sX}, {sX}, {S["t1"]}')
    a(f's_mov_b32 {sM}, {S["t1"]}')
    rows = lambda ks, aa: 32 * (ks >> 1) + 16 * aa + 8 * (ks & 1)
    census(c.t[1], c.t[2])
    c.hold(None, cfg.get('hold4', 8))
    c.plain_weights(S['ptrs'][6:8], 4096 * 1280, 1280, sB, 8, rows, 4)
    ep = partial_epilogue(c, pk, sE, 40 * 8192, P4, sO)
    a(f's_mov_b32 {sSeg}, 0')
    top, labw, labo = a.newlabel('g4top'), a.newlabel('g4w'), a.newlabel('g4ok')
    a.label(top)
    a(f'buffer_load_dword {vFl}, {vFo}, {sWS}, 0 offen sc1')
    a(f's_add_u32 {sNeed}, {sSeg}, 1')
    seg_off(c, sSrc, sSeg, 0, 262144, OO, sX)
    a(f'v_mov_b32 {vCnt}, {sSeg}')
    a('s_waitcnt vmcnt(0)')
    a('s_barrier')
    a(f'v_cmp_gt_u32 vcc, {sNeed}, {vFl}')
    a(f's_cbranch_vccnz {labw}')
    a.label(labo)
    for g in range(4):
        a(f's_add_u32 {S["t2"]}, {sSrc}, {8192 * g}')
        a(f's_add_u32 m0, {sM}, {8192 * g}')
        for i in range(2):
            a(f'buffer_load_dwordx4 {c.vLin}, {sWS}, {S["t2"]} offen offset:{1024 * i} sc1 lds')
    a(f'buffer_store_dword {vCnt}, {vOwn}, {sWS}, 0 offen sc1')
    ds = Cnt(a, 'lgkmcnt', 15)
    for g in range(4):
        a(f's_waitcnt vmcnt({7 - 2 * g})')
        a('s_barrier')
        for k in range(8):
            ds.issue(f'ds_read_b128 {xf[k]}, {c.vLin} offset:{8192 * g + 1024 * k}', 'x%d' % k)
        for k in range(8):
            ds.wait('x%d' % k)
            kk = 8 * g + k
            a(f'{MF32} {acc}, a[{4 * kk}:{4 * kk + 3}], {xf[k]}, {"0" if kk == 0 else acc}')
    for x in ep(acc, sSeg, 0):
        x() if callable(x) else a(x)
    a(f's_add_u32 {sSeg}, {sSeg}, 1')
    a(f's_cmp_lt_u32 {sSeg}, 64')
    a(f's_cbranch_scc1 {top}')
    a('s_waitcnt vmcnt(0)')
    a('s_barrier')
    a(f'v_mov_b32 {vCnt}, 64')
    a(f'buffer_store_dword {vCnt}, {vOwn}, {sWS}, 0 offen sc1')
    S['tl'](4, c.t[0], c.t[1])
    a('s_endpgm')
    a.label(labw)
    a(f'buffer_store_dword {vCnt}, {vOwn}, {sWS}, 0 offen sc1')
    c.spin_flags(vFl, vFo, '0', sNeed, 22)
    a(f's_branch {labo}')


def gen_QA(a, S, cfg, census):
    c = Ctx(a, S, cfg, 'qa')
    sI, sWS, sW = S['idx'], S['ws'], S['w']
    L_X, L_KV, L_Q, L_KM = 0, 81920, 114688, 122880
    sB, sHB, sSeg, sPre, sSrc, sDst, sWq, sKs, sKd, sE, sO, sNeed, sEx, sPar, sC, sN2 = [c.sr.alloc('k%d' % i) for i in range(16)]
    (vOwn, vFx, vFlx, vFe, vFle, vFk, vFlk, vCnt, vRd, vQw, vQr, vKr, vVr, vXs, vVs, vMw, vMr, vMr1, vSt) = [
        c.v.alloc('v%d' % i) for i in range(19)]
    acc = c.v.alloc('acc', 16)
    xf = [c.v.alloc('xf%d' % i, 4) for i in range(4)]
    pk = c.v.alloc('pk', 8)
    qb = c.v.alloc('qb', 16)
    kx = c.v.alloc('kx', 32)
    vt = c.v.alloc('vt', 16)
    ka = c.v.alloc('ka', 16)
    km = c.v.alloc('km', 2)
    vm = c.v.alloc('vm', 4)
    Sx = c.v.alloc('S', 12)
    P = c.v.alloc('P', 4)
    Pa = c.v.alloc('Pa', 8)
    Pb = c.v.alloc('Pb', 6)
    O = c.v.alloc('O', 16)
    L = c.v.alloc('L', 4)
    one = c.v.alloc('one', 4)
    msk = c.v.alloc('msk', 8)
    po = c.v.alloc('po', 4)
    vPa = vFe
    fx = XnFlags(c)
    c.own_word(vOwn, sI, F_O)
    a(f's_lshl_b32 {sB}, {sI}, 8')
    a(f's_lshl_b32 {sHB}, {sI}, 21')
    a(f's_add_u32 {sHB}, {sHB}, {HR}')
    a(f's_mul_i32 {sWq}, {sW}, 10240')
    a(f's_mov_b32 {sC}, {f32hex(SCALE_LOG2E)}')
    sQh, sEh = S['t1'], S['t2']
    a(f's_and_b32 {sQh}, {sW}, 1')
    a(f's_lshr_b32 {sEh}, {sW}, 1')
    a(f'v_mov_b32 {vFle}, {POISON}')
    c.LA(vFk, [(5, 1, 4096)], [(sI, 128)], FLG + F_K * 128)
    c.LA(vQw, [(4, 1, 4096), (0, 4, 16), (5, 1, 256)], [(sW, 1024)], L_Q)
    c.LA(vQr, [(0, 6, 16)], [(sQh, 4096)], L_Q)
    c.LA(vXs, [(0, 6, 8)], [(sW, 512)])
    c.LA(vVs, [(0, 6, 8)], [(sEh, 1024)], 2048)
    c.LA(vMw, [(0, 4, 32), (4, 2, 8)], [(sW, 1024)], L_KM)
    c.LA(vMr, [(5, 1, 512), (4, 1, 128), (2, 2, 32), (0, 2, 8)], [], L_KM)
    c.LA(vSt, [(5, 1, 1024), (4, 1, 512), (0, 4, 16)], [(sQh, 256), (sEh, 4096), (sI, 8192)])
    c.LA(vVr, [(4, 2, 64), (2, 2, 16), (0, 1, 256), (1, 1, 8)], [(sEh, 2048)], 8192)
    c.LA(c.t[1], [(0, 4, 1)], [(sQh, 16)])
    c.LA(c.t[2], [(4, 2, 4)])
    a(f'v_sub_u32 {c.t[1]}, {c.t[1]}, {c.t[2]}')
    a(f'v_mov_b32 {c.t[2]}, {f32hex(-1e30)}')
    for i in range(8):
        a(f'v_cmp_gt_i32 vcc, {16 * (i >> 2) + (i & 3)}, {c.t[1]}')
        a(f'v_cndmask_b32 {msk[i]}, {c.vZ}, {c.t[2]}, vcc')
    for i in range(4):
        a(f'v_mov_b32 {one[i]}, 0x3f803f80')
    for x in [Pa[i] for i in range(8)] + [Pb[i] for i in range(6)]:
        a(f'v_mov_b32 {x}, 0')
    census(c.t[1], c.t[2])
    c.parity(sO, sI)
    a(f's_add_u32 {sO}, {sO}, {sHB}')
    a(f's_add_u32 {sO}, {sO}, {HR_KM}')
    c.LA(vPa, [(0, 6, 16)], [(sW, 1024)])
    for i in range(4):
        a(f'v_mov_b32 {po[i]}, {POISON}')
    for i in range(8):
        a(f's_add_u32 {sE}, {sO}, {(i >> 1) * 16384 + (i & 1) * 4096}')
        a(f'buffer_store_dwordx4 {po}, {vPa}, {sWS}, {sE} offen sc1')
    a(f's_lshl_b32 {S["t1"]}, {S["mode"]}, 17')
    a(f's_add_u32 {sKs}, {sO}, {S["t1"]}')
    for i in range(8):
        a(f's_add_u32 {sE}, {sKs}, {HR_X - HR_KM + (i >> 1) * 16384 + (i & 1) * 4096}')
        a(f'buffer_store_dwordx4 {po}, {vPa}, {sWS}, {sE} offen sc1')
    a(f's_mul_i32 {sKs}, {S["mode"]}, {RING_FB}')
    for i in range(4):
        a(f'v_mov_b32 {pk[i]}, -1')
    a(f's_and_b32 {sE}, {sI}, 15')
    a(f's_mul_i32 {sE}, {sE}, 20480')
    a(f's_lshr_b32 {S["t1"]}, {sI}, 4')
    a(f's_lshl_b32 {S["t1"]}, {S["t1"]}, 19')
    a(f's_add_u32 {sE}, {sE}, {S["t1"]}')
    a(f's_add_u32 {sE}, {sE}, {sKs}')
    for i in range(5):
        a(f's_add_u32 {sKd}, {sE}, {RSB + 4096 * i}')
        a(f'buffer_store_dwordx4 {pk[0:4]}, {vPa}, {sWS}, {sKd} offen sc1')
    a(f's_lshr_b32 {sE}, {sI}, 1')
    a(f's_and_b32 {S["t1"]}, {sI}, 1')
    a(f's_lshl_b32 {S["t1"]}, {S["t1"]}, 13')
    a(f's_add_u32 {S["t1"]}, {S["t1"]}, {AGR}')
    a(f's_sub_u32 {S["t2"]}, {sI}, 16')
    a(f's_cmp_lt_u32 {sI}, 16')
    a(f's_cselect_b32 {sE}, {sE}, {S["t2"]}')
    a(f's_cselect_b32 {S["t1"]}, {S["t1"]}, {AGB}')
    a(f's_lshl_b32 {sKd}, {sE}, 15')
    a(f's_add_u32 {sKd}, {sKd}, {S["t1"]}')
    a(f's_add_u32 {sKd}, {sKd}, {sKs}')
    labi, labm = a.newlabel('noimg'), a.newlabel('img0')
    a(f's_cmp_ge_u32 {sI}, 24')
    a(f's_cbranch_scc1 {labi}')
    a(f's_and_b32 {S["t1"]}, {sE}, 3')
    a(f's_cmp_eq_u32 {S["t1"]}, 3')
    a(f's_cbranch_scc1 {labm}')
    a(f'buffer_store_dwordx4 {po}, {vPa}, {sWS}, {sKd} offen sc1')
    a(f's_add_u32 {sKd}, {sKd}, 4096')
    a(f'buffer_store_dwordx4 {po}, {vPa}, {sWS}, {sKd} offen sc1')
    a(f's_branch {labi}')
    a.label(labm)
    sMem = c.sr.alloc('mem', 4)
    c.srd(sMem, S['mem0'], 8 * 1280)
    a(f's_lshr_b32 {S["t1"]}, {sE}, 2')
    a(f's_mul_i32 {S["t1"]}, {S["t1"]}, 640')
    c.LA(c.t[1], [(2, 2, 2560), (0, 1, 1280), (1, 1, 16), (4, 2, 32)])
    c.LA(c.t[2], [(2, 2, 2560), (0, 1, 1280), (1, 1, 128), (4, 2, 32)], [], 128)
    a(f'buffer_load_dwordx4 {kx[0:4]}, {c.t[1]}, {sMem}, {S["t1"]} offen')
    for b in range(1, 5):
        a(f'buffer_load_dwordx4 {kx[4 * b:4 * b + 4]}, {c.t[2]}, {sMem}, {S["t1"]} offen offset:{256 * ((b - 1) >> 1) + 16 * ((b - 1) & 1)}')
    a(f's_cmp_eq_u32 {sW}, 0')
    a(f's_cselect_b32 {sKd}, {sKd}, {OOB}')
    a('s_waitcnt vmcnt(0)')
    for b in range(5):
        a(f'v_max_i32 {kx[4 * b]}, {POISON + 1}, {kx[4 * b]}')
        a(f's_add_u32 {sE}, {sKd}, {1024 * b}')
        a(f'buffer_store_dwordx4 {kx[4 * b:4 * b + 4]}, {c.vLin}, {sWS}, {sE} offen sc1')
    a.label(labi)
    a('s_waitcnt vmcnt(0)')
    a('s_barrier')
    labq = a.newlabel('qarr')
    a(f's_cmp_lg_u32 {sW}, 0')
    a(f's_cbranch_scc1 {labq}')
    a(f's_lshl_b32 {S["t1"]}, {S["mode"]}, 2')
    a(f'v_mov_b32 {c.t[1]}, {S["t1"]}')
    a(f'v_mov_b32 {c.t[2]}, 1')
    a('s_mov_b64 exec, 1')
    a(f'global_atomic_add {c.t[1]}, {c.t[2]}, {S["dbg"]} offset:{4 * D_QBAR}')
    a('s_mov_b64 exec, -1')
    a.label(labq)
    c.hold(None, cfg.get('holdq', 4))
    c.plain_weights(S['ptrs'][0:2], 640 * 4096 * 2, 8192, sB, 10, NAT, 8)

    def src():
        a(f's_mul_i32 {sSrc}, {sPre}, 40960')
        a(f's_add_u32 {sSrc}, {sSrc}, {XN}')
        a(f's_add_u32 {sSrc}, {sSrc}, {sWq}')
        a(f's_and_b32 {sPar}, {sPre}, 1')
        a(f's_mul_i32 {sDst}, {sPar}, 40960')
        a(f's_add_u32 {sDst}, {sDst}, {sWq}')
        a(f's_lshl_b32 {sKs}, {sPre}, 13')
        a(f's_add_u32 {sKs}, {sKs}, {sHB}')
        a(f's_lshl_b32 {S["t3"]}, {sW}, 11')
        a(f's_add_u32 {sKs}, {sKs}, {S["t3"]}')
        a(f's_lshl_b32 {sKd}, {sPar}, 14')
        a(f's_add_u32 {sKd}, {sKd}, {S["t3"]}')
        a(f's_add_u32 {sN2}, {sPre}, 1')

    def kv_dma():
        ops = []
        for i in range(4):
            def op(i=i):
                a(f's_add_u32 {S["t2"]}, {sKs}, {HR_VX * (i >> 1)}')
                a(f's_add_u32 m0, {sKd}, {L_KV + 8192 * (i >> 1)}')
                return f'buffer_load_dwordx4 {c.vLin}, {sWS}, {S["t2"]} offen offset:{1024 * (i & 1)} sc1 lds'
            ops.append(op)
        return ops
    a(f's_mov_b32 {sPre}, 0')
    src()
    fx.set(0)
    c.spin_flags(vFlx, c.vZ, fx.sLine, fx.sNeed, 23)
    for op in tile_dma(c, 40, c.vLin, sSrc, sDst):
        a(op())
    c.spin_flags(vFlk, vFk, '0', sN2, 24)
    for op in kv_dma():
        a(op())
    fx.set(1)
    a(f'buffer_load_dword {vFlx}, {c.vZ}, {sWS}, {fx.sLine} offen sc1')
    a(f's_mov_b32 {sSeg}, 0')
    a(f's_mov_b32 {sPre}, 1')
    a('s_waitcnt vmcnt(0)')
    top = a.newlabel('qatop')
    lx, lxo, lk, lko, le, leo = [a.newlabel('qa') for _ in range(6)]
    S['tl'](3, c.t[0], c.t[1])
    a.label(top)
    a('s_waitcnt vmcnt(3)')
    a('s_barrier')
    a(f's_and_b32 {S["t3"]}, {sSeg}, 1')
    a(f's_mul_i32 {S["t1"]}, {S["t3"]}, 40960')
    a(f'v_add_u32 {vRd}, {S["t1"]}, {c.vLin}')
    a(f's_lshl_b32 {S["t3"]}, {S["t3"]}, 14')
    a(f's_add_u32 {S["t3"]}, {S["t3"]}, {L_KV}')
    a(f'v_add_u32 {vKr}, {S["t3"]}, {c.vLin}')
    a(f'v_add_u32 {vMr1}, {S["t3"]}, {vVr}')
    fill = {}
    spread(fill, [lambda: (src(), a(f'v_cmp_gt_u32 vcc, {fx.sNeed}, {vFlx}')),
                  lambda: None,
                  lambda: (a(f's_cbranch_vccnz {lx}'), a.label(lxo), a(f'v_cmp_gt_u32 vcc, {sN2}, {vFlk}')),
                  lambda: None,
                  lambda: (a(f's_cbranch_vccnz {lk}'), a.label(lko))], 0)
    spread(fill, [lambda op=op: a(op()) for op in tile_dma(c, 40, c.vLin, sSrc, sDst) + kv_dma()], 5, 1, 2)
    kp = cfg.get('qapub', 20)
    spread(fill, [lambda: (a(f's_waitcnt vmcnt({(kp - 5) // 2 + 1})'), a('s_barrier'), a(f'v_mov_b32 {vCnt}, {sSeg}'),
                           a(f'buffer_store_dword {vCnt}, {vOwn}, {sWS}, 0 offen sc1'))], kp)
    spread(fill, [lambda: (a(f's_add_u32 {sPre}, {sPre}, 1'), a(f's_min_u32 {sPre}, {sPre}, 63'), fx.advance(sPre),
                           a(f'buffer_load_dword {vFlx}, {c.vZ}, {sWS}, {fx.sLine} offen sc1'),
                           a(f'buffer_load_dword {vFlk}, {vFk}, {sWS}, 0 offen sc1'))], 38)
    assert max(fill) < 40
    ds = Cnt(a, 'lgkmcnt', 15)
    mfma_loop(c, 40, acc, xf, vRd, fill, True, ds)
    for i in range(8):
        ds.issue(f'ds_read_b128 {kx[4 * i:4 * i + 4]}, {vKr} offset:{1024 * i}', 'kx')
    a(f's_add_u32 {sNeed}, {sSeg}, 1')
    a(f's_bfe_u32 {sEx}, {sSeg}, 0x20001')
    a(f's_lshl_b32 {sEx}, {sEx}, 14')
    a(f's_and_b32 {S["t3"]}, {sSeg}, 1')
    a(f's_lshl_b32 {S["t3"]}, {S["t3"]}, 12')
    a(f's_add_u32 {sEx}, {sEx}, {S["t3"]}')
    a(f's_add_u32 {sEx}, {sEx}, {sO}')
    seg_off(c, sE, sSeg, 0, 262144, OO)

    def exload():
        a(f'buffer_load_dwordx2 {km}, {vXs}, {sWS}, {sEx} offen sc1')
        a(f'buffer_load_dwordx2 {vm[0:2]}, {vVs}, {sWS}, {sEx} offen sc1')
        a(f'buffer_load_dwordx2 {vm[2:4]}, {vVs}, {sWS}, {sEx} offen offset:512 sc1')
    exload()
    for i in range(8):
        a(f'v_cvt_pk_bf16_f32 {pk[i]}, {acc[2 * i]}, {acc[2 * i + 1]}')
    for i in range(2):
        ds.issue(f'ds_write_b128 {vQw}, {pk[4 * i:4 * i + 4]} offset:{512 * i}', 'qw')
    ds.drain()
    a('s_barrier')
    for u in range(4):
        ds.issue(f'ds_read_b128 {qb[4 * u:4 * u + 4]}, {vQr} offset:{1024 * u}', 'q%d' % u)
    for E in range(4):
        for T in range(2):
            ds.issue(f'ds_read_b64_tr_b16 {vt[4 * E + 2 * T:4 * E + 2 * T + 2]}, {vMr1} offset:{4096 * T + 1024 * (E >> 1) + 512 * (E & 1)}', 'vt')
    for u in range(4):
        ds.wait('q%d' % u)
        for t in range(2):
            a(f'{MF16} {Sx[4 * t:4 * t + 4]}, {kx[(4 * t + u) * 4:(4 * t + u) * 4 + 4]}, {qb[4 * u:4 * u + 4]}, '
              f'{msk[4 * t:4 * t + 4] if u == 0 else Sx[4 * t:4 * t + 4]}')
    m, t1 = c.t[0], c.t[1]
    a(f'v_max3_f32 {m}, {Sx[0]}, {Sx[1]}, {Sx[2]}')
    a(f'v_max3_f32 {m}, {m}, {Sx[3]}, {Sx[4]}')
    a(f'v_max3_f32 {m}, {m}, {Sx[5]}, {Sx[6]}')
    a(f'v_max_f32 {m}, {m}, {Sx[7]}')
    a(f's_branch {leo}')
    a.label(le)
    c.bail(27)
    if cfg.get('qasleep'):
        a(f's_sleep {cfg["qasleep"]}')
    exload()
    a.label(leo)
    a('s_waitcnt vmcnt(0)')
    a(f'v_min3_i32 {t1}, {km[0]}, {vm[0]}, {vm[2]}')
    a(f'v_cmp_eq_u32 vcc, {vFle}, {t1}')
    a(f's_cbranch_vccnz {le}')
    a(f'ds_write2_b32 {vMw}, {km[0]}, {km[1]} offset0:0 offset1:128')
    ds.drain()
    a('s_barrier')
    a(f'buffer_store_dwordx4 {po}, {vPa}, {sWS}, {sEx} offen sc1')
    for u in range(4):
        for aa in range(2):
            ds.issue(f'ds_read_b64_tr_b16 {ka[4 * u + 2 * aa:4 * u + 2 * aa + 2]}, {vMr} offset:{u * 1024 + aa * 256}', 'k%d' % u)
    for u in range(4):
        ds.wait('k%d' % u)
        a(f'{MF16} {Sx[8:12]}, {ka[4 * u:4 * u + 4]}, {qb[4 * u:4 * u + 4]}, {"0" if u == 0 else Sx[8:12]}')
    a(f'v_mul_f32 {Sx[8]}, {sC}, {Sx[8]}')
    a(f'v_mul_f32 {Sx[9]}, {sC}, {Sx[9]}')
    a(f'v_max3_f32 {m}, {m}, {Sx[8]}, {Sx[9]}')
    for sw in ('32', '16'):
        a(f'v_mov_b32 {t1}, {m}')
        a(f'v_permlane{sw}_swap_b32 {t1}, {m}')
        a(f'v_max_f32 {m}, {m}, {t1}')
    for i in range(10):
        a(f'v_sub_f32 {Sx[i]}, {Sx[i]}, {m}')
        a(f'v_exp_f32 {Sx[i]}, {Sx[i]}')
    for k in range(4):
        a(f'v_cvt_pk_bf16_f32 {P[k]}, {Sx[2 * k]}, {Sx[2 * k + 1]}')
    a(f'v_cvt_pk_bf16_f32 {Pa[3]}, {Sx[8]}, {Sx[9]}')
    a(f'v_cvt_pk_bf16_f32 {Pb[2]}, {Sx[8]}, {Sx[9]}')
    a(f'{MF16} {L}, {one}, {P}, 0')
    a(f'{MF16} {L}, {one}, {Pb[2:6]}, {L}')
    sel = [Pb[2:6], Pa[2:6], Pb[0:4], Pa[0:4]]
    for E in range(4):
        a(f'{MF16} {O[4 * E:4 * E + 4]}, {vt[4 * E:4 * E + 4]}, {P}, 0')
        a(f'{MF16} {O[4 * E:4 * E + 4]}, {vm}, {sel[E]}, {O[4 * E:4 * E + 4]}')
        if E == 1:
            a(f'v_rcp_f32 {m}, {L[0]}')
    for pr in range(2):
        for i in range(8):
            a(f'v_mul_f32 {O[8 * pr + i]}, {O[8 * pr + i]}, {m}')
        for i in range(4):
            a(f'v_cvt_pk_bf16_f32 {pk[4 * pr + i]}, {O[8 * pr + 2 * i]}, {O[8 * pr + 2 * i + 1]}')
        a(f'buffer_store_dwordx4 {pk[4 * pr:4 * pr + 4]}, {vSt}, {sWS}, {sE} offen offset:{2048 * pr} sc1')
    a(f's_add_u32 {sSeg}, {sSeg}, 1')
    a(f's_cmp_lt_u32 {sSeg}, 64')
    a(f's_cbranch_scc1 {top}')
    a('s_waitcnt vmcnt(0)')
    a('s_barrier')
    a(f'v_mov_b32 {vCnt}, 64')
    a(f'buffer_store_dword {vCnt}, {vOwn}, {sWS}, 0 offen sc1')
    S['tl'](4, c.t[0], c.t[1])
    a('s_endpgm')
    for lab, back, args in ((lx, lxo, (vFlx, c.vZ, fx.sLine, fx.sNeed, 25)), (lk, lko, (vFlk, vFk, '0', sN2, 26))):
        a.label(lab)
        c.spin_flags(*args)
        a(f's_branch {back}')


def gen_F(a, S, cfg, census):
    c = Ctx(a, S, cfg, 'f')
    sI, sWS, sW = S['idx'], S['ws'], S['w']
    sX = c.sr.alloc('x', 4)
    sOut = c.sr.alloc('o', 4)
    sSeg, sE, sCnt, sTask, sCg, sO8, sNg, sNeed, sP4, sP3, sRow, sBest = [c.sr.alloc('k%d' % i) for i in range(12)]
    sTm = [c.sr.alloc('tm%d' % i, 2) for i in range(2)]
    sMin = c.sr.alloc('mn', 2)
    vOwn, vA, vB, vF3, vF4, vFl, vCnt, vP = [c.v.alloc('v%d' % i) for i in range(8)]
    xr = c.v.alloc('xr', 48)
    f = c.v.alloc('f', 80)
    c.srd(sX, S['x'], 2048 * 1280)
    c.srd(sOut, S['out'], 2048 * 1280)
    c.own_word(vOwn, sI, F_XN)
    labp = a.newlabel('noprobe')
    a(f's_lshl_b32 {S["t1"]}, {sI}, 2')
    a(f's_add_u32 {sTask}, {S["t1"]}, {sW}')
    a(f's_cmp_lg_u32 {sTask}, {4 * NF - 1}')
    a(f's_cbranch_scc1 {labp}')
    a(f'v_mov_b32 {vP}, {PROBE}')
    a('s_mov_b64 exec, 1')
    a(f's_mov_b32 {sMin[0]}, -1')
    a(f's_mov_b32 {sMin[1]}, -1')
    a('s_waitcnt vmcnt(0)')
    for it in range(3):
        for p in range(2):
            a(f's_mov_b32 {S["t2"]}, {8192 * p + 128 * it}')
            a(f's_memtime {sTm[0]}')
            a('s_waitcnt lgkmcnt(0)')
            a(f'buffer_store_dword {c.vZ}, {vP}, {sWS}, {S["t2"]} offen sc1')
            a('s_waitcnt vmcnt(0)')
            a(f's_memtime {sTm[1]}')
            a('s_waitcnt lgkmcnt(0)')
            a(f's_sub_u32 {S["t2"]}, {sTm[1][0]}, {sTm[0][0]}')
            a(f's_min_u32 {sMin[p]}, {sMin[p]}, {S["t2"]}')
    a(f's_cmp_lt_u32 {sMin[1]}, {sMin[0]}')
    a(f's_cselect_b32 {S["t2"]}, 1, 0')
    a(f's_lshr_b32 {S["t3"]}, {S["xcc"]}, 2')
    a(f's_xor_b32 {S["t2"]}, {S["t2"]}, {S["t3"]}')
    a(f's_or_b32 {S["t2"]}, {S["t2"]}, 2')
    a(f'v_mov_b32 {vP}, {S["t2"]}')
    a(f's_lshl_b32 {S["t2"]}, {S["mode"]}, 2')
    a(f'v_mov_b32 {c.t[0]}, {S["t2"]}')
    a(f'global_store_dword {c.t[0]}, {vP}, {S["dbg"]} offset:{4 * D_PAR} sc1')
    a('s_mov_b64 exec, -1')
    a.label(labp)
    c.LA(vA, [(0, 3, 1280), (3, 3, 16)], [(sW, 8 * 1280)])
    c.LA(vB, [(4, 2, 1024), (3, 1, 512), (0, 3, 16)], [(sW, 128)])
    a(f's_mov_b32 {sSeg}, {sI}')
    a(f's_mov_b32 {sCnt}, 0')

    def xload():
        a(f's_mul_i32 {sE}, {sSeg}, 40960')
        for i in range(10):
            a(f'buffer_load_dwordx4 {xr[4 * i:4 * i + 4]}, {vA}, {sX}, {sE} offen offset:{128 * i}')
    xload()
    top = a.newlabel('ln')
    a.label(top)
    a('s_waitcnt vmcnt(0)')
    for i in range(40):
        a(f'v_lshlrev_b32 {f[2 * i]}, 16, {xr[i]}')
        a(f'v_and_b32 {f[2 * i + 1]}, 0xffff0000, {xr[i]}')
    a(f's_mul_i32 {sRow}, {sSeg}, 40960')
    a(f's_add_u32 {sRow}, {sRow}, {XN}')
    a(f's_add_u32 {sSeg}, {sSeg}, {NF}')
    xload()
    s0, s1 = c.t[0], c.t[1]

    def rowsum():
        a(f'v_add_f32_dpp {s0}, {s0}, {s0} row_ror:8 row_mask:0xf bank_mask:0xf')
        for sw in ('16', '32'):
            a(f'v_mov_b32 {s1}, {s0}')
            a(f'v_permlane{sw}_swap_b32 {s1}, {s0}')
            a(f'v_add_f32 {s0}, {s0}, {s1}')
    t2 = c.t[2:4]
    a(f'v_pk_add_f32 {t2}, {f[0:2]}, {f[2:4]}')
    for i in range(2, 40):
        a(f'v_pk_add_f32 {t2}, {t2}, {f[2 * i:2 * i + 2]}')
    a(f'v_add_f32 {s0}, {t2[0]}, {t2[1]}')
    rowsum()
    a(f'v_mul_f32 {s0}, {f32hex(1.0 / 640)}, {s0}')
    for i in range(80):
        a(f'v_sub_f32 {f[i]}, {f[i]}, {s0}')
    a(f'v_pk_mul_f32 {t2}, {f[0:2]}, {f[0:2]}')
    for i in range(1, 40):
        a(f'v_pk_fma_f32 {t2}, {f[2 * i:2 * i + 2]}, {f[2 * i:2 * i + 2]}, {t2}')
    a(f'v_add_f32 {s0}, {t2[0]}, {t2[1]}')
    rowsum()
    a(f'v_mov_b32 {s1}, {f32hex(1e-5)}')
    a(f'v_fmac_f32 {s1}, {f32hex(1.0 / 640)}, {s0}')
    a(f'v_rsq_f32 {s0}, {s1}')
    for i in range(10):
        for k in range(8):
            a(f'v_mul_f32 {f[8 * i + k]}, {f[8 * i + k]}, {s0}')
        for k in range(4):
            a(f'v_cvt_pk_bf16_f32 {f[8 * i + k]}, {f[8 * i + 2 * k]}, {f[8 * i + 2 * k + 1]}')
        a(f's_add_u32 {S["t2"]}, {sRow}, {4096 * i}')
        a(f'buffer_store_dwordx4 {f[8 * i:8 * i + 4]}, {vB}, {sWS}, {S["t2"]} offen sc1')
    a(f's_add_u32 {sCnt}, {sCnt}, 1')
    a(f'v_mov_b32 {vCnt}, {sCnt}')
    labc = a.newlabel('cdone')
    a(f's_cmp_lg_u32 {sCnt}, 1')
    a(f's_cbranch_scc1 {labc}')
    census(c.t[1], c.t[2])
    a.label(labc)
    a('s_waitcnt vmcnt(0)')
    a('s_barrier')
    a(f'buffer_store_dword {vCnt}, {vOwn}, {sWS}, 0 offen sc1')
    a(f's_cmp_lt_u32 {sSeg}, 64')
    a(f's_cbranch_scc1 {top}')
    S['tl'](3, c.t[0], c.t[1])
    c.LA(vA, [(0, 3, 1280), (3, 3, 16)])
    c.LA(vB, [(5, 1, 2048), (4, 1, 1024), (3, 1, 512), (0, 3, 16)])
    a(f'v_lshrrev_b32 {vF3}, 4, {c.lane}')
    a(f'v_min_u32 {vF3}, 2, {vF3}')
    a(f'v_mul_u32_u24 {vF3}, 640, {vF3}')
    a(f'v_add_u32 {vF3}, {FLG + F_P3 * 128}, {vF3}')
    c.LA(vF4, [(3, 3, 640)], [], FLG + F_P4 * 128)
    top = a.newlabel('fin')
    a.label(top)
    a(f's_mul_i32 {sSeg}, {sTask}, 52429')
    a(f's_lshr_b32 {sSeg}, {sSeg}, 21')
    a(f's_mul_i32 {S["t1"]}, {sSeg}, 40')
    a(f's_sub_u32 {S["t1"]}, {sTask}, {S["t1"]}')
    a(f's_mul_i32 {sO8}, {S["t1"]}, 26')
    a(f's_lshr_b32 {sO8}, {sO8}, 8')
    a(f's_mul_i32 {S["t2"]}, {sO8}, 10')
    a(f's_sub_u32 {sCg}, {S["t1"]}, {S["t2"]}')
    a(f's_lshr_b32 {sNg}, {sCg}, 1')
    a(f's_add_u32 {sNeed}, {sSeg}, 1')
    a(f's_mul_i32 {sRow}, {sSeg}, 40960')
    a(f's_mul_i32 {S["t1"]}, {sO8}, 10240')
    a(f's_add_u32 {sRow}, {sRow}, {S["t1"]}')
    a(f's_lshl_b32 {S["t1"]}, {sCg}, 7')
    a(f's_add_u32 {sRow}, {sRow}, {S["t1"]}')
    a(f's_lshl_b32 {S["t1"]}, {sNg}, 13')
    a(f's_and_b32 {S["t2"]}, {sCg}, 1')
    a(f's_lshl_b32 {S["t2"]}, {S["t2"]}, 12')
    a(f's_add_u32 {S["t1"]}, {S["t1"]}, {S["t2"]}')
    a(f's_lshl_b32 {S["t2"]}, {sO8}, 7')
    a(f's_add_u32 {S["t1"]}, {S["t1"]}, {S["t2"]}')
    seg_off(c, sP4, sSeg, 0, 40 * 8192, P4, S['t1'])
    seg_off(c, sP3, sSeg, 0, 15 * 8192, P3, S['t1'])
    a(f's_lshl_b32 {sNg}, {sNg}, 7')
    a(f'buffer_load_dwordx4 {xr[0:4]}, {vA}, {sX}, {sRow} offen')
    c.spin_flags(vFl, vF3, sNg, sNeed, 28)
    for k in range(3):
        a(f's_add_u32 {S["t2"]}, {sP3}, {k * 40960}')
        a(f'buffer_load_dwordx4 {xr[4 + 4 * k:8 + 4 * k]}, {vB}, {sWS}, {S["t2"]} offen sc1')

    def add(k, first=False):
        for i in range(4):
            d = f[2 * i:2 * i + 2] if first else f[8:10]
            a(f'v_lshlrev_b32 {d[0]}, 16, {xr[4 * k + i]}')
            a(f'v_and_b32 {d[1]}, 0xffff0000, {xr[4 * k + i]}')
            if not first:
                a(f'v_pk_add_f32 {f[2 * i:2 * i + 2]}, {f[2 * i:2 * i + 2]}, {d}')
    c.spin_flags(vFl, vF4, sNg, sNeed, 29)
    for k in range(8):
        a(f's_add_u32 {S["t2"]}, {sP4}, {k * 40960}')
        a(f'buffer_load_dwordx4 {xr[16 + 4 * k:20 + 4 * k]}, {vB}, {sWS}, {S["t2"]} offen sc1')
    for k in range(4):
        add(k, k == 0)
    for k in range(8):
        a(f's_waitcnt vmcnt({7 - k})')
        add(4 + k)
    for i in range(4):
        a(f'v_cvt_pk_bf16_f32 {f[12 + i]}, {f[2 * i]}, {f[2 * i + 1]}')
    a(f'buffer_store_dwordx4 {f[12:16]}, {vA}, {sOut}, {sRow} offen')
    a(f's_add_u32 {sTask}, {sTask}, {4 * NF}')
    a(f's_cmp_lt_u32 {sTask}, {64 * 40}')
    a(f's_cbranch_scc1 {top}')
    S['tl'](4, c.t[0], c.t[1])
    a('s_endpgm')
```

```python
import sys, json
from dsl import Asm, Regs, R, Ins
from layout import *
from role_r2 import gen_R
import roles_tok as T

NAME = 'parallel_sum__memory_aug_recurrent_mem_tr__glu_gated_glu__prompt_kernel'
HEAD = open('ref_head.txt').read().split('; Override')[0]


def build(cfg):
    a = Asm()
    sr = Regs('s', 4, 102)
    S = {}
    S['ws'] = sr.alloc('ws', 4)
    S['ptrs'] = sr.alloc('ptrs', 8, align=4)
    ld0 = sr.alloc('x_mem0', 4)
    S['x'], S['mem0'] = ld0[0:2], ld0[2:4]
    ld1 = sr.alloc('dbg_ws', 4)
    S['dbg'] = ld1[0:2]
    for nme in ('h', 'j', 'w', 'budget', 't0', 't1', 't2', 't3', 'xcc', 'mode'):
        S[nme] = sr.alloc(nme)
    S['idx'] = S['h']
    rfree = sr.next
    ffn = sr.alloc('ffn', 8, align=4)
    S['ffn'], S['out'] = ffn[0:6], ffn[6:8]
    S['free'] = sr.next
    t0, t1, t2 = S['t0'], S['t1'], S['t2']

    def tl(i, va, vb):
        if cfg.get('tld'):
            lab = a.newlabel('tld')
            a(f's_cmp_lg_u32 {S["w"]}, 0')
            a(f's_cbranch_scc1 {lab}')
            a(f's_and_b32 {t0}, {S["h"]}, 7')
            a(f's_cmp_lg_u32 {t0}, 0')
            a(f's_cbranch_scc1 {lab}')
            a('s_mov_b64 exec, 1')
            a('s_memrealtime vcc')
            a('s_waitcnt lgkmcnt(0)')
            a(f's_cmp_lt_u32 {S["j"]}, 2')
            a(f's_cselect_b32 {t0}, {4 * (2, 3, 3, 4, 5)[i]}, {4 * (6, 7, 7, 10, 11)[i]}')
            a(f'v_mov_b32 {va}, vcc_lo')
            a(f'v_mov_b32 {vb}, {t0}')
            a(f'global_atomic_umax {vb}, {va}, {S["dbg"]}')
            if i == 0:
                a(f'v_not_b32 {va}, {va}')
                a(f'v_mov_b32 {vb}, 56')
                a(f'global_atomic_umax {vb}, {va}, {S["dbg"]}')
            a('s_mov_b64 exec, -1')
            a.label(lab)
            return
        if not cfg.get('tl'):
            return
        a('s_memrealtime vcc')
        a('s_waitcnt lgkmcnt(0)')
        a(f's_lshl_b32 {t0}, s2, 6')
        a(f's_add_u32 {t0}, {t0}, {TIM + 65536 + 4 * i}')
        a(f'v_mov_b32 {va}, vcc_lo')
        a(f'v_mov_b32 {vb}, 0')
        a(f'buffer_store_dword {va}, {vb}, {S["ws"]}, {t0} offen')
        if i == 0:
            a(f's_lshl_b32 {t1}, {S["j"]}, 8')
            a(f's_or_b32 {t1}, {t1}, {S["h"]}')
            a(f'v_mov_b32 {va}, {t1}')
            a(f'buffer_store_dword {va}, {vb}, {S["ws"]}, {t0} offen offset:60')
        a('s_waitcnt vmcnt(0)')
    S['tl'] = tl
    a('s_cmp_ge_u32 s2, 256')
    a('s_cbranch_scc1 L_exit')
    a(f's_load_dwordx4 {ld0}, s[0:1], 0')
    a(f's_load_dwordx8 {S["ptrs"]}, s[0:1], 16')
    a(f's_load_dwordx4 {ld1}, s[0:1], 96')
    a(f's_mov_b64 {R("s", 100, 2)}, s[0:1]')
    a(f's_getreg_b32 {S["xcc"]}, hwreg(HW_REG_XCC_ID, 0, 4)')
    a('v_lshrrev_b32 v1, 6, v0')
    a(f'v_readfirstlane_b32 {S["w"]}, v1')
    a(f's_mov_b32 {S["budget"]}, {cfg.get("budget", 400000)}')
    a(f's_mov_b32 {S["mode"]}, 0')
    a('s_waitcnt lgkmcnt(0)')
    a(f's_mov_b32 {S["ws"][0]}, {ld1[2]}')
    a(f's_and_b32 {S["ws"][1]}, {ld1[3]}, 0xffff')
    a(f's_mov_b32 {S["ws"][2]}, 0x10000000')
    a(f's_mov_b32 {S["ws"][3]}, 0x20000')
    a(f's_cmp_lg_u32 {S["w"]}, 0')
    a('s_cbranch_scc1 L_tk')
    a('s_mov_b64 exec, 3')
    a(f's_lshl_b32 {t0}, s2, 8')
    a(f's_add_u32 {t0}, {t0}, {FLG}')
    a('v_lshlrev_b32 v1, 7, v0')
    a('v_mov_b32 v2, 0')
    a(f'buffer_store_dword v2, v1, {S["ws"]}, {t0} offen sc1')
    a(f's_and_b32 {t0}, {S["xcc"]}, 3')
    a(f's_lshl_b32 {t0}, {t0}, 6')
    a(f's_bfe_u32 {t1}, {S["xcc"]}, 0x10002')
    a(f's_lshl_b32 {t1}, {t1}, 2')
    a(f's_add_u32 {t0}, {t0}, {t1}')
    a(f'v_mov_b32 v1, {t0}')
    a('v_mov_b32 v2, 1')
    a('s_mov_b64 exec, 1')
    a('s_waitcnt vmcnt(0)')
    a(f'global_atomic_add v3, v1, v2, {S["dbg"]} sc0')
    a('v_mov_b32 v1, 0')
    a('s_waitcnt vmcnt(0)')
    a('ds_write_b32 v1, v3')
    a('s_waitcnt lgkmcnt(0)')
    a('s_mov_b64 exec, -1')
    a.label('L_tk')
    a('s_barrier')
    a('v_mov_b32 v1, 0')
    a('ds_read_b32 v2, v1')
    a('s_waitcnt lgkmcnt(0)')
    a(f'v_readfirstlane_b32 {S["h"]}, v2')
    a('s_barrier')
    a(f's_and_b32 {S["j"]}, {S["xcc"]}, 7')
    a(f's_cmp_ge_u32 {S["h"]}, 32')
    a('s_cbranch_scc1 L_norole')
    a.label('L_dispatch')
    tl(0, 'v1', 'v2')
    h, j = S['h'], S['j']
    a(f's_cmp_lt_u32 {j}, 2')
    a('s_cbranch_scc1 L_R')
    a(f's_load_dwordx8 {ffn}, s[100:101], 64')
    a('s_waitcnt lgkmcnt(0)')
    a(f's_cmp_eq_u32 {j}, 4\ns_cbranch_scc1 L_KV')
    a(f's_cmp_eq_u32 {j}, 2\ns_cbranch_scc1 L_QA')
    a(f's_cmp_eq_u32 {j}, 5\ns_cbranch_scc0 L_d5')
    a(f's_add_u32 {h}, {h}, 32\ns_branch L_KV')
    a.label('L_d5')
    a(f's_cmp_eq_u32 {j}, 3\ns_cbranch_scc0 L_d6')
    a(f's_cmp_lt_u32 {h}, 27\ns_cbranch_scc1 L_G2')
    a(f's_sub_u32 {h}, {h}, 27\ns_branch L_F')
    a.label('L_d6')
    a(f's_cmp_eq_u32 {j}, 6\ns_cbranch_scc0 L_d7')
    a(f's_cmp_lt_u32 {h}, 30\ns_cbranch_scc1 L_G4')
    a(f's_sub_u32 {h}, {h}, 25\ns_branch L_F')
    a.label('L_d7')
    a(f's_cmp_lt_u32 {h}, 10\ns_cbranch_scc0 L_d7b')
    a(f's_add_u32 {h}, {h}, 30\ns_branch L_G4')
    a.label('L_d7b')
    a(f's_cmp_lt_u32 {h}, 25\ns_cbranch_scc0 L_d7c')
    a(f's_sub_u32 {h}, {h}, 10\ns_branch L_G3')
    a.label('L_d7c')
    a(f's_sub_u32 {h}, {h}, 18\ns_branch L_F')

    def bail(code):
        lab = a.newlabel('ok')
        a(f's_sub_u32 {S["budget"]}, {S["budget"]}, 1')
        a(f's_cbranch_scc0 {lab}')
        a(f's_mov_b32 {t0}, {code}')
        a('s_branch L_bail')
        a.label(lab)

    def count(va, vb, pre=None, phase=None):
        lab, chk = a.newlabel('cen'), a.newlabel('cenc')
        ld = f'global_load_dword {vb}, {va}, {S["dbg"]} sc1'
        if phase != 1:
            a(f'v_mbcnt_lo_u32_b32 {va}, -1, 0')
            a(f'v_bfe_u32 {vb}, {va}, 2, 1')
            a(f'v_and_b32 {va}, 3, {va}')
            a(f'v_lshlrev_b32 {va}, 6, {va}')
            a(f'v_lshl_add_u32 {va}, {vb}, 2, {va}')
        if phase == 0:
            pre(ld)
            return
        if phase == 1:
            a(f's_branch {chk}')
        a.label(lab)
        a(ld)
        bail(10)
        a('s_waitcnt vmcnt(0)')
        a.label(chk)
        a(f's_mov_b32 {t1}, 0')
        for i in range(8):
            a(f'v_readlane_b32 {t2}, {vb}, {i}')
            a(f's_add_u32 {t1}, {t1}, {t2}')
        a(f's_cmp_lt_u32 {t1}, 256')
        a(f's_cbranch_scc1 {lab}')
        a(f'v_cmp_ne_u32 vcc, {33 if cfg.get("force_fb") else 32}, {vb}')
        a('s_cbranch_vccnz L_fallback')

    def census(va, vb, pre=None, phase=None):
        if phase == 0:
            count(va, vb, pre, 0)
            return
        lab = a.newlabel('cs')
        if phase is None:
            tl(1, va, vb)
        a(f's_cmp_eq_u32 {S["mode"]}, 1')
        a(f's_cbranch_scc1 {lab}')
        count(va, vb, None, phase)
        a.label(lab)
        if phase is None:
            tl(2, va, vb)

    a.label('L_norole')
    count('v1', 'v2')
    a.label('L_fallback')
    a('s_waitcnt vmcnt(0) lgkmcnt(0)')
    a('s_barrier')
    a(f's_mov_b32 {S["mode"]}, 1')
    a('v_mbcnt_lo_u32_b32 v0, -1, 0')
    a('v_mbcnt_hi_u32_b32 v0, -1, v0')
    a(f's_lshl_b32 {t0}, {S["w"]}, 6')
    a(f'v_add_u32 v0, {t0}, v0')
    a(f's_lshr_b32 {j}, s2, 5')
    a(f's_and_b32 {h}, s2, 31')
    a('s_branch L_dispatch')
    def warm_code(kb):
        if not cfg.get('wc', 1):
            return
        a(f's_getpc_b64 {R("s", t0.base, 2)}')
        a(f'v_lshlrev_b32 v1, 4, v0')
        for i in range(kb // 4):
            a(f'global_load_dwordx4 v[252:255], v1, {R("s", t0.base, 2)}')
            if i + 1 < kb // 4:
                a('v_add_u32 v1, 4096, v1')
    assert t0.base % 2 == 0
    for lab, fn in (('L_F', T.gen_F), ('L_KV', T.gen_KV), ('L_QA', T.gen_QA), ('L_G2', T.gen_G2), ('L_G3', T.gen_G3), ('L_G4', T.gen_G4)):
        a.label(lab)
        warm_code(8)
        fn(a, S, cfg, census)
    a.label('L_bail')
    a(f'v_mov_b32 v1, {t0}')
    a('v_mov_b32 v2, 0')
    a(f'global_store_dword v2, v1, {S["dbg"]} offset:{4 * D_BAIL}')
    a.label('L_exit')
    a('s_endpgm')
    a.label('L_R')
    a(f's_cmp_eq_u32 {S["mode"]}, 1')
    a('s_cbranch_scc1 L_R1')
    for fb in range(2):
        if fb:
            a.label('L_R1')
            if cfg.get('nofb'):
                a('s_endpgm')
                break
        if not fb:
            warm_code(cfg.get('wckb', 16))
        S['alloc'] = Regs('s', rfree - (1 if cfg.get('prof') is not None else 0), 102 if cfg.get('prof') is not None else 100)
        c2 = dict(cfg)
        c2['fast'] = not fb
        if fb:
            c2.pop('prof', None)
        gen_R(a, S, c2, census)
    a.check_vcc()
    a.fix_hazards(verbose=cfg.get('verbose', False))
    head = HEAD + f'''; one persistent launch, 256 workgroups = one per CU; roles are listed in the generator notes below
; @launch grid=(256,1,1) block=(256,1,1) lds=163840
.amdgcn_target "amdgcn-amd-amdhsa--gfx950"
.text
.globl {NAME}
.p2align 8
.type {NAME},@function
{NAME}:
'''
    tail = f'''.section .rodata,"a"
.p2align 6
.amdhsa_kernel {NAME}
  .amdhsa_next_free_vgpr 512
  .amdhsa_next_free_sgpr 102
  .amdhsa_accum_offset 256
  .amdhsa_group_segment_fixed_size 0
  .amdhsa_kernarg_size 112
  .amdhsa_user_sgpr_count 2
  .amdhsa_user_sgpr_kernarg_segment_ptr 1
  .amdhsa_system_sgpr_workgroup_id_x 1
.end_amdhsa_kernel
'''
    return head + a.text() + tail


if __name__ == '__main__':
    cfg = json.loads(sys.argv[2]) if len(sys.argv) > 2 else {}
    open(sys.argv[1], 'w').write(build(cfg))
```
